```python
import torch

def _softmax(x, axis=-1):
    return torch.softmax(x, dim=axis)
def _gelu(x):
    return torch.nn.functional.gelu(x, approximate="tanh")
def _silu(x):
    return torch.nn.functional.silu(x)
def _sigmoid(x):
    return torch.sigmoid(x)
def _layernorm(x, axis=-1, eps=1e-5):
    m = x.mean(dim=axis, keepdim=True)
    v = x.var(dim=axis, keepdim=True, unbiased=False)
    return (x - m) / torch.sqrt(v + eps)
def _scatter_add(tgt, idx, src, axis=0):
    return tgt.clone().index_add_(axis, idx, src)
def _segment_sum(src, seg, n):
    out = torch.zeros((n,) + src.shape[1:], dtype=src.dtype)
    return out.index_add_(0, seg, src)
def _pad(x, pw):
    flat = tuple(v for pair in reversed(pw) for v in pair)
    return torch.nn.functional.pad(x, flat)

kernel_name = 'gated_mix__softmax_full_mha__spectral_fnet__prompt'

def setup_inputs():

    _w = (lambda a: (lambda t: t.to(torch.bfloat16) if t.is_floating_point() else t)(torch.as_tensor(a)))
    def _A_setup():
        B, S, D = 1, 2048, 512
        return {
            "x": _w((lambda *s: torch.randn(*s, dtype=torch.bfloat16) * 0.05)(B, S, D)),
            "wqkv": _w((lambda *s: torch.randn(*s, dtype=torch.bfloat16) * 1.6)(D, 3 * D)),
            "wo": _w((lambda *s: torch.randn(*s, dtype=torch.bfloat16) * 1.6)(D, D)),
        }
    _A_in = _A_setup()

    def _B_setup():
        B, S, D = 1, 2048, 512
        ns = torch.arange(S)[:, None] * torch.arange(S)[None, :]
        nd = torch.arange(D)[:, None] * torch.arange(D)[None, :]
        Ws_re = torch.cos(-2.0 * torch.pi * ns / S).to(float)
        Ws_im = torch.sin(-2.0 * torch.pi * ns / S).to(float)
        Wd_re = torch.cos(-2.0 * torch.pi * nd / D).to(float)
        Wd_im = torch.sin(-2.0 * torch.pi * nd / D).to(float)
        return {
            "x": _w((lambda *s: torch.randn(*s, dtype=torch.bfloat16) * 0.05)(B, S, D)),
            "dft_seq_re": _w(Ws_re),
            "dft_seq_im": _w(Ws_im),
            "dft_hid_re": _w(Wd_re),
            "dft_hid_im": _w(Wd_im),
        }
    _B_in = _B_setup()

    return {
        "A_x": _A_in["x"],
        "A_wqkv": _A_in["wqkv"],
        "A_wo": _A_in["wo"],
        "B_x": _B_in["x"],
        "B_dft_seq_re": _B_in["dft_seq_re"],
        "B_dft_seq_im": _B_in["dft_seq_im"],
        "B_dft_hid_re": _B_in["dft_hid_re"],
        "B_dft_hid_im": _B_in["dft_hid_im"],
        "gate_w": _w((lambda *s: torch.randn(*s, dtype=torch.bfloat16) * 0.05)(512) * 16.0),
    }

def reference(A_x, A_wqkv, A_wo, B_x, B_dft_seq_re, B_dft_seq_im, B_dft_hid_re, B_dft_hid_im, gate_w):
    def _A_ref(x, wqkv, wo):
        B, S, D = x.shape
        H = 32; Dh = D // H
        qkv = (lambda x, *d: x.permute(*d))((x @ wqkv).reshape(B, S, 3, H, Dh), 2, 0, 3, 1, 4)
        q, k, v = qkv[0], qkv[1], qkv[2]
        scale = Dh ** -0.5
        scores = torch.einsum("bhqd,bhkd->bhqk", q, k) * scale
        p = _softmax(scores, axis=-1)
        o = torch.einsum("bhqk,bhkd->bhqd", p, v)
        return (lambda x, *d: x.permute(*d))(o, 0, 2, 1, 3).reshape(B, S, D) @ wo

    def _B_ref(x, dft_seq_re, dft_seq_im, dft_hid_re, dft_hid_im):
        a = torch.einsum("bsd,ed->bse", x, dft_hid_re)
        b = torch.einsum("bsd,ed->bse", x, dft_hid_im)
        y = torch.einsum("ts,bse->bte", dft_seq_re, a) - torch.einsum("ts,bse->bte", dft_seq_im, b)
        return y

    x = A_x
    g = _sigmoid((x * gate_w).sum(-1, keepdims=True))
    a = _A_ref(x, A_wqkv, A_wo)
    b = _B_ref(x, B_dft_seq_re, B_dft_seq_im, B_dft_hid_re, B_dft_hid_im)
    return g * a + (1 - g) * b
```

```python
import math

WS_Q     = 0x000000
WS_K     = 0x200000
WS_V     = 0x400000
WS_AP    = 0x600000
WS_BP    = 0x6A0000
WS_A1024 = 0x720000
WS_G     = 0x721000
WS_O     = 0x800000
WS_YM    = 0xA00000
WS_YP    = 0xC00000
WS_SIZE  = 0x1000000
YS       = 288
YSB      = YS*4

NAME = "gated_mix__softmax_full_mha__spectral_fnet__prompt"

class Asm:
    def __init__(self):
        self.lines = []
        self.nlab = 0
    def __call__(self, s, comment=None):
        if comment: s = f"{s:<72}; {comment}"
        self.lines.append("    " + s)
    def label(self, name):
        self.lines.append(f"{name}:")
    def c(self, s):
        self.lines.append(f"    ; {s}")
    def raw(self, s):
        self.lines.append(s)
    def newlabel(self, base):
        self.nlab += 1
        return f"{base}_{self.nlab}"
    def text(self):
        return "\n".join(self.lines) + "\n"

def vr(a, n=1):
    return f"v{a}" if n == 1 else f"v[{a}:{a+n-1}]"
def sr(a, n=1):
    return f"s{a}" if n == 1 else f"s[{a}:{a+n-1}]"

def srd(A, dst, ptr, size):
    A(f"s_mov_b32 s{dst}, s{ptr}")
    A(f"s_and_b32 s{dst+1}, s{ptr+1}, 0xffff")
    A(f"s_mov_b32 s{dst+2}, {hex(size)}")
    A(f"s_mov_b32 s{dst+3}, 0x20000")

def kernel_header(A, name):
    A.raw(f".globl {name}")
    A.raw(".p2align 8")
    A.raw(f".type {name},@function")
    A.raw(f"{name}:")

def kernel_desc(name, vgpr, sgpr):
    acc = (vgpr + 3)//4*4
    return f""".section .rodata,"a"
.p2align 6
.amdhsa_kernel {name}
  .amdhsa_next_free_vgpr {vgpr}
  .amdhsa_next_free_sgpr {sgpr}
  .amdhsa_accum_offset {acc}
  .amdhsa_group_segment_fixed_size 0
  .amdhsa_kernarg_size 96
  .amdhsa_user_sgpr_count 2
  .amdhsa_user_sgpr_kernarg_segment_ptr 1
  .amdhsa_system_sgpr_workgroup_id_x 1
.end_amdhsa_kernel
.text
"""
def f2u(x):
    import struct
    return struct.unpack("<I", struct.pack("<f", x))[0]

WS_STAMP = 0xE00000
class Stamps:
    def __init__(self, A, on, kidx, srd_ws, swave):
        self.A, self.on, self.k, self.srd, self.sw = A, on, kidx, srd_ws, swave
    def __call__(self, i):
        if not self.on: return
        A = self.A
        A("s_memtime s[70:71]")
        A("s_waitcnt lgkmcnt(0)")
        A(f"s_mov_b32 s{72+i}, s70")
    def dump(self, n):
        if not self.on: return
        A = self.A
        A("s_mov_b64 exec, 1")
        A("s_lshl_b32 s70, s2, 4")
        A(f"s_add_u32 s70, s70, s{self.sw}")
        A("s_lshl_b32 s70, s70, 6")
        A(f"s_add_u32 s70, s70, {hex(WS_STAMP + self.k*0x40000)}")
        A("v_mov_b32 v8, 0")
        for i in range(n):
            A(f"v_mov_b32 v9, s{72+i}")
            A(f"buffer_store_dword v9, v8, s[{self.srd}:{self.srd+3}], s70 offen offset:{i*4}")
            A("s_nop 1")
        A("s_waitcnt vmcnt(0)")

def rt_stamp(A, kidx, which, on):
    if not on: return
    lab = A.newlabel("RT")
    A("s_and_b32 s94, s2, 255")
    A("s_cmp_eq_u32 s94, 0")
    A("s_cselect_b32 s95, 1, 0")
    A("s_cmp_eq_u32 s2, 255")
    A("s_cselect_b32 s94, 1, 0")
    A("s_or_b32 s95, s95, s94")
    A("s_cmp_eq_u32 s95, 0")
    A(f"s_cbranch_scc1 {lab}")
    A("s_cmp_ge_u32 s2, 256")
    A(f"s_cbranch_scc1 {lab}")
    A("s_load_dwordx2 s[88:89], s[0:1], 80")
    A("s_memrealtime s[90:91]")
    A("s_waitcnt lgkmcnt(0)")
    if on == 3:
        A(f"s_add_u32 s88, s88, {512*(2-kidx)}")
        A("s_addc_u32 s89, s89, 0")
    if which == 0: A("s_not_b32 s90, s90")
    A("s_lshl_b32 s94, s94, 2")
    A(f"s_add_u32 s94, s94, {(kidx*4 + which*2)*4}")
    A("s_mov_b64 s[92:93], exec")
    A("s_mov_b64 exec, 1")
    A("v_mov_b32 v62, s90")
    A(f"v_mov_b32 v63, s94")
    A("global_atomic_umax v63, v62, s[88:89]")
    A("s_mov_b64 exec, s[92:93]")
    A.label(lab)
```

```python
from common import *

def gen_k1(A, opts=None):
    opts = opts or {}
    name = "k1_proj_kernel"
    kernel_header(A, name)
    A.c("K1: QKV projection + FNet hidden-DFT stage (folded over s) + gate.  256 WGs x 512 threads")
    A("s_cmp_ge_u32 s2, 256")
    A("s_cbranch_scc1 K1_END")
    rt_stamp(A, 0, 0, opts.get("rt"))
    A("s_load_dwordx4 s[24:27], s[0:1], 0", "x, wqkv")
    A("s_load_dwordx4 s[28:31], s[0:1], 48", "hid_re, hid_im")
    A("s_load_dwordx2 s[32:33], s[0:1], 64", "gate_w")
    A("s_load_dwordx2 s[34:35], s[0:1], 88", "ws")
    A("v_lshrrev_b32 v1, 6, v0")
    A("v_and_b32 v0, 63, v0", "lane")
    A("v_readfirstlane_b32 s36, v1", "wave id")
    A("s_and_b32 s37, s2, 7", "x_ (XCD group, speed only)")
    A("s_lshr_b32 s38, s2, 3")
    A("s_and_b32 s39, s38, 1", "type: 0 = K|V tile, 1 = Q|FNet tile")
    A("s_lshr_b32 s40, s38, 1", "rb")
    A("s_waitcnt lgkmcnt(0)")
    srd(A, 16, 34, WS_SIZE)
    ST = Stamps(A, opts.get("stamps"), 0, 16, 36)
    ST(0)
    A("s_cmp_ge_u32 s36, 4")
    A("s_cbranch_scc1 K1_LOADER")

    A.c("compute waves: wr = w>>1, wc = w&1")
    A("s_lshr_b32 s42, s36, 1", "wr")
    A("s_and_b32 s43, s36, 1", "wc")
    A("v_and_b32 v8, 31, v0", "i")
    A("v_lshrrev_b32 v9, 5, v0", "h")
    A("v_bfe_u32 v10, v0, 1, 3", "sw = (i>>1)&7")
    A("v_xor_b32 v10, v10, v9")
    A("v_lshlrev_b32 v10, 4, v10", "(h^sw)*16")
    A("s_lshl_b32 s44, s42, 13", "wr*64*128")
    A("v_lshlrev_b32 v11, 7, v8")
    A("v_add3_u32 v2, v11, v10, s44", "ax[0]")
    A("v_xor_b32 v3, 32, v2")
    A("v_xor_b32 v4, 64, v2")
    A("v_xor_b32 v5, 0x60, v2")
    A("v_bfe_u32 v10, v0, 2, 2", "r")
    A("v_lshl_add_u32 v11, v9, 3, v10", "8h + r")
    A("v_lshlrev_b32 v11, 7, v11", "*128")
    A("v_bfe_u32 v12, v0, 4, 1", "g'")
    A("v_bfe_u32 v13, v0, 1, 1", "c4>>1")
    A("v_lshl_add_u32 v12, v12, 1, v13", "2g' + (c4>>1)")
    A("v_bfe_u32 v13, v0, 3, 1", "(r>>1)&1")
    A("v_lshlrev_b32 v13, 2, v13")
    A("v_xor_b32 v12, v12, v13", "phys piece (ct=0)")
    A("v_lshlrev_b32 v12, 4, v12")
    A("v_and_b32 v13, 1, v0")
    A("v_lshlrev_b32 v13, 3, v13", "8*(c4&1)")
    A("v_add3_u32 v11, v11, v12, v13")
    A("s_lshl_b32 s44, s43, 13")
    A("s_add_u32 s44, s44, 16384")
    A("v_add_u32 v6, s44, v11", "aw[0]")
    A("v_xor_b32 v7, 64, v6", "aw[1]")
    for r in range(64, 128):
        A(f"v_mov_b32 v{r}, 0")
    XF = [[16, 20], [32, 36]]
    WF = [[24, 28], [40, 44]]
    def acc(rt, ct): return 64 + 16*(2*rt + ct)
    def reads(st, ks):
        L = []
        L.append(f"ds_read_b128 {vr(XF[st][0],4)}, v{2+ks}")
        L.append(f"ds_read_b128 {vr(XF[st][1],4)}, v{2+ks} offset:4096")
        for ct in range(2):
            L.append(f"ds_read_b64_tr_b16 {vr(WF[st][ct],2)}, v{6+ct} offset:{ks*2048}")
            L.append(f"ds_read_b64_tr_b16 {vr(WF[st][ct]+2,2)}, v{6+ct} offset:{ks*2048+512}")
        return L
    def mfmas(st, wc):
        L = []
        for rt in range(2):
            for ct in range(2):
                a = acc(rt, ct)
                if wc == 0:
                    L.append(f"v_mfma_f32_32x32x16_bf16 {vr(a,16)}, {vr(WF[st][ct],4)}, {vr(XF[st][rt],4)}, {vr(a,16)}")
                else:
                    L.append(f"v_mfma_f32_32x32x16_bf16 {vr(a,16)}, {vr(XF[st][rt],4)}, {vr(WF[st][ct],4)}, {vr(a,16)}")
        return L
    ST(1)
    A("s_barrier", "#0: stage 0 landed")
    ST(2)
    for s in reads(0, 0): A(s)
    A("s_mov_b32 s45, 0", "stage counter")
    A("s_cmp_eq_u32 s43, 0")
    A("s_cbranch_scc0 K1_LOOP1")
    for wc in range(2):
        A.raw(".p2align 6")
        A.label(f"K1_LOOP{wc}")
        for ks in range(4):
            st = ks & 1
            A("s_waitcnt lgkmcnt(0)")
            if ks == 3:
                for r in range(2, 8):
                    A(f"v_add_u32 v{r}, 0x8000, v{r}")
                    A(f"v_and_b32 v{r}, 0x1ffff, v{r}")
                A("s_cmp_eq_u32 s45, 7")
                lab = f"K1_NOBAR{wc}"
                A(f"s_cbranch_scc1 {lab}")
                A("s_barrier")
                A.label(lab)
            rd = reads(1 - st, (ks + 1) & 3)
            mf = mfmas(st, wc)
            A(mf[0]); A(rd[0]); A(rd[1]); A(mf[1]); A(rd[2]); A(rd[3]); A(mf[2]); A(rd[4]); A(rd[5]); A(mf[3])
        A("s_add_u32 s45, s45, 1")
        A("s_cmp_lt_u32 s45, 8")
        A(f"s_cbranch_scc1 K1_LOOP{wc}")
        if wc == 0:
            A("s_branch K1_EPI_QK")
    A("s_cmp_eq_u32 s39, 0")
    A("s_cbranch_scc0 K1_EPI_F")

    ST(3)
    A.c("V epilogue")
    A("s_waitcnt lgkmcnt(0)")
    A("v_and_b32 v8, 15, v0", "d")
    A("v_lshlrev_b32 v8, 4, v8")
    A("v_bfe_u32 v9, v0, 4, 1", "head low bit")
    A("v_lshlrev_b32 v9, 16, v9")
    A("v_lshrrev_b32 v10, 5, v0")
    A("v_lshlrev_b32 v10, 8, v10", "h*256")
    A("v_add3_u32 v8, v8, v9, v10")
    A.c("soffset = WS_V + (4x_)*65536 + tile*1024, tile = 4rb + 2wr + rt")
    A("s_lshl_b32 s46, s37, 18")
    A("s_lshl_b32 s47, s40, 2")
    A("s_lshl_b32 s48, s42, 1")
    A("s_add_u32 s47, s47, s48")
    A("s_lshl_b32 s47, s47, 10")
    A("s_add_u32 s46, s46, s47")
    A(f"s_add_u32 s46, s46, {hex(WS_V)}")
    A("s_nop 7")
    tmp = 16
    for rt in range(2):
        for ct in range(2):
            a = acc(rt, ct)
            for ch in range(2):
                for j in range(4):
                    A(f"v_cvt_pk_bf16_f32 v{tmp+j}, v{a+8*ch+2*j}, v{a+8*ch+2*j+1}")
                A(f"s_add_u32 s47, s46, {rt*1024 + ct*2*65536}")
                A(f"buffer_store_dwordx4 {vr(tmp,4)}, v8, s[16:19], s47 offen offset:{ch*512}")
                tmp = 16 + (tmp - 16 + 4) % 32
    ST(4)
    if opts.get("stamps"): A("s_waitcnt vmcnt(0)")
    ST(5)
    ST.dump(6)
    if opts.get("rt"): A("s_waitcnt vmcnt(0)")
    rt_stamp(A, 0, 1, opts.get("rt"))
    A("s_endpgm")

    A.label("K1_EPI_F")
    ST(3)
    A.c("FNet epilogue: A' = acc(s) + acc(mirror) (re), B' = acc(s) - acc(mirror) (im)")
    A("s_waitcnt lgkmcnt(0)")
    A("s_cmp_lt_u32 s37, 4")
    A("s_cselect_b32 s46, 1.0, -1.0", "sign")
    A(f"s_mov_b32 s48, {hex(WS_BP)}")
    A(f"s_cselect_b32 s47, {hex(WS_AP)}, s48")
    A("s_and_b32 s48, s37, 3")
    A("s_lshl_b32 s48, s48, 17", "eblk*65536, eblk = 2*(x_&3)")
    A("s_add_u32 s47, s47, s48")
    A("s_lshl_b32 s48, s40, 2")
    A("s_lshl_b32 s49, s42, 1")
    A("s_add_u32 s48, s48, s49", "ks0 = 4rb + 2wr")
    A("s_lshl_b32 s49, s48, 10")
    A("s_add_u32 s47, s47, s49")
    A("v_lshlrev_b32 v8, 4, v0")
    A("s_nop 4")
    A.c("s == 0 special: row 0 pairs with row 1024 (only for re columns, rb == 0, wr == 0)")
    A("s_cmp_eq_u32 s48, 0")
    A("s_cbranch_scc0 K1_EPI_F2")
    A("s_cmp_lt_u32 s37, 4")
    A("s_cbranch_scc0 K1_EPI_F2")
    A("s_mov_b32 exec_lo, -1", "lanes 0..31")
    A("s_mov_b32 exec_hi, 0")
    A("v_lshlrev_b32 v9, 2, v0")
    A("s_lshl_b32 s49, s37, 8", "e base = 64 x_ -> *4 bytes")
    A(f"s_add_u32 s49, s49, {hex(WS_A1024)}")
    for ct in range(2):
        A(f"buffer_store_dword v{acc(1,ct)}, v9, s[16:19], s49 offen offset:{ct*128}")
    A("s_nop 1")
    for ct in range(2):
        A(f"v_mov_b32 v{acc(1,ct)}, 0")
    A("s_mov_b64 exec, -1")
    A.label("K1_EPI_F2")
    tmp = 16
    for ct in range(2):
        a0 = acc(0, ct); a1 = acc(1, ct)
        for r in range(16):
            A(f"v_fma_f32 v{a0+r}, v{a1+r}, s46, v{a0+r}")
        for ch in range(2):
            for j in range(4):
                A(f"v_cvt_pk_bf16_f32 v{tmp+j}, v{a0+8*ch+2*j}, v{a0+8*ch+2*j+1}")
            A(f"s_add_u32 s49, s47, {ct*65536}")
            A(f"buffer_store_dwordx4 {vr(tmp,4)}, v8, s[16:19], s49 offen offset:{ch*1024}")
            tmp = 16 + (tmp - 16 + 4) % 32
    ST(4)
    if opts.get("stamps"): A("s_waitcnt vmcnt(0)")
    ST(5)
    ST.dump(6)
    if opts.get("rt"): A("s_waitcnt vmcnt(0)")
    rt_stamp(A, 0, 1, opts.get("rt"))
    A("s_endpgm")

    A.label("K1_EPI_QK")
    ST(3)
    A.c("Q/K epilogue")
    A("s_waitcnt lgkmcnt(0)")
    c = 0.25*math.log2(math.e)
    A("s_cmp_eq_u32 s39, 0")
    A(f"s_cselect_b32 s46, 1.0, {hex(f2u(c))}", "K: 1.0, Q: 0.25*log2(e)")
    A(f"s_cselect_b32 s47, {hex(WS_K)}, {hex(WS_Q)}" if WS_Q > 64 else f"s_cselect_b32 s47, {hex(WS_K)}, {WS_Q}")
    A("s_lshl_b32 s48, s37, 18", "head base 4x_ * 65536")
    A("s_add_u32 s47, s47, s48")
    A("s_lshl_b32 s48, s40, 2")
    A("s_lshl_b32 s49, s42, 1")
    A("s_add_u32 s48, s48, s49")
    A("s_lshl_b32 s48, s48, 10", "tile*1024")
    A("s_add_u32 s47, s47, s48")
    A("v_lshlrev_b32 v8, 4, v0")
    A("s_nop 7")
    tmp = 16
    for rt in range(2):
        for ct in range(2):
            a = acc(rt, ct)
            for hd in range(2):
                for j in range(8):
                    A(f"v_mul_f32 v{a+8*hd+j}, s46, v{a+8*hd+j}")
                for j in range(4):
                    A(f"v_cvt_pk_bf16_f32 v{tmp+j}, v{a+8*hd+2*j}, v{a+8*hd+2*j+1}")
                A(f"s_add_u32 s49, s47, {rt*1024 + (2*ct+hd)*65536}")
                A(f"buffer_store_dwordx4 {vr(tmp,4)}, v8, s[16:19], s49 offen")
                tmp = 16 + (tmp - 16 + 4) % 32
    ST(4)
    if opts.get("stamps"): A("s_waitcnt vmcnt(0)")
    ST(5)
    ST.dump(6)
    if opts.get("rt"): A("s_waitcnt vmcnt(0)")
    rt_stamp(A, 0, 1, opts.get("rt"))
    A("s_endpgm")

    A.label("K1_LOADER")
    srd(A, 4, 24, 0x200000)
    srd(A, 8, 26, 0x180000)
    srd(A, 20, 32, 0x400)
    A("s_sub_u32 s41, s36, 4", "j")
    A("s_lshr_b32 s42, s41, 1", "wr")
    A("s_and_b32 s43, s41, 1", "rt")
    A.c("W1 source: type 0 -> wqkv V columns; type 1 -> hid_re (x_<4) / hid_im")
    A("s_cmp_lt_u32 s37, 4")
    A("s_cselect_b32 s44, s28, s30")
    A("s_cselect_b32 s45, s29, s31")
    A("s_lshl_b32 s47, s37, 7", "64 x_ * 2")
    A("s_and_b32 s49, s37, 3")
    A("s_lshl_b32 s49, s49, 7", "64 (x_&3) * 2")
    A("s_add_u32 s63, s47, 2048", "(1024 + 64x_)*2")
    A("s_mov_b32 s64, 0x80000")
    A("s_movk_i32 s65, 1024")
    A("s_cmp_eq_u32 s39, 0")
    A("s_cselect_b32 s12, s26, s44")
    A("s_cselect_b32 s13, s27, s45")
    A("s_cselect_b32 s14, 0x180000, s64")
    A("s_mov_b32 s15, 0x20000")
    A("s_cselect_b32 s46, 3072, s65", "stride1")
    A("s_cselect_b32 s48, s65, 0", "type0: K columns start at 512")
    A("s_cselect_b32 s49, s63, s49", "colbase1*2")
    A("s_and_b32 s13, s13, 0xffff")
    A("s_add_u32 s48, s48, s47", "colbase0*2")
    A.c("gate rows: pair pi = (2x_+type)*4 + j ; s = 64rb + pi")
    A("s_lshl_b32 s50, s37, 1")
    A("s_add_u32 s50, s50, s39")
    A("s_lshl_b32 s50, s50, 2")
    A("s_add_u32 s50, s50, s41")
    A("s_lshl_b32 s51, s40, 6")
    A("s_add_u32 s50, s50, s51", "s50 = s")
    A("s_sub_u32 s51, 2048, s50")
    A("s_cmp_eq_u32 s50, 0")
    A("s_cselect_b32 s51, 1024, s51", "s51 = mirror row")
    A("v_lshlrev_b32 v8, 4, v0")
    A("s_lshl_b32 s52, s50, 10")
    A("s_lshl_b32 s53, s51, 10")
    A("buffer_load_dwordx4 v[16:19], v8, s[4:7], s52 offen")
    A("buffer_load_dwordx4 v[20:23], v8, s[4:7], s53 offen")
    A("buffer_load_dwordx4 v[24:27], v8, s[20:23], 0 offen")
    A("v_lshrrev_b32 v9, 3, v0", "a")
    A("v_lshrrev_b32 v10, 2, v9")
    A("v_lshlrev_b32 v10, 3, v10", "8*(a>>2)")
    A("v_and_b32 v11, 3, v9")
    A("s_lshl_b32 s52, s40, 6")
    A("s_lshl_b32 s53, s42, 5")
    A("s_add_u32 s52, s52, s53", "64rb + 32wr")
    A("v_add3_u32 v10, v10, v11, s52", "sa")
    A("v_and_b32 v11, 7, v0")
    A("v_lshrrev_b32 v12, 1, v9")
    A("v_xor_b32 v12, v11, v12", "p0")
    A("s_cmp_eq_u32 s43, 1")
    A("s_cselect_b64 s[54:55], -1, 0")
    A("v_mov_b32 v14, 0x400")
    for u in range(4):
        A(f"v_add_u32 v13, {16*(u>>1)+4*(u&1)}, v10")
        A(f"v_sub_u32 v15, 0x800, v13")
        A(f"v_cndmask_b32 v13, v13, v15, s[54:55]")
        if u == 0:
            A("v_cmp_eq_u32 vcc, 0x800, v13")
            A("s_nop 1")
            A("v_cndmask_b32 v13, v13, v14, vcc")
        A(f"v_lshlrev_b32 v13, 10, v13")
        if u & 1:
            A(f"v_xor_b32 v15, 4, v12")
            A(f"v_lshl_add_u32 v{2+u}, v15, 4, v13")
        else:
            A(f"v_lshl_add_u32 v{2+u}, v12, 4, v13")
    A("v_bfe_u32 v13, v9, 1, 1")
    A("v_lshlrev_b32 v13, 2, v13")
    A("v_xor_b32 v13, v11, v13", "q")
    A("v_lshlrev_b32 v13, 4, v13", "q*16")
    A("s_lshl_b32 s52, s41, 4")
    A("v_add_u32 v15, s52, v9", "k = 16j + a")
    A("s_movk_i32 s53, 3072")
    A("v_mul_lo_u32 v6, v15, s53")
    A("v_add3_u32 v6, v6, v13, s48")
    A("v_mul_lo_u32 v7, v15, s46")
    A("v_add3_u32 v7, v7, v13, s49")
    A("s_lshl_b32 s53, s41, 12", "j*4096")
    A("s_lshl_b32 s54, s41, 11")
    A("s_add_u32 s54, s54, 16384", "16384 + j*2048")
    A("s_mov_b32 s52, 0", "slot base")
    A("s_mov_b32 s55, 0", "x soffset")
    A("s_mov_b32 s56, 0", "w0 soffset")
    A("s_mov_b32 s57, 0", "w1 soffset")
    A("s_lshl_b32 s58, s46, 3", "8*stride1")
    A("s_lshl_b32 s59, s46, 6", "64*stride1")
    A("s_mov_b32 s62, 0", "cnt")
    A.label("K1_ISSUE")
    A("s_add_u32 s60, s52, s53")
    for u in range(4):
        A(f"s_add_u32 m0, s60, {u*1024}")
        A("s_nop 0")
        A(f"buffer_load_dwordx4 v{2+u}, s[4:7], s55 offen lds")
    A("s_add_u32 s60, s52, s54")
    A("s_mov_b32 m0, s60")
    A("s_add_u32 s61, s56, 24576")
    A("buffer_load_dwordx4 v6, s[8:11], s56 offen lds")
    A("s_add_u32 m0, s60, 1024")
    A("s_nop 0")
    A("buffer_load_dwordx4 v6, s[8:11], s61 offen lds")
    A("s_add_u32 m0, s60, 8192")
    A("s_add_u32 s61, s57, s58")
    A("buffer_load_dwordx4 v7, s[12:15], s57 offen lds")
    A("s_add_u32 m0, s60, 9216")
    A("s_nop 0")
    A("buffer_load_dwordx4 v7, s[12:15], s61 offen lds")
    A("s_add_u32 s52, s52, 0x8000")
    A("s_and_b32 s52, s52, 0x1ffff")
    A("s_add_u32 s55, s55, 128")
    A("s_add_u32 s56, s56, 196608")
    A("s_add_u32 s57, s57, s59")
    A("s_add_u32 s62, s62, 1")
    A("s_cmp_lt_u32 s62, 4")
    A("s_cbranch_scc1 K1_ISSUE")
    A("s_cmp_eq_u32 s62, 4")
    A("s_cbranch_scc0 K1_W16")
    ST(1)
    A("s_waitcnt vmcnt(24)")
    A("s_barrier", "#0")
    ST(2)
    A.label("K1_W16")
    A("s_waitcnt vmcnt(16)")
    A("s_barrier")
    A("s_cmp_lt_u32 s62, 8")
    A("s_cbranch_scc1 K1_ISSUE")
    A("s_waitcnt vmcnt(8)")
    A("s_barrier", "#6")
    A("s_waitcnt vmcnt(0)")
    A("s_barrier", "#7")
    ST(3)
    A.c("gate z = sum x*w ; alt = sum (-1)^d x   for rows s (v16..19) and mirror (v20..23)")
    for j in range(4):
        A(f"v_lshlrev_b32 v{28+2*j}, 16, v{24+j}", "w lo")
        A(f"v_and_b32 v{29+2*j}, 0xffff0000, v{24+j}", "w hi")
    for row in range(2):
        z = 40 + row; al = 42 + row
        for j in range(4):
            src = 16 + 4*row + j
            A(f"v_lshlrev_b32 v36, 16, v{src}")
            A(f"v_and_b32 v37, 0xffff0000, v{src}")
            if j == 0:
                A(f"v_mul_f32 v{z}, v36, v28")
                A(f"v_sub_f32 v{al}, v36, v37")
            else:
                A(f"v_fmac_f32 v{z}, v36, v{28+2*j}")
                A(f"v_add_f32 v{al}, v{al}, v36")
                A(f"v_sub_f32 v{al}, v{al}, v37")
            A(f"v_fmac_f32 v{z}, v37, v{29+2*j}")
    A("s_nop 1")
    for dpp in ["quad_perm:[1,0,3,2] row_mask:0xf bank_mask:0xf", "quad_perm:[2,3,0,1] row_mask:0xf bank_mask:0xf",
                "row_half_mirror row_mask:0xf bank_mask:0xf", "row_mirror row_mask:0xf bank_mask:0xf",
                "row_bcast:15 row_mask:0xa bank_mask:0xf", "row_bcast:31 row_mask:0xc bank_mask:0xf"]:
        for r in range(40, 44):
            A(f"v_add_f32_dpp v{r}, v{r}, v{r} {dpp}")
    A("s_nop 1")
    A("s_mov_b32 exec_lo, 0")
    A("s_mov_b32 exec_hi, 0x80000000", "lane 63 holds the totals")
    nl2e = f2u(-math.log2(math.e))
    for row in range(2):
        A(f"v_mul_f32 v{40+row}, {hex(nl2e)}, v{40+row}")
        A(f"v_exp_f32 v{40+row}, v{40+row}")
        A("s_nop 0")
        A(f"v_add_f32 v{40+row}, 1.0, v{40+row}")
        A(f"v_rcp_f32 v{40+row}, v{40+row}")
    A("s_lshl_b32 s52, s50, 2")
    A("s_lshl_b32 s53, s51, 2")
    A(f"s_add_u32 s52, s52, {hex(WS_G)}")
    A(f"s_add_u32 s53, s53, {hex(WS_G)}")
    A("v_mov_b32 v8, 0")
    A("buffer_store_dword v40, v8, s[16:19], s52 offen")
    A("buffer_store_dword v41, v8, s[16:19], s53 offen")
    A.c("A'256[s] = alt(s) + alt(mirror)  (s >= 1);  s == 0: A'256[0] = alt(0), A1024[256] = alt(1024)")
    A("s_cmp_eq_u32 s50, 0")
    A("s_cbranch_scc0 K1_G2")
    A(f"s_mov_b32 s52, {hex(WS_A1024 + 256*4)}")
    A("buffer_store_dword v43, v8, s[16:19], s52 offen")
    A("s_nop 1")
    A("v_mov_b32 v43, 0")
    A.label("K1_G2")
    A("v_add_f32 v42, v42, v43")
    A("s_lshr_b32 s52, s50, 4")
    A("s_lshl_b32 s52, s52, 10", "ks*1024")
    A("s_bfe_u32 s53, s50, 0x10003", "(s>>3)&1")
    A("s_lshl_b32 s53, s53, 9")
    A("s_add_u32 s52, s52, s53")
    A("s_and_b32 s53, s50, 7")
    A("s_lshl_b32 s53, s53, 1")
    A("s_add_u32 s52, s52, s53")
    A(f"s_add_u32 s52, s52, {hex(WS_AP + 8*65536)}")
    A("v_cvt_pk_bf16_f32 v42, v42, v42")
    A("buffer_store_short v42, v8, s[16:19], s52 offen")
    ST(4)
    ST(5)
    ST.dump(6)
    A.label("K1_END")
    if opts.get("rt"): A("s_waitcnt vmcnt(0)")
    rt_stamp(A, 0, 1, opts.get("rt"))
    A("s_endpgm")
    return name, 128, (96 if (opts.get('stamps') or opts.get('rt')) else 66)
```

```python
from common import *

LDS_V = 65536
LDS_F = 131072
LDS_CNT = LDS_F + 24576
K2_LDS = LDS_CNT + 64

def gen_k2(A, opts=None):
    opts = opts or {}
    name = "k2_attn_kernel"
    kernel_header(A, name)
    A.c("K2: attention (8 waves) + K/V loaders & FNet sequence-DFT stage (4 waves).  256 WGs x 768 threads")
    A("s_cmp_ge_u32 s2, 256")
    A("s_cbranch_scc1 K2_END")
    rt_stamp(A, 1, 0, opts.get("rt"))
    A("s_load_dwordx4 s[24:27], s[0:1], 32", "seq_re, seq_im")
    A("s_load_dwordx2 s[34:35], s[0:1], 88", "ws")
    A("v_lshrrev_b32 v1, 6, v0")
    A("v_and_b32 v0, 63, v0", "lane")
    A("v_readfirstlane_b32 s36, v1", "wave id")
    A("s_and_b32 s37, s2, 7", "x_")
    A("s_lshr_b32 s38, s2, 3", "r")
    A("s_and_b32 s39, s38, 3")
    A("s_lshl_b32 s40, s37, 2")
    A("s_add_u32 s40, s40, s39", "head = 4x_ + (r&3)   (also FNet t-block i)")
    A("s_lshr_b32 s41, s38, 2", "qb (also FNet e-block)")
    A("s_waitcnt lgkmcnt(0)")
    srd(A, 4, 34, WS_SIZE)
    ST = Stamps(A, opts.get("stamps"), 1, 4, 36)
    ST(0)
    if opts.get("clk"): clk_stamp(A, 12)
    A("s_cmp_ge_u32 s36, 8")
    A("s_cbranch_scc1 K2_FNET")

    Q, KF, V0, V1, P, SA, SB, O, CN = 4, 8, 12, 16, 20, 32, 48, 64, 80
    A("s_lshl_b32 s42, s41, 3")
    A("s_add_u32 s42, s42, s36", "q tile")
    A("s_lshl_b32 s43, s40, 16")
    A("s_lshl_b32 s44, s42, 10")
    A("s_add_u32 s43, s43, s44", "head*65536 + tile*1024")
    A("v_lshlrev_b32 v2, 4, v0", "lane*16 : K address / Q,O offset")
    A(f"s_add_u32 s45, s43, {hex(WS_Q)}" if WS_Q else "s_mov_b32 s45, s43")
    A(f"buffer_load_dwordx4 {vr(Q,4)}, v2, s[4:7], s45 offen")
    A("v_mov_b32 v1, v2", "keep lane*16")
    A("v_lshrrev_b32 v3, 5, v0")
    A("v_lshlrev_b32 v3, 8, v3", "h*256")
    A("v_and_b32 v28, 15, v0")
    A("v_lshl_add_u32 v3, v28, 4, v3")
    A(f"v_add_u32 v3, {LDS_V}, v3", "V address")
    for r in range(16): A(f"v_mov_b32 v{O+r}, 0")
    for r in range(4, 8): A(f"v_mov_b32 v{P+r}, 0")
    for r in range(8): A(f"v_mov_b32 v{V0+r}, 0x3f803f80", "ones rows (lanes 16-31, 48-63 keep them)")
    A("s_mov_b32 s46, 0x0000ffff")
    A("s_mov_b32 s47, 0x0000ffff", "exec mask for V fragment loads")
    A("s_mov_b32 s48, 0", "iteration")
    A("s_barrier", "#0: chunk 0 of K/V landed")
    ST(1)
    A(f"ds_read_b128 {vr(KF,4)}, v2")
    A("s_waitcnt vmcnt(0) lgkmcnt(0)")
    A(f"v_mfma_f32_32x32x16_bf16 {vr(SA,16)}, {vr(KF,4)}, {vr(Q,4)}, 0")
    A(f"ds_read_b128 {vr(KF,4)}, v2 offset:1024")
    A("s_mov_b64 exec, s[46:47]")
    A(f"ds_read_b128 {vr(V0,4)}, v3")
    A("s_mov_b64 exec, -1")
    A("s_waitcnt lgkmcnt(0)")
    A("s_nop 7")
    A.raw(".p2align 6")
    A.label("K2_LOOP")
    UN = 4
    for u in range(UN):
        S = SA if u % 2 == 0 else SB
        Sn = SB if u % 2 == 0 else SA
        e = lambda j: A(f"v_exp_f32 v{S+j}, v{S+j}")
        cv = lambda j: A(f"v_cvt_pk_bf16_f32 v{P+j}, v{S+2*j}, v{S+2*j+1}")
        if u == 2:
            A("s_and_b32 s49, s48, 29")
            A("s_cmp_eq_u32 s49, 0", "iterations 0 and 2")
            A("s_cbranch_scc0 K2_NOBAR")
            A("s_barrier", "#1 (tiles 4..19 landed) / #2 (all landed)")
            A.label("K2_NOBAR")
        A("s_waitcnt lgkmcnt(2)")
        A(f"v_mfma_f32_32x32x16_bf16 {vr(Sn,16)}, {vr(KF,4)}, {vr(Q,4)}, 0")
        A(f"ds_read_b128 {vr(KF,4)}, v2 offset:{(u+2)*1024}")
        e(0); e(1); e(2); e(3); cv(0); cv(1)
        A("s_waitcnt lgkmcnt(2)")
        A(f"v_mfma_f32_32x32x16_bf16 {vr(O,16)}, {vr(V1,4)}, {vr(P+4,4)}, {vr(O,16)}")
        if not opts.get("nomask"): A("s_mov_b64 exec, s[46:47]")
        A(f"ds_read_b128 {vr(V1,4)}, v3 offset:{u*1024+512}")
        if not opts.get("nomask"): A("s_mov_b64 exec, -1")
        e(4); e(5); e(6); e(7); cv(2); cv(3); e(8); e(9)
        A("s_waitcnt lgkmcnt(2)")
        A(f"v_mfma_f32_32x32x16_bf16 {vr(O,16)}, {vr(V0,4)}, {vr(P,4)}, {vr(O,16)}")
        if not opts.get("nomask"): A("s_mov_b64 exec, s[46:47]")
        A(f"ds_read_b128 {vr(V0,4)}, v3 offset:{(u+1)*1024}")
        if not opts.get("nomask"): A("s_mov_b64 exec, -1")
        e(10); e(11); cv(4); e(12); e(13); cv(5); e(14); e(15); cv(6); cv(7)
    A(f"v_add_u32 v2, {UN*1024}, v2")
    A(f"v_add_u32 v3, {UN*1024}, v3")
    A("s_add_u32 s48, s48, 1")
    A(f"s_cmp_lt_u32 s48, {64//UN}")
    A("s_cbranch_scc1 K2_LOOP")
    A("s_waitcnt lgkmcnt(0)")
    ST(2)
    A(f"v_mfma_f32_32x32x16_bf16 {vr(O,16)}, {vr(V1,4)}, {vr(P+4,4)}, {vr(O,16)}")
    A("s_nop 15")
    A.c("rows 16..31 of O^T hold the row sum l (ones rows of the V operand)")
    def normalize():
        A(f"v_rcp_f32 v28, v{O+8}")
        A("s_nop 0")
        for r in range(8): A(f"v_mul_f32 v{O+r}, v{O+r}, v28")
    A(f"v_mov_b32 v29, v{O+8}", "l")
    normalize()
    A.c("run-time guard: the unshifted exponentials are exact as long as l is far from the fp32 range limits and O is finite;")
    A.c("otherwise this tile is recomputed with the true row max subtracted")
    A(f"v_add_f32 v30, abs(v{O}), abs(v{O+1})")
    for r in range(2, 8): A(f"v_add_f32 v30, v30, abs(v{O+r})")
    A(f"v_cmp_nle_f32 vcc, {hex(f2u(2.0**-60))}, v29", "!(2^-60 <= l)")
    A(f"s_mov_b32 s50, {hex(f2u(2.0**60))}")
    A(f"v_cmp_nle_f32 s[52:53], v29, s50", "!(l <= 2^60)")
    A(f"s_mov_b32 s50, {hex(f2u(2.0**126))}")
    A(f"v_cmp_nle_f32 s[54:55], v30, s50", "O not finite")
    A("s_nop 4")
    A("s_or_b64 vcc, vcc, s[52:53]")
    A("s_or_b64 vcc, vcc, s[54:55]")
    if opts.get("force_fallback"):
        A("s_mov_b64 vcc, -1")
    A("s_cmp_lg_u64 vcc, 0")
    A("s_cbranch_scc1 K2_FALLBACK")
    A.label("K2_STORE")
    for j in range(4): A(f"v_cvt_pk_bf16_f32 v{P+j}, v{O+2*j}, v{O+2*j+1}")
    A(f"s_add_u32 s45, s43, {hex(WS_O)}")
    A(f"buffer_store_dwordx4 {vr(P,4)}, v1, s[4:7], s45 offen")
    ST(3)
    if opts.get("clk"): clk_stamp(A, 14)
    ST.dump(4)
    if opts.get("rt"): A("s_waitcnt vmcnt(0)")
    rt_stamp(A, 1, 1, opts.get("rt"))
    A("s_endpgm")

    A.label("K2_FALLBACK")
    A("v_mov_b32 v2, v1")
    A("v_mov_b32 v29, 0xff800000", "running max = -inf")
    A("s_mov_b32 s48, 0")
    A.label("K2_FB1")
    A(f"ds_read_b128 {vr(KF,4)}, v2")
    A("s_waitcnt lgkmcnt(0)")
    A(f"v_mfma_f32_32x32x16_bf16 {vr(SA,16)}, {vr(KF,4)}, {vr(Q,4)}, 0")
    A("s_nop 15")
    for r in range(0, 16, 2): A(f"v_max3_f32 v29, v{SA+r}, v{SA+r+1}, v29")
    A("v_add_u32 v2, 1024, v2")
    A("s_add_u32 s48, s48, 1")
    A("s_cmp_lt_u32 s48, 64")
    A("s_cbranch_scc1 K2_FB1")
    A("v_mov_b32 v30, v29")
    A("s_nop 1")
    A("v_permlane32_swap_b32 v30, v29")
    A("s_nop 1")
    A("v_max_f32 v29, v29, v30", "row max over both key halves")
    for r in range(16): A(f"v_sub_f32 v{CN+r}, 0, v29")
    for r in range(16): A(f"v_mov_b32 v{O+r}, 0")
    A("v_mov_b32 v2, v1")
    A("v_lshrrev_b32 v3, 5, v0")
    A("v_lshlrev_b32 v3, 8, v3")
    A("v_and_b32 v28, 15, v0")
    A("v_lshl_add_u32 v3, v28, 4, v3")
    A(f"v_add_u32 v3, {LDS_V}, v3")
    A("s_mov_b32 s48, 0")
    A.label("K2_FB2")
    A(f"ds_read_b128 {vr(KF,4)}, v2")
    A("s_mov_b64 exec, s[46:47]")
    A(f"ds_read_b128 {vr(V0,4)}, v3")
    A(f"ds_read_b128 {vr(V1,4)}, v3 offset:512")
    A("s_mov_b64 exec, -1")
    A("s_waitcnt lgkmcnt(0)")
    A(f"v_mfma_f32_32x32x16_bf16 {vr(SA,16)}, {vr(KF,4)}, {vr(Q,4)}, {vr(CN,16)}")
    A("s_nop 15")
    for r in range(16): A(f"v_exp_f32 v{SA+r}, v{SA+r}")
    A("s_nop 0")
    for j in range(8): A(f"v_cvt_pk_bf16_f32 v{P+j}, v{SA+2*j}, v{SA+2*j+1}")
    A("s_nop 1")
    A(f"v_mfma_f32_32x32x16_bf16 {vr(O,16)}, {vr(V0,4)}, {vr(P,4)}, {vr(O,16)}")
    A(f"v_mfma_f32_32x32x16_bf16 {vr(O,16)}, {vr(V1,4)}, {vr(P+4,4)}, {vr(O,16)}")
    A("v_add_u32 v2, 1024, v2")
    A("v_add_u32 v3, 1024, v3")
    A("s_add_u32 s48, s48, 1")
    A("s_cmp_lt_u32 s48, 64")
    A("s_cbranch_scc1 K2_FB2")
    A("s_nop 15")
    normalize()
    A("s_branch K2_STORE")

    A.label("K2_FNET")
    if opts.get("fprio", 2): A(f"s_setprio {opts.get('fprio', 2)}")
    A("s_sub_u32 s42, s36, 8", "j")
    A("v_lshlrev_b32 v1, 4, v0", "lane*16")
    A("s_lshl_b32 s43, s40, 16", "head*65536")
    A(f"s_add_u32 s44, s43, {hex(WS_K)}")
    A(f"s_add_u32 s45, s43, {hex(WS_V)}")
    def dma(first_tile_sreg, n, lab):
        A("s_mov_b32 s48, 0")
        A.label(lab)
        A("s_mov_b32 m0, s46")
        A("s_add_u32 s47, s44, s46")
        A("buffer_load_dwordx4 v1, s[4:7], s47 offen lds")
        A(f"s_add_u32 m0, s46, {LDS_V}")
        A("s_add_u32 s47, s45, s46")
        A("buffer_load_dwordx4 v1, s[4:7], s47 offen lds")
        A("s_add_u32 s46, s46, 1024")
        A("s_add_u32 s48, s48, 1")
        A(f"s_cmp_lt_u32 s48, {n}")
        A(f"s_cbranch_scc1 {lab}")
    A.c("chunk 0: tiles 0..3 (tile j); chunk 1: tiles 4..11 (4+2j..); chunk 2: tiles 12..63 (12+13j..)")
    A("s_lshl_b32 s46, s42, 10")
    dma(46, 1, "K2_DMA0")
    A("s_lshl_b32 s46, s42, 11")
    A("s_add_u32 s46, s46, 4096")
    dma(46, 2, "K2_DMA1")
    A("s_waitcnt vmcnt(4)")
    A("s_barrier", "#0")
    ST(1)
    A("s_mul_i32 s46, s42, 13312")
    A("s_add_u32 s46, s46, 12288")
    dma(46, 13, "K2_DMA2")
    A.c("zero the job counters")
    A("v_mov_b32 v4, 0")
    A("v_mov_b32 v5, 0")
    A(f"v_mov_b32 v2, {LDS_CNT}")
    A("ds_write_b64 v2, v[4:5]")
    A("s_waitcnt vmcnt(26) lgkmcnt(0)")
    A("s_barrier", "#1")
    ST(2)

    FR = 8
    E = 136
    NS = 16
    def job_setup(ti, ej, first):
        A(f"s_lshl_b32 s56, s{ti}, 5")
        A("v_and_b32 v2, 31, v0")
        A("v_add_u32 v3, s56, v2", "t = 32 i + (l&31)")
        A("v_lshlrev_b32 v2, 12, v3")
        A("v_lshrrev_b32 v4, 5, v0")
        A("v_lshl_add_u32 v2, v4, 4, v2", "t*4096 + h*16")
        if first:
            A.c("wave j: chain = j>>1 (0: E = Cr x A', 1: G = Ci x B'), K half = j&1")
            A("s_and_b32 s57, s42, 1")
            A("s_lshl_b32 s57, s57, 5", "ks0 = 32*(j&1)")
            A(f"s_mov_b32 s58, {hex(WS_BP)}")
            A("s_cmp_lt_u32 s42, 2")
            A("s_cselect_b32 s8, s24, s26")
            A("s_cselect_b32 s9, s25, s27")
            A(f"s_cselect_b32 s58, {hex(WS_AP)}, s58")
        else:
            A("s_lshl_b32 s57, s42, 4", "ks0 = 16 j")
            A("s_mov_b32 s8, s24")
            A("s_mov_b32 s9, s25")
            A(f"s_mov_b32 s58, {hex(WS_AP)}")
        A("s_and_b32 s9, s9, 0xffff")
        A("s_mov_b32 s10, 0x800000")
        A("s_mov_b32 s11, 0x20000")
        A(f"s_lshl_b32 s56, s{ej}, 16", "eblk*65536")
        A("s_add_u32 s60, s56, s58")
        A("s_lshl_b32 s56, s57, 10")
        A("s_add_u32 s60, s60, s56", "fragment base + ks0*1024")
        A("s_lshl_b32 s62, s57, 5", "ks0*32")
    def issue(slot, n):
        b = FR + 8*slot
        A(f"s_add_u32 s58, s60, {n*1024}")
        A(f"s_add_u32 s59, s62, {n*32}")
        A(f"buffer_load_dwordx4 {vr(b,4)}, v1, s[4:7], s58 offen")
        A(f"buffer_load_dwordx4 {vr(b+4,4)}, v2, s[8:11], s59 offen")
    def job_run(nsteps, jobidx, ej, tag):
        hasG = nsteps == 32
        for r in range(16): A(f"v_mov_b32 v{E+r}, 0")
        for n in range(nsteps):
            slot = n % NS
            b = FR + 8*slot
            rem_first = nsteps - NS
            cnt = 2*(NS-1) if n < rem_first else 2*(nsteps - 1 - n)
            A(f"s_waitcnt vmcnt({cnt})")
            A(f"v_mfma_f32_32x32x16_bf16 {vr(E,16)}, {vr(b,4)}, {vr(b+4,4)}, {vr(E,16)}")
            if n < rem_first: issue(slot, n + NS)
        A("s_nop 15")
        base = LDS_F + jobidx*12288
        A("s_cmp_eq_u32 s42, 0")
        A(f"s_cbranch_scc1 K2_COMB{tag}")
        A.c("waves 1..3: publish the partial tile in LDS")
        A("s_lshl_b32 s56, s42, 12")
        A(f"s_add_u32 s56, s56, {base - 4096}")
        A("v_add_u32 v5, s56, v1")
        for m in range(4): A(f"ds_write_b128 v5, {vr(E+4*m,4)} offset:{m*1024}")
        A(f"v_mov_b32 v6, {LDS_CNT + 4*jobidx}")
        A("v_mov_b32 v7, 1")
        A("s_waitcnt lgkmcnt(0)")
        A("s_mov_b64 exec, 1")
        A("ds_add_u32 v6, v7")
        A("s_waitcnt lgkmcnt(0)")
        A("s_mov_b64 exec, -1")
        A(f"s_branch K2_JOBDONE{tag}")
        A.label(f"K2_COMB{tag}")
        A.c("wave 0: wait for the three partials; E += (-1)^t A1024[e];  Ym = E - G, Yp = E + G")
        A("v_lshrrev_b32 v4, 5, v0")
        A("v_lshlrev_b32 v4, 4, v4", "4h*4 bytes")
        A(f"s_lshl_b32 s56, s{ej}, 7", "e0*4")
        A(f"s_add_u32 s57, s56, {hex(WS_A1024)}")
        for m in range(4):
            A(f"buffer_load_dwordx4 {vr(FR+4*m,4)}, v4, s[4:7], s57 offen offset:{m*32}")
        A(f"v_mov_b32 v6, {LDS_CNT + 4*jobidx}")
        A.label(f"K2_SPIN{tag}")
        A("ds_read_b32 v7, v6")
        A("s_waitcnt lgkmcnt(0)")
        A("v_readfirstlane_b32 s57, v7")
        A("s_cmp_eq_u32 s57, 3")
        A(f"s_cbranch_scc1 K2_GO{tag}")
        A("s_sleep 4")
        A(f"s_branch K2_SPIN{tag}")
        A.label(f"K2_GO{tag}")
        A(f"v_add_u32 v5, {base}, v1")
        for p in range(3):
            for m in range(4):
                A(f"ds_read_b128 {vr(FR+16+16*p+4*m,4)}, v5 offset:{p*4096 + m*1024}")
        A("v_and_b32 v6, 1, v0")
        A("v_lshlrev_b32 v6, 31, v6")
        A("v_or_b32 v6, 1.0, v6", "(-1)^t")
        A(f"s_movk_i32 s58, {YSB}")
        A("v_mul_lo_u32 v7, v3, s58")
        A("v_add_u32 v7, v7, v4", "t*YSB + 4h*4")
        A("s_waitcnt vmcnt(0) lgkmcnt(0)")
        P1, P2, P3 = FR+16, FR+32, FR+48
        for r in range(16): A(f"v_fmac_f32 v{E+r}, v6, v{FR+r}")
        for r in range(16): A(f"v_add_f32 v{E+r}, v{E+r}, v{P1+r}")
        for r in range(16): A(f"v_add_f32 v{P2+r}, v{P2+r}, v{P3+r}")
        if hasG:
            for r in range(16):
                A(f"v_sub_f32 v{P1+r}, v{E+r}, v{P2+r}")
                A(f"v_add_f32 v{P3+r}, v{E+r}, v{P2+r}")
            ym, yp = P1, P3
        else:
            for r in range(16): A(f"v_add_f32 v{E+r}, v{E+r}, v{P2+r}")
            ym, yp = E, E
        A(f"s_add_u32 s57, s56, {hex(WS_YM)}")
        A(f"s_add_u32 s58, s56, {hex(WS_YP)}")
        for m in range(4):
            A(f"buffer_store_dwordx4 {vr(ym+4*m,4)}, v7, s[4:7], s57 offen offset:{m*32}")
            A(f"buffer_store_dwordx4 {vr(yp+4*m,4)}, v7, s[4:7], s58 offen offset:{m*32}")
        A.label(f"K2_JOBDONE{tag}")

    if opts.get("nofnet"):
        A("s_waitcnt vmcnt(0) lgkmcnt(0)")
        A("s_barrier")
        A("s_endpgm")
    job_setup(40, 41, True)
    A("s_waitcnt vmcnt(0)")
    A("s_barrier", "#2: all of K/V landed")
    ST(3)
    for n in range(NS): issue(n, n)
    job_run(32, 0, 41, "A")
    ST(4)
    A.c("extra E-only jobs: row t=1024 (t-block 32) and column e=256 (e-block 8), on workgroups 0..40")
    A("s_cmp_ge_u32 s2, 41")
    A("s_cbranch_scc1 K2_FEND")
    A("s_sub_u32 s64, s2, 32")
    A("s_cmp_lt_u32 s2, 32")
    A("s_cselect_b32 s63, s2, 32", "t-block")
    A("s_cselect_b32 s64, 8, s64", "e-block")
    A("s_waitcnt vmcnt(0)")
    job_setup(63, 64, False)
    for n in range(NS): issue(n, n)
    job_run(16, 1, 64, "B")
    A.label("K2_FEND")
    ST(5)
    ST.dump(6)
    A.label("K2_END")
    if opts.get("rt"): A("s_waitcnt vmcnt(0)")
    rt_stamp(A, 1, 1, opts.get("rt"))
    A("s_endpgm")
    return name, 168, (96 if (opts.get('stamps') or opts.get('rt') or opts.get('clk')) else 66)
```

```python
from common import *

K3_LDS = 131072
def gen_k3(A, opts=None):
    opts = opts or {}
    name = "k3_out_kernel"
    kernel_header(A, name)
    A.c("K3: out = g * (O @ Wo) + (1-g) * Y.   256 WGs x 512 threads (4 compute + 4 loader waves)")
    A("s_cmp_ge_u32 s2, 256")
    A("s_cbranch_scc1 K3_END")
    rt_stamp(A, 2, 0, opts.get("rt"))
    A("s_load_dwordx2 s[24:25], s[0:1], 16", "wo")
    A("s_load_dwordx2 s[26:27], s[0:1], 72", "out")
    A("s_load_dwordx2 s[34:35], s[0:1], 88", "ws")
    A("v_lshrrev_b32 v1, 6, v0")
    A("v_and_b32 v0, 63, v0", "lane")
    A("v_readfirstlane_b32 s36, v1", "wave id")
    A("s_and_b32 s37, s2, 7", "x_")
    A("s_lshr_b32 s38, s2, 3", "r")
    A("s_and_b32 s39, s38, 3")
    A("s_lshl_b32 s40, s37, 2")
    A("s_add_u32 s40, s40, s39", "qp = 4x_ + (r&3)")
    A("s_lshr_b32 s41, s38, 2", "nb")
    A("s_waitcnt lgkmcnt(0)")
    srd(A, 4, 34, WS_SIZE)
    ST = Stamps(A, opts.get("stamps"), 2, 4, 36)
    ST(0)
    A("s_cmp_ge_u32 s36, 4")
    A("s_cbranch_scc1 K3_LOADER")

    srd(A, 8, 26, 0x200000)
    A("s_lshr_b32 s42, s36, 1", "qt (= rt: 0 rows s, 1 mirrored rows)")
    A("s_and_b32 s43, s36, 1", "nt")
    A.c("row of this lane: s = 32 qp + pi(i);  row = qt ? mirror(s) : s ;  t' = (row==1024) ? 1024 : s")
    A("v_and_b32 v8, 31, v0", "i")
    A("v_and_b32 v9, 19, v8", "bits 4,1,0")
    A("v_bfe_u32 v10, v8, 2, 1")
    A("v_lshl_or_b32 v9, v10, 3, v9")
    A("v_bfe_u32 v10, v8, 3, 1")
    A("v_lshl_or_b32 v9, v10, 2, v9", "pi(i)")
    A("s_lshl_b32 s44, s40, 5")
    A("v_add_u32 v9, s44, v9", "s")
    A("v_sub_u32 v10, 0x800, v9")
    A("v_mov_b32 v11, 0x400")
    A("v_cmp_eq_u32 vcc, 0, v9")
    A("s_cmp_eq_u32 s42, 1")
    A("s_cselect_b64 s[46:47], -1, 0")
    A("v_cndmask_b32 v10, v10, v11, vcc", "mirror(s)")
    A("v_cndmask_b32 v11, v9, v11, vcc", "t' for mirrored rows")
    A("v_cndmask_b32 v12, v9, v10, s[46:47]", "row")
    A("v_cndmask_b32 v13, v9, v11, s[46:47]", "t'")
    A("v_lshrrev_b32 v14, 5, v0", "h")
    A.c("g[row]")
    A("v_lshlrev_b32 v15, 2, v12")
    A(f"s_mov_b32 s48, {hex(WS_G)}")
    A("buffer_load_dword v32, v15, s[4:7], s48 offen")
    A.c("Y: base = ((qt ^ (nb>=4)) ? YP : YM) + t'*YSB ;  n0 = 64nb + 32nt + 16h")
    A("s_lshl_b32 s49, s41, 6")
    A("s_lshl_b32 s50, s43, 5")
    A("s_add_u32 s49, s49, s50", "64nb + 32nt")
    A("s_lshr_b32 s50, s41, 2", "nb>=4")
    A("s_xor_b32 s51, s50, s42")
    A(f"s_mov_b32 s52, {hex(WS_YP)}")
    A("s_cmp_eq_u32 s51, 0")
    A(f"s_cselect_b32 s52, {hex(WS_YM)}, s52")
    A(f"s_movk_i32 s53, {YSB}")
    A("v_mul_lo_u32 v15, v13, s53", "t'*YSB")
    A("v_lshlrev_b32 v16, 4, v14", "16h")
    A("v_add_u32 v16, s49, v16", "n0")
    A("v_sub_u32 v17, 497, v16", "512 - n0 - 15")
    A("s_cmp_eq_u32 s50, 1")
    A("s_cselect_b64 s[54:55], -1, 0")
    A("v_cndmask_b32 v17, v16, v17, s[54:55]", "first e'")
    A("v_lshl_add_u32 v15, v17, 2, v15")
    for m in range(4):
        A(f"buffer_load_dwordx4 {vr(36+4*m,4)}, v15, s[4:7], s52 offen offset:{16*m}")
    A.c("output offset: row*1024 + n0*2")
    A("v_lshlrev_b32 v18, 10, v12")
    A("v_lshl_add_u32 v18, v16, 1, v18")
    A.c("O' fragment address: (head*2 + qt)*1024 + lane*16")
    A("s_lshl_b32 s44, s42, 10")
    A("v_lshlrev_b32 v2, 4, v0")
    A("v_add_u32 v2, s44, v2")
    A.c("Wo^T fragment address (tr reads): k row = 16 hd + 4h + r (+8 for the second read)")
    A("v_bfe_u32 v10, v0, 2, 2", "r")
    A("v_lshl_add_u32 v11, v14, 2, v10", "4h + r")
    A("v_lshlrev_b32 v11, 7, v11", "*128")
    A.c("column = 32nt + 16*(c4&1) + 8g' + 4*(c4>>1) -> byte = 2*col ; logical piece = col/8 = 4nt + 2(c4&1) + g' ; within piece 8*(c4>>1)")
    A("v_and_b32 v19, 1, v0")
    A("v_lshlrev_b32 v19, 1, v19", "2(c4&1)")
    A("v_bfe_u32 v20, v0, 4, 1", "g'")
    A("v_add_u32 v19, v19, v20")
    A("s_lshl_b32 s44, s43, 2")
    A("v_add_u32 v19, s44, v19", "logical piece")
    A("v_bfe_u32 v20, v0, 3, 1", "(r>>1)&1")
    A("v_lshlrev_b32 v20, 2, v20")
    A("v_xor_b32 v19, v19, v20")
    A("v_lshlrev_b32 v19, 4, v19")
    A("v_bfe_u32 v20, v0, 1, 1", "c4>>1")
    A("v_lshlrev_b32 v20, 3, v20")
    A("v_add3_u32 v3, v11, v19, v20")
    A("v_add_u32 v3, 0x10000, v3", "Wo image at 64 KB")
    ACC = 64
    for r in range(16): A(f"v_mov_b32 v{ACC+r}, 0")
    OF = [4, 20]; WFR = [8, 24]
    def reads(st, hd):
        A(f"ds_read_b128 {vr(OF[st],4)}, v2 offset:{hd*2048}")
        A(f"ds_read_b64_tr_b16 {vr(WFR[st],2)}, v3 offset:{hd*2048}")
        A(f"ds_read_b64_tr_b16 {vr(WFR[st]+2,2)}, v3 offset:{hd*2048+1024}")
    A("s_mov_b32 s45, 0")
    ST(1)
    A.raw(".p2align 6")
    A.label("K3_LOOP")
    A("s_barrier", "chunk landed")
    reads(0, 0)
    for hd in range(8):
        st = hd & 1
        if hd < 7:
            reads(1 - st, hd + 1)
            A("s_waitcnt lgkmcnt(3)")
        else:
            A("s_waitcnt lgkmcnt(0)")
        A(f"v_mfma_f32_32x32x16_bf16 {vr(ACC,16)}, {vr(WFR[st],4)}, {vr(OF[st],4)}, {vr(ACC,16)}")
    A("v_add_u32 v2, 0x4000, v2")
    A("v_add_u32 v3, 0x4000, v3")
    A("s_add_u32 s45, s45, 1")
    A("s_cmp_lt_u32 s45, 4")
    A("s_cbranch_scc1 K3_LOOP")
    ST(2)
    A("s_waitcnt vmcnt(0)")
    ST(3)
    A("v_sub_f32 v33, 1.0, v32", "1-g")
    A("s_cmp_eq_u32 s50, 1")
    A("s_nop 7")
    A("s_cbranch_scc1 K3_EPI_M")
    for r in range(16): A(f"v_mul_f32 v{36+r}, v33, v{36+r}")
    A("s_branch K3_EPI2")
    A.label("K3_EPI_M")
    A.c("mirrored columns: loaded y index idx <-> r = 15 - idx")
    for r in range(8):
        A(f"v_mul_f32 v34, v33, v{36+r}")
        A(f"v_mul_f32 v{36+r}, v33, v{36+15-r}")
        A(f"v_mov_b32 v{36+15-r}, v34")
    A.label("K3_EPI2")
    for r in range(16): A(f"v_fmac_f32 v{36+r}, v32, v{ACC+r}")
    for j in range(8): A(f"v_cvt_pk_bf16_f32 v{52+j}, v{36+2*j}, v{36+2*j+1}")
    A("buffer_store_dwordx4 v[52:55], v18, s[8:11], 0 offen")
    A("buffer_store_dwordx4 v[56:59], v18, s[8:11], 0 offen offset:16")
    ST(4)
    if opts.get("stamps"): A("s_waitcnt vmcnt(0)")
    ST(5)
    ST.dump(6)
    if opts.get("rt"): A("s_waitcnt vmcnt(0)")
    rt_stamp(A, 2, 1, opts.get("rt"))
    A("s_endpgm")

    A.label("K3_LOADER")
    srd(A, 8, 24, 0x80000)
    A("s_sub_u32 s42, s36, 4", "j")
    A("v_lshlrev_b32 v1, 4, v0", "lane*16")
    A.c("per chunk c (8 heads): O' frags (hd = 8c + 2j + {0,1}, qt = {0,1}) -> 4 instr; Wo rows k = 128c + 32j + 8u + a -> 4 instr")
    A("v_lshrrev_b32 v9, 3, v0", "a")
    A("v_and_b32 v11, 7, v0")
    A("v_bfe_u32 v13, v9, 1, 1")
    A("v_lshlrev_b32 v13, 2, v13")
    A("v_xor_b32 v13, v11, v13", "logical piece q")
    A("v_lshlrev_b32 v13, 4, v13")
    A("s_lshl_b32 s44, s42, 5", "32j")
    A("v_add_u32 v9, s44, v9")
    A("v_lshlrev_b32 v9, 10, v9", "(32j + a)*1024")
    A("s_lshl_b32 s45, s41, 7", "64nb*2")
    A("v_add3_u32 v2, v9, v13, s45", "Wo voffset")
    A("s_lshl_b32 s46, s42, 17", "2j*65536")
    A("s_lshl_b32 s47, s40, 11", "2qp*1024")
    A("s_add_u32 s46, s46, s47")
    A(f"s_add_u32 s46, s46, {hex(WS_O)}", "O' soffset for hd = 2j, qt = 0")
    A("s_lshl_b32 s47, s42, 12", "O' LDS: (hd*2+qt)*1024 = 2j*2048")
    A("s_lshl_b32 s48, s42, 12", "Wo LDS: 32j*128")
    A("s_add_u32 s48, s48, 0x10000")
    A("s_mov_b32 s49, 0", "Wo soffset")
    A("s_mov_b32 s50, 0")
    A.label("K3_ISSUE")
    for hh in range(2):
        for qt in range(2):
            A(f"s_add_u32 m0, s47, {hh*2048 + qt*1024}")
            A(f"s_add_u32 s51, s46, {hh*65536 + qt*1024}")
            A("buffer_load_dwordx4 v1, s[4:7], s51 offen lds")
    for u in range(4):
        A(f"s_add_u32 m0, s48, {u*1024}")
        A(f"s_add_u32 s51, s49, {u*8192}")
        A("buffer_load_dwordx4 v2, s[8:11], s51 offen lds")
    A("s_add_u32 s46, s46, 0x80000", "8 heads")
    A("s_add_u32 s47, s47, 0x4000")
    A("s_add_u32 s48, s48, 0x4000")
    A("s_add_u32 s49, s49, 0x20000", "128 rows")
    A("s_add_u32 s50, s50, 1")
    A("s_cmp_lt_u32 s50, 4")
    A("s_cbranch_scc1 K3_ISSUE")
    ST(1)
    for c in range(4):
        A(f"s_waitcnt vmcnt({24 - 8*c})")
        A("s_barrier")
        ST(2+c)
    ST.dump(6)
    A.label("K3_END")
    if opts.get("rt"): A("s_waitcnt vmcnt(0)")
    rt_stamp(A, 2, 1, opts.get("rt"))
    A("s_endpgm")
    return name, 80, (96 if (opts.get('stamps') or opts.get('rt')) else 58)
```

```python
import sys
from common import *
from k1 import gen_k1
from k2 import gen_k2, K2_LDS
from k3 import gen_k3, K3_LDS

HEADER = """; Kernarg layout for this problem (96 bytes, ptrs only, base s[0:1]):
"""
def build(opts=None):
    opts = opts or {}
    A = Asm()
    ks = []
    for g in (lambda a: gen_k1(a, opts), lambda a: gen_k2(a, opts), lambda a: gen_k3(a, opts)):
        ks.append(g(A))
        A.raw("")
    out = HEADER
    out += f"; @launch kernel={ks[0][0]} grid=(256,1,1) block=(512,1,1) lds=131072\n"
    out += f"; @launch kernel={ks[1][0]} grid=(256,1,1) block=(768,1,1) lds={K2_LDS}\n"
    out += f"; @launch kernel={ks[2][0]} grid=(256,1,1) block=(512,1,1) lds={K3_LDS}\n"
    out += '.amdgcn_target "amdgcn-amd-amdhsa--gfx950"\n.text\n'
    out += A.text()
    for n, v, s in ks:
        out += kernel_desc(n, v, s)
    return out
if __name__ == "__main__":
    path = sys.argv[1] if len(sys.argv) > 1 else f"cdna_kernels/{NAME}.s"
    opts = {}
    for a in sys.argv[2:]:
        k, _, v = a.partition("=")
        opts[k] = int(v) if v else 1
    open(path, "w").write(build(opts))
    print("wrote", path)
```

```python
import math

WS_Q     = 0x000000
WS_K     = 0x200000
WS_V     = 0x400000
WS_AP    = 0x600000
WS_BP    = 0x6A0000
WS_A1024 = 0x720000
WS_G     = 0x721000
WS_O     = 0x800000
WS_YM    = 0xA00000
WS_YP    = 0xC00000
WS_SIZE  = 0x1000000
YS       = 288
YSB      = YS*4

NAME = "gated_mix__softmax_full_mha__spectral_fnet__prompt"

class Asm:
    def __init__(self):
        self.lines = []
        self.nlab = 0
    def __call__(self, s, comment=None):
        if comment: s = f"{s:<72}; {comment}"
        self.lines.append("    " + s)
    def label(self, name):
        self.lines.append(f"{name}:")
    def c(self, s):
        self.lines.append(f"    ; {s}")
    def raw(self, s):
        self.lines.append(s)
    def newlabel(self, base):
        self.nlab += 1
        return f"{base}_{self.nlab}"
    def text(self):
        return "\n".join(self.lines) + "\n"

def vr(a, n=1):
    return f"v{a}" if n == 1 else f"v[{a}:{a+n-1}]"
def sr(a, n=1):
    return f"s{a}" if n == 1 else f"s[{a}:{a+n-1}]"

def srd(A, dst, ptr, size):
    A(f"s_mov_b32 s{dst}, s{ptr}")
    A(f"s_and_b32 s{dst+1}, s{ptr+1}, 0xffff")
    A(f"s_mov_b32 s{dst+2}, {hex(size)}")
    A(f"s_mov_b32 s{dst+3}, 0x20000")

def kernel_header(A, name):
    A.raw(f".globl {name}")
    A.raw(".p2align 8")
    A.raw(f".type {name},@function")
    A.raw(f"{name}:")

def kernel_desc(name, vgpr, sgpr):
    acc = (vgpr + 3)//4*4
    return f""".section .rodata,"a"
.p2align 6
.amdhsa_kernel {name}
  .amdhsa_next_free_vgpr {vgpr}
  .amdhsa_next_free_sgpr {sgpr}
  .amdhsa_accum_offset {acc}
  .amdhsa_group_segment_fixed_size 0
  .amdhsa_kernarg_size 96
  .amdhsa_user_sgpr_count 2
  .amdhsa_user_sgpr_kernarg_segment_ptr 1
  .amdhsa_system_sgpr_workgroup_id_x 1
.end_amdhsa_kernel
.text
"""
def f2u(x):
    import struct
    return struct.unpack("<I", struct.pack("<f", x))[0]

WS_STAMP = 0xE00000
class Stamps:
    def __init__(self, A, on, kidx, srd_ws, swave):
        self.A, self.on, self.k, self.srd, self.sw = A, on, kidx, srd_ws, swave
    def __call__(self, i):
        if not self.on: return
        A = self.A
        A("s_memtime s[70:71]")
        A("s_waitcnt lgkmcnt(0)")
        A(f"s_mov_b32 s{72+i}, s70")
    def dump(self, n):
        if not self.on: return
        A = self.A
        A("s_mov_b64 exec, 1")
        A("s_lshl_b32 s70, s2, 4")
        A(f"s_add_u32 s70, s70, s{self.sw}")
        A("s_lshl_b32 s70, s70, 6")
        A(f"s_add_u32 s70, s70, {hex(WS_STAMP + self.k*0x40000)}")
        A("v_mov_b32 v8, 0")
        for i in range(n):
            A(f"v_mov_b32 v9, s{72+i}")
            A(f"buffer_store_dword v9, v8, s[{self.srd}:{self.srd+3}], s70 offen offset:{i*4}")
            A("s_nop 1")
        A("s_waitcnt vmcnt(0)")

def rt_stamp(A, kidx, which, on):
    if not on: return
    lab = A.newlabel("RT")
    A("s_and_b32 s94, s2, 255")
    A("s_cmp_eq_u32 s94, 0")
    A("s_cselect_b32 s95, 1, 0")
    A("s_cmp_eq_u32 s2, 255")
    A("s_cselect_b32 s94, 1, 0")
    A("s_or_b32 s95, s95, s94")
    A("s_cmp_eq_u32 s95, 0")
    A(f"s_cbranch_scc1 {lab}")
    A("s_cmp_ge_u32 s2, 256")
    A(f"s_cbranch_scc1 {lab}")
    A("s_load_dwordx2 s[88:89], s[0:1], 80")
    A("s_memrealtime s[90:91]")
    A("s_waitcnt lgkmcnt(0)")
    if on == 3:
        A(f"s_add_u32 s88, s88, {512*(2-kidx)}")
        A("s_addc_u32 s89, s89, 0")
    if which == 0: A("s_not_b32 s90, s90")
    A("s_lshl_b32 s94, s94, 2")
    A(f"s_add_u32 s94, s94, {(kidx*4 + which*2)*4}")
    A("s_mov_b64 s[92:93], exec")
    A("s_mov_b64 exec, 1")
    A("v_mov_b32 v62, s90")
    A(f"v_mov_b32 v63, s94")
    A("global_atomic_umax v63, v62, s[88:89]")
    A("s_mov_b64 exec, s[92:93]")
    A.label(lab)

def clk_stamp(A, slot):
    lab = A.newlabel("CK")
    A("s_cmp_eq_u32 s2, 0")
    A(f"s_cbranch_scc0 {lab}")
    A("s_cmp_eq_u32 s36, 4")
    A(f"s_cbranch_scc0 {lab}")
    A("s_load_dwordx2 s[88:89], s[0:1], 80")
    A("s_memrealtime s[90:91]")
    A("s_memtime s[92:93]")
    A("s_waitcnt lgkmcnt(0)")
    A("s_add_u32 s88, s88, 512")
    A("s_addc_u32 s89, s89, 0")
    A("s_mov_b64 s[94:95], exec")
    A("s_mov_b64 exec, 1")
    A("v_mov_b32 v62, s90")
    A("v_mov_b32 v63, s92")
    A(f"v_mov_b32 v61, {slot*4}")
    A("global_store_dwordx2 v61, v[62:63], s[88:89]")
    A("s_waitcnt vmcnt(0)")
    A("s_mov_b64 exec, s[94:95]")
    A.label(lab)
```

```python
import sys
from common import *
from k1 import gen_k1
from k2 import gen_k2, K2_LDS
from k3 import gen_k3, K3_LDS

HEADER = """; Kernarg layout for this problem (96 bytes, ptrs only, base s[0:1]):
"""
def build(opts=None):
    opts = opts or {}
    A = Asm()
    ks = []
    for g in (lambda a: gen_k1(a, opts), lambda a: gen_k2(a, opts), lambda a: gen_k3(a, opts)):
        ks.append(g(A))
        A.raw("")
    if opts.get("empty"):
        kernel_header(A, "noop_kernel")
        A("s_endpgm")
        ks.append(("noop_kernel", 8, 16))
    out = HEADER
    noop = "; @launch kernel=noop_kernel grid=(1,1,1) block=(64,1,1) lds=0\n"
    em = opts.get("empty", 0)
    if em == 3: out += noop + noop
    out += f"; @launch kernel={ks[0][0]} grid=(256,1,1) block=(512,1,1) lds=163840\n"
    if opts.get("k1twice"): out += f"; @launch kernel={ks[0][0]} grid=(256,1,1) block=(512,1,1) lds=163840\n"
    if em == 1: out += noop
    out += f"; @launch kernel={ks[1][0]} grid=(256,1,1) block=(768,1,1) lds={K2_LDS}\n"
    out += f"; @launch kernel={ks[2][0]} grid=(256,1,1) block=(512,1,1) lds={K3_LDS}\n"
    if em == 2: out += noop
    if em == 4: out += noop*4
    out += '.amdgcn_target "amdgcn-amd-amdhsa--gfx950"\n.text\n'
    out += A.text()
    for n, v, s in ks:
        out += kernel_desc(n, v, s)
    return out
if __name__ == "__main__":
    path = sys.argv[1] if len(sys.argv) > 1 else f"cdna_kernels/{NAME}.s"
    opts = {}
    for a in sys.argv[2:]:
        k, _, v = a.partition("=")
        opts[k] = int(v) if v else 1
    open(path, "w").write(build(opts))
    print("wrote", path)
```

```python
from common import *

def gen_k1(A, opts=None):
    opts = opts or {}
    name = "k1_proj_kernel"
    kernel_header(A, name)
    A.c("K1: QKV projection + FNet hidden-DFT stage (folded over s) + gate.  256 WGs x 512 threads")
    A("s_cmp_ge_u32 s2, 256")
    A("s_cbranch_scc1 K1_END")
    rt_stamp(A, 0, 0, opts.get("rt"))
    A("s_load_dwordx4 s[24:27], s[0:1], 0", "x, wqkv")
    A("s_load_dwordx4 s[28:31], s[0:1], 48", "hid_re, hid_im")
    A("s_load_dwordx2 s[32:33], s[0:1], 64", "gate_w")
    A("s_load_dwordx2 s[34:35], s[0:1], 88", "ws")
    A("v_lshrrev_b32 v1, 6, v0")
    A("v_and_b32 v0, 63, v0", "lane")
    A("v_readfirstlane_b32 s36, v1", "wave id")
    if opts.get("map1"):
        A("s_and_b32 s37, s2, 7", "hg = head group")
        A("s_lshr_b32 s38, s2, 3")
        A("s_and_b32 s39, s38, 1", "type: 0 = K|V tile, 1 = Q|FNet tile")
        A("s_lshr_b32 s40, s38, 1", "rb")
    else:
        A.c("workgroups with equal id&7 usually share an XCD (speed only): give them an 8 row-block x 4 column-pair patch")
        A("s_and_b32 s38, s2, 7")
        A("s_lshr_b32 s40, s2, 3", "r")
        A("s_and_b32 s39, s40, 1", "type: 0 = K|V tile, 1 = Q|FNet tile")
        A("s_and_b32 s37, s38, 6")
        A("s_bfe_u32 s41, s40, 0x10001")
        A("s_add_u32 s37, s37, s41", "hg = head group (0..7) = 2*(x>>1) + ((r>>1)&1)")
        A("s_lshr_b32 s40, s40, 2")
        A("s_and_b32 s38, s38, 1")
        A("s_lshl_b32 s38, s38, 3")
        A("s_add_u32 s40, s40, s38", "rb = 8*(x&1) + (r>>2)")
    A("s_waitcnt lgkmcnt(0)")
    srd(A, 16, 34, WS_SIZE)
    ST = Stamps(A, opts.get("stamps"), 0, 16, 36)
    ST(0)
    A("s_cmp_ge_u32 s36, 4")
    A("s_cbranch_scc1 K1_LOADER")

    A.c("compute waves: wr = w>>1, wc = w&1")
    A("s_lshr_b32 s42, s36, 1", "wr")
    A("s_and_b32 s43, s36, 1", "wc")
    A("v_and_b32 v8, 31, v0", "i")
    A("v_lshrrev_b32 v9, 5, v0", "h")
    A("v_bfe_u32 v10, v0, 1, 3", "sw = (i>>1)&7")
    A("v_xor_b32 v10, v10, v9")
    A("v_lshlrev_b32 v10, 4, v10", "(h^sw)*16")
    A("s_lshl_b32 s44, s42, 13", "wr*64*128")
    A("v_lshlrev_b32 v11, 7, v8")
    A("v_add3_u32 v2, v11, v10, s44", "ax[0]")
    A("v_xor_b32 v3, 32, v2")
    A("v_xor_b32 v4, 64, v2")
    A("v_xor_b32 v5, 0x60, v2")
    A("v_bfe_u32 v10, v0, 2, 2", "r")
    A("v_lshl_add_u32 v11, v9, 3, v10", "8h + r")
    A("v_lshlrev_b32 v11, 7, v11", "*128")
    A("v_bfe_u32 v12, v0, 4, 1", "g'")
    A("v_bfe_u32 v13, v0, 1, 1", "c4>>1")
    A("v_lshl_add_u32 v12, v12, 1, v13", "2g' + (c4>>1)")
    A("v_bfe_u32 v13, v0, 3, 1", "(r>>1)&1")
    A("v_lshlrev_b32 v13, 2, v13")
    A("v_xor_b32 v12, v12, v13", "phys piece (ct=0)")
    A("v_lshlrev_b32 v12, 4, v12")
    A("v_and_b32 v13, 1, v0")
    A("v_lshlrev_b32 v13, 3, v13", "8*(c4&1)")
    A("v_add3_u32 v11, v11, v12, v13")
    A("s_lshl_b32 s44, s43, 13")
    A("s_add_u32 s44, s44, 16384")
    A("v_add_u32 v6, s44, v11", "aw[0]")
    A("v_xor_b32 v7, 64, v6", "aw[1]")
    for r in range(64, 128):
        A(f"v_mov_b32 v{r}, 0")
    XF = [[16, 20], [32, 36]]
    WF = [[24, 28], [40, 44]]
    def acc(rt, ct): return 64 + 16*(2*rt + ct)
    def reads(st, ks):
        L = []
        L.append(f"ds_read_b128 {vr(XF[st][0],4)}, v{2+ks}")
        L.append(f"ds_read_b128 {vr(XF[st][1],4)}, v{2+ks} offset:4096")
        for ct in range(2):
            L.append(f"ds_read_b64_tr_b16 {vr(WF[st][ct],2)}, v{6+ct} offset:{ks*2048}")
            L.append(f"ds_read_b64_tr_b16 {vr(WF[st][ct]+2,2)}, v{6+ct} offset:{ks*2048+512}")
        return L
    def mfmas(st, wc):
        L = []
        for rt in range(2):
            for ct in range(2):
                a = acc(rt, ct)
                if wc == 0:
                    L.append(f"v_mfma_f32_32x32x16_bf16 {vr(a,16)}, {vr(WF[st][ct],4)}, {vr(XF[st][rt],4)}, {vr(a,16)}")
                else:
                    L.append(f"v_mfma_f32_32x32x16_bf16 {vr(a,16)}, {vr(XF[st][rt],4)}, {vr(WF[st][ct],4)}, {vr(a,16)}")
        return L
    ST(1)
    A("s_barrier", "#0: stage 0 landed")
    ST(2)
    for s in reads(0, 0): A(s)
    A("s_mov_b32 s45, 0", "stage counter")
    A("s_cmp_eq_u32 s43, 0")
    A("s_cbranch_scc0 K1_LOOP1")
    for wc in range(2):
        A.raw(".p2align 6")
        A.label(f"K1_LOOP{wc}")
        for ks in range(4):
            st = ks & 1
            A("s_waitcnt lgkmcnt(0)")
            if ks == 3:
                for r in range(2, 8):
                    A(f"v_add_u32 v{r}, 0x8000, v{r}")
                    A(f"v_and_b32 v{r}, 0x1ffff, v{r}")
                A("s_cmp_eq_u32 s45, 7")
                lab = f"K1_NOBAR{wc}"
                A(f"s_cbranch_scc1 {lab}")
                A("s_barrier")
                A.label(lab)
            rd = reads(1 - st, (ks + 1) & 3)
            mf = mfmas(st, wc)
            A(mf[0]); A(rd[0]); A(rd[1]); A(mf[1]); A(rd[2]); A(rd[3]); A(mf[2]); A(rd[4]); A(rd[5]); A(mf[3])
        A("s_add_u32 s45, s45, 1")
        A("s_cmp_lt_u32 s45, 8")
        A(f"s_cbranch_scc1 K1_LOOP{wc}")
        if wc == 0:
            A("s_branch K1_EPI_QK")
    A("s_cmp_eq_u32 s39, 0")
    A("s_cbranch_scc0 K1_EPI_F")

    ST(3)
    A.c("V epilogue")
    A("s_waitcnt lgkmcnt(0)")
    A("v_and_b32 v8, 15, v0", "d")
    A("v_lshlrev_b32 v8, 4, v8")
    A("v_bfe_u32 v9, v0, 4, 1", "head low bit")
    A("v_lshlrev_b32 v9, 16, v9")
    A("v_lshrrev_b32 v10, 5, v0")
    A("v_lshlrev_b32 v10, 8, v10", "h*256")
    A("v_add3_u32 v8, v8, v9, v10")
    A.c("soffset = WS_V + (4x_)*65536 + tile*1024, tile = 4rb + 2wr + rt")
    A("s_lshl_b32 s46, s37, 18")
    A("s_lshl_b32 s47, s40, 2")
    A("s_lshl_b32 s48, s42, 1")
    A("s_add_u32 s47, s47, s48")
    A("s_lshl_b32 s47, s47, 10")
    A("s_add_u32 s46, s46, s47")
    A(f"s_add_u32 s46, s46, {hex(WS_V)}")
    A("s_nop 7")
    tmp = 16
    for rt in range(2):
        for ct in range(2):
            a = acc(rt, ct)
            for ch in range(2):
                for j in range(4):
                    A(f"v_cvt_pk_bf16_f32 v{tmp+j}, v{a+8*ch+2*j}, v{a+8*ch+2*j+1}")
                A(f"s_add_u32 s47, s46, {rt*1024 + ct*2*65536}")
                A(f"buffer_store_dwordx4 {vr(tmp,4)}, v8, s[16:19], s47 offen offset:{ch*512}")
                tmp = 16 + (tmp - 16 + 4) % 32
    ST(4)
    if opts.get("stamps"): A("s_waitcnt vmcnt(0)")
    ST(5)
    ST.dump(6)
    if opts.get("rt"): A("s_waitcnt vmcnt(0)")
    rt_stamp(A, 0, 1, opts.get("rt"))
    A("s_endpgm")

    A.label("K1_EPI_F")
    ST(3)
    A.c("FNet epilogue: A' = acc(s) + acc(mirror) (re), B' = acc(s) - acc(mirror) (im)")
    A("s_waitcnt lgkmcnt(0)")
    A("s_cmp_lt_u32 s37, 4")
    A("s_cselect_b32 s46, 1.0, -1.0", "sign")
    A(f"s_mov_b32 s48, {hex(WS_BP)}")
    A(f"s_cselect_b32 s47, {hex(WS_AP)}, s48")
    A("s_and_b32 s48, s37, 3")
    A("s_lshl_b32 s48, s48, 17", "eblk*65536, eblk = 2*(x_&3)")
    A("s_add_u32 s47, s47, s48")
    A("s_lshl_b32 s48, s40, 2")
    A("s_lshl_b32 s49, s42, 1")
    A("s_add_u32 s48, s48, s49", "ks0 = 4rb + 2wr")
    A("s_lshl_b32 s49, s48, 10")
    A("s_add_u32 s47, s47, s49")
    A("v_lshlrev_b32 v8, 4, v0")
    A("s_nop 4")
    A.c("s == 0 special: row 0 pairs with row 1024 (only for re columns, rb == 0, wr == 0)")
    A("s_cmp_eq_u32 s48, 0")
    A("s_cbranch_scc0 K1_EPI_F2")
    A("s_cmp_lt_u32 s37, 4")
    A("s_cbranch_scc0 K1_EPI_F2")
    A("s_mov_b32 exec_lo, -1", "lanes 0..31")
    A("s_mov_b32 exec_hi, 0")
    A("v_lshlrev_b32 v9, 2, v0")
    A("s_lshl_b32 s49, s37, 8", "e base = 64 x_ -> *4 bytes")
    A(f"s_add_u32 s49, s49, {hex(WS_A1024)}")
    for ct in range(2):
        A(f"buffer_store_dword v{acc(1,ct)}, v9, s[16:19], s49 offen offset:{ct*128}")
    A("s_nop 1")
    for ct in range(2):
        A(f"v_mov_b32 v{acc(1,ct)}, 0")
    A("s_mov_b64 exec, -1")
    A.label("K1_EPI_F2")
    tmp = 16
    for ct in range(2):
        a0 = acc(0, ct); a1 = acc(1, ct)
        for r in range(16):
            A(f"v_fma_f32 v{a0+r}, v{a1+r}, s46, v{a0+r}")
        for ch in range(2):
            for j in range(4):
                A(f"v_cvt_pk_bf16_f32 v{tmp+j}, v{a0+8*ch+2*j}, v{a0+8*ch+2*j+1}")
            A(f"s_add_u32 s49, s47, {ct*65536}")
            A(f"buffer_store_dwordx4 {vr(tmp,4)}, v8, s[16:19], s49 offen offset:{ch*1024}")
            tmp = 16 + (tmp - 16 + 4) % 32
    ST(4)
    if opts.get("stamps"): A("s_waitcnt vmcnt(0)")
    ST(5)
    ST.dump(6)
    if opts.get("rt"): A("s_waitcnt vmcnt(0)")
    rt_stamp(A, 0, 1, opts.get("rt"))
    A("s_endpgm")

    A.label("K1_EPI_QK")
    ST(3)
    A.c("Q/K epilogue")
    A("s_waitcnt lgkmcnt(0)")
    c = 0.25*math.log2(math.e)
    A("s_cmp_eq_u32 s39, 0")
    A(f"s_cselect_b32 s46, 1.0, {hex(f2u(c))}", "K: 1.0, Q: 0.25*log2(e)")
    A(f"s_cselect_b32 s47, {hex(WS_K)}, {hex(WS_Q)}" if WS_Q > 64 else f"s_cselect_b32 s47, {hex(WS_K)}, {WS_Q}")
    A("s_lshl_b32 s48, s37, 18", "head base 4x_ * 65536")
    A("s_add_u32 s47, s47, s48")
    A("s_lshl_b32 s48, s40, 2")
    A("s_lshl_b32 s49, s42, 1")
    A("s_add_u32 s48, s48, s49")
    A("s_lshl_b32 s48, s48, 10", "tile*1024")
    A("s_add_u32 s47, s47, s48")
    A("v_lshlrev_b32 v8, 4, v0")
    A("s_nop 7")
    tmp = 16
    for rt in range(2):
        for ct in range(2):
            a = acc(rt, ct)
            for hd in range(2):
                for j in range(8):
                    A(f"v_mul_f32 v{a+8*hd+j}, s46, v{a+8*hd+j}")
                for j in range(4):
                    A(f"v_cvt_pk_bf16_f32 v{tmp+j}, v{a+8*hd+2*j}, v{a+8*hd+2*j+1}")
                A(f"s_add_u32 s49, s47, {rt*1024 + (2*ct+hd)*65536}")
                A(f"buffer_store_dwordx4 {vr(tmp,4)}, v8, s[16:19], s49 offen")
                tmp = 16 + (tmp - 16 + 4) % 32
    ST(4)
    if opts.get("stamps"): A("s_waitcnt vmcnt(0)")
    ST(5)
    ST.dump(6)
    if opts.get("rt"): A("s_waitcnt vmcnt(0)")
    rt_stamp(A, 0, 1, opts.get("rt"))
    A("s_endpgm")

    A.label("K1_LOADER")
    srd(A, 4, 24, 0x200000)
    srd(A, 8, 26, 0x180000)
    srd(A, 20, 32, 0x400)
    A("s_sub_u32 s41, s36, 4", "j")
    A("s_lshr_b32 s42, s41, 1", "wr")
    A("s_and_b32 s43, s41, 1", "rt")
    A.c("W1 source: type 0 -> wqkv V columns; type 1 -> hid_re (x_<4) / hid_im")
    A("s_cmp_lt_u32 s37, 4")
    A("s_cselect_b32 s44, s28, s30")
    A("s_cselect_b32 s45, s29, s31")
    A("s_lshl_b32 s47, s37, 7", "64 x_ * 2")
    A("s_and_b32 s49, s37, 3")
    A("s_lshl_b32 s49, s49, 7", "64 (x_&3) * 2")
    A("s_add_u32 s63, s47, 2048", "(1024 + 64x_)*2")
    A("s_mov_b32 s64, 0x80000")
    A("s_movk_i32 s65, 1024")
    A("s_cmp_eq_u32 s39, 0")
    A("s_cselect_b32 s12, s26, s44")
    A("s_cselect_b32 s13, s27, s45")
    A("s_cselect_b32 s14, 0x180000, s64")
    A("s_mov_b32 s15, 0x20000")
    A("s_cselect_b32 s46, 3072, s65", "stride1")
    A("s_cselect_b32 s48, s65, 0", "type0: K columns start at 512")
    A("s_cselect_b32 s49, s63, s49", "colbase1*2")
    A("s_and_b32 s13, s13, 0xffff")
    A("s_add_u32 s48, s48, s47", "colbase0*2")
    A.c("gate rows: pair pi = (2x_+type)*4 + j ; s = 64rb + pi")
    A("s_lshl_b32 s50, s37, 1")
    A("s_add_u32 s50, s50, s39")
    A("s_lshl_b32 s50, s50, 2")
    A("s_add_u32 s50, s50, s41")
    A("s_lshl_b32 s51, s40, 6")
    A("s_add_u32 s50, s50, s51", "s50 = s")
    A("s_sub_u32 s51, 2048, s50")
    A("s_cmp_eq_u32 s50, 0")
    A("s_cselect_b32 s51, 1024, s51", "s51 = mirror row")
    A("v_lshlrev_b32 v8, 4, v0")
    A("s_lshl_b32 s52, s50, 10")
    A("s_lshl_b32 s53, s51, 10")
    A("buffer_load_dwordx4 v[16:19], v8, s[4:7], s52 offen")
    A("buffer_load_dwordx4 v[20:23], v8, s[4:7], s53 offen")
    A("buffer_load_dwordx4 v[24:27], v8, s[20:23], 0 offen")
    A("v_lshrrev_b32 v9, 3, v0", "a")
    A("v_lshrrev_b32 v10, 2, v9")
    A("v_lshlrev_b32 v10, 3, v10", "8*(a>>2)")
    A("v_and_b32 v11, 3, v9")
    A("s_lshl_b32 s52, s40, 6")
    A("s_lshl_b32 s53, s42, 5")
    A("s_add_u32 s52, s52, s53", "64rb + 32wr")
    A("v_add3_u32 v10, v10, v11, s52", "sa")
    A("v_and_b32 v11, 7, v0")
    A("v_lshrrev_b32 v12, 1, v9")
    A("v_xor_b32 v12, v11, v12", "p0")
    A("s_cmp_eq_u32 s43, 1")
    A("s_cselect_b64 s[54:55], -1, 0")
    A("v_mov_b32 v14, 0x400")
    for u in range(4):
        A(f"v_add_u32 v13, {16*(u>>1)+4*(u&1)}, v10")
        A(f"v_sub_u32 v15, 0x800, v13")
        A(f"v_cndmask_b32 v13, v13, v15, s[54:55]")
        if u == 0:
            A("v_cmp_eq_u32 vcc, 0x800, v13")
            A("s_nop 1")
            A("v_cndmask_b32 v13, v13, v14, vcc")
        A(f"v_lshlrev_b32 v13, 10, v13")
        if u & 1:
            A(f"v_xor_b32 v15, 4, v12")
            A(f"v_lshl_add_u32 v{2+u}, v15, 4, v13")
        else:
            A(f"v_lshl_add_u32 v{2+u}, v12, 4, v13")
    A("v_bfe_u32 v13, v9, 1, 1")
    A("v_lshlrev_b32 v13, 2, v13")
    A("v_xor_b32 v13, v11, v13", "q")
    A("v_lshlrev_b32 v13, 4, v13", "q*16")
    A("s_lshl_b32 s52, s41, 4")
    A("v_add_u32 v15, s52, v9", "k = 16j + a")
    A("s_movk_i32 s53, 3072")
    A("v_mul_lo_u32 v6, v15, s53")
    A("v_add3_u32 v6, v6, v13, s48")
    A("v_mul_lo_u32 v7, v15, s46")
    A("v_add3_u32 v7, v7, v13, s49")
    A("s_lshl_b32 s53, s41, 12", "j*4096")
    A("s_lshl_b32 s54, s41, 11")
    A("s_add_u32 s54, s54, 16384", "16384 + j*2048")
    A("s_mov_b32 s52, 0", "slot base")
    A("s_mov_b32 s55, 0", "x soffset")
    A("s_mov_b32 s56, 0", "w0 soffset")
    A("s_mov_b32 s57, 0", "w1 soffset")
    A("s_lshl_b32 s58, s46, 3", "8*stride1")
    A("s_lshl_b32 s59, s46, 6", "64*stride1")
    A("s_mov_b32 s62, 0", "cnt")
    A.label("K1_ISSUE")
    A("s_add_u32 s60, s52, s53")
    for u in range(4):
        A(f"s_add_u32 m0, s60, {u*1024}")
        A("s_nop 0")
        A(f"buffer_load_dwordx4 v{2+u}, s[4:7], s55 offen lds")
    A("s_add_u32 s60, s52, s54")
    A("s_mov_b32 m0, s60")
    A("s_add_u32 s61, s56, 24576")
    A("buffer_load_dwordx4 v6, s[8:11], s56 offen lds")
    A("s_add_u32 m0, s60, 1024")
    A("s_nop 0")
    A("buffer_load_dwordx4 v6, s[8:11], s61 offen lds")
    A("s_add_u32 m0, s60, 8192")
    A("s_add_u32 s61, s57, s58")
    A("buffer_load_dwordx4 v7, s[12:15], s57 offen lds")
    A("s_add_u32 m0, s60, 9216")
    A("s_nop 0")
    A("buffer_load_dwordx4 v7, s[12:15], s61 offen lds")
    A("s_add_u32 s52, s52, 0x8000")
    A("s_and_b32 s52, s52, 0x1ffff")
    A("s_add_u32 s55, s55, 128")
    A("s_add_u32 s56, s56, 196608")
    A("s_add_u32 s57, s57, s59")
    A("s_add_u32 s62, s62, 1")
    A.c("issue order: st0 st1 | wait st0, bar0 | st2 st3 | wait st1, bar1 | st4 | wait, bar2 | st5 | bar3 | st6 | bar4 | st7 | bar5 | bar6 | bar7")
    A("s_cmp_eq_u32 s62, 1")
    A("s_cbranch_scc1 K1_ISSUE")
    A("s_cmp_eq_u32 s62, 2")
    A("s_cbranch_scc0 K1_NOT2")
    ST(1)
    A("s_waitcnt vmcnt(8)")
    A("s_barrier", "#0")
    ST(2)
    A("s_branch K1_ISSUE")
    A.label("K1_NOT2")
    A("s_cmp_eq_u32 s62, 3")
    A("s_cbranch_scc1 K1_ISSUE")
    A("s_waitcnt vmcnt(16)")
    A("s_barrier")
    A("s_cmp_lt_u32 s62, 8")
    A("s_cbranch_scc1 K1_ISSUE")
    A("s_waitcnt vmcnt(8)")
    A("s_barrier", "#6")
    A("s_waitcnt vmcnt(0)")
    A("s_barrier", "#7")
    ST(3)
    A.c("gate z = sum x*w ; alt = sum (-1)^d x   for rows s (v16..19) and mirror (v20..23)")
    for j in range(4):
        A(f"v_lshlrev_b32 v{28+2*j}, 16, v{24+j}", "w lo")
        A(f"v_and_b32 v{29+2*j}, 0xffff0000, v{24+j}", "w hi")
    for row in range(2):
        z = 40 + row; al = 42 + row
        for j in range(4):
            src = 16 + 4*row + j
            A(f"v_lshlrev_b32 v36, 16, v{src}")
            A(f"v_and_b32 v37, 0xffff0000, v{src}")
            if j == 0:
                A(f"v_mul_f32 v{z}, v36, v28")
                A(f"v_sub_f32 v{al}, v36, v37")
            else:
                A(f"v_fmac_f32 v{z}, v36, v{28+2*j}")
                A(f"v_add_f32 v{al}, v{al}, v36")
                A(f"v_sub_f32 v{al}, v{al}, v37")
            A(f"v_fmac_f32 v{z}, v37, v{29+2*j}")
    A("s_nop 1")
    for dpp in ["quad_perm:[1,0,3,2] row_mask:0xf bank_mask:0xf", "quad_perm:[2,3,0,1] row_mask:0xf bank_mask:0xf",
                "row_half_mirror row_mask:0xf bank_mask:0xf", "row_mirror row_mask:0xf bank_mask:0xf",
                "row_bcast:15 row_mask:0xa bank_mask:0xf", "row_bcast:31 row_mask:0xc bank_mask:0xf"]:
        for r in range(40, 44):
            A(f"v_add_f32_dpp v{r}, v{r}, v{r} {dpp}")
    A("s_nop 1")
    A("s_mov_b32 exec_lo, 0")
    A("s_mov_b32 exec_hi, 0x80000000", "lane 63 holds the totals")
    nl2e = f2u(-math.log2(math.e))
    for row in range(2):
        A(f"v_mul_f32 v{40+row}, {hex(nl2e)}, v{40+row}")
        A(f"v_exp_f32 v{40+row}, v{40+row}")
        A("s_nop 0")
        A(f"v_add_f32 v{40+row}, 1.0, v{40+row}")
        A(f"v_rcp_f32 v{40+row}, v{40+row}")
    A("s_lshl_b32 s52, s50, 2")
    A("s_lshl_b32 s53, s51, 2")
    A(f"s_add_u32 s52, s52, {hex(WS_G)}")
    A(f"s_add_u32 s53, s53, {hex(WS_G)}")
    A("v_mov_b32 v8, 0")
    A("buffer_store_dword v40, v8, s[16:19], s52 offen")
    A("buffer_store_dword v41, v8, s[16:19], s53 offen")
    A.c("A'256[s] = alt(s) + alt(mirror)  (s >= 1);  s == 0: A'256[0] = alt(0), A1024[256] = alt(1024)")
    A("s_cmp_eq_u32 s50, 0")
    A("s_cbranch_scc0 K1_G2")
    A(f"s_mov_b32 s52, {hex(WS_A1024 + 256*4)}")
    A("buffer_store_dword v43, v8, s[16:19], s52 offen")
    A("s_nop 1")
    A("v_mov_b32 v43, 0")
    A.label("K1_G2")
    A("v_add_f32 v42, v42, v43")
    A("s_lshr_b32 s52, s50, 4")
    A("s_lshl_b32 s52, s52, 10", "ks*1024")
    A("s_bfe_u32 s53, s50, 0x10003", "(s>>3)&1")
    A("s_lshl_b32 s53, s53, 9")
    A("s_add_u32 s52, s52, s53")
    A("s_and_b32 s53, s50, 7")
    A("s_lshl_b32 s53, s53, 1")
    A("s_add_u32 s52, s52, s53")
    A(f"s_add_u32 s52, s52, {hex(WS_AP + 8*65536)}")
    A("v_cvt_pk_bf16_f32 v42, v42, v42")
    A("buffer_store_short v42, v8, s[16:19], s52 offen")
    ST(4)
    ST(5)
    ST.dump(6)
    A.label("K1_END")
    if opts.get("rt"): A("s_waitcnt vmcnt(0)")
    rt_stamp(A, 0, 1, opts.get("rt"))
    A("s_endpgm")
    return name, 128, (96 if (opts.get('stamps') or opts.get('rt')) else 66)
```

```python
from common import *

LDS_V = 65536
LDS_F = 131072
LDS_X = LDS_F + 12288
LDS_ONES = LDS_X + 18432
LDS_CNT = LDS_ONES + 1664
K2_LDS = LDS_CNT + 64
assert LDS_ONES % 256 == 0 and K2_LDS <= 163840

def gen_k2(A, opts=None):
    opts = opts or {}
    name = "k2_attn_kernel"
    kernel_header(A, name)
    A.c("K2: attention (8 waves) + K/V loaders & FNet sequence-DFT stage (4 waves).  256 WGs x 768 threads")
    A("s_cmp_ge_u32 s2, 256")
    A("s_cbranch_scc1 K2_END")
    rt_stamp(A, 1, 0, opts.get("rt"))
    A("s_load_dwordx4 s[24:27], s[0:1], 32", "seq_re, seq_im")
    A("s_load_dwordx2 s[34:35], s[0:1], 88", "ws")
    A("v_lshrrev_b32 v1, 6, v0")
    A("v_and_b32 v0, 63, v0", "lane")
    A("v_readfirstlane_b32 s36, v1", "wave id")
    A("s_and_b32 s37, s2, 7", "x_")
    A("s_lshr_b32 s38, s2, 3", "r")
    A("s_and_b32 s39, s38, 3")
    A("s_lshl_b32 s40, s37, 2")
    A("s_add_u32 s40, s40, s39", "head = 4x_ + (r&3)   (also FNet t-block i)")
    A("s_lshr_b32 s41, s38, 2", "qb (also FNet e-block)")
    A("s_waitcnt lgkmcnt(0)")
    srd(A, 4, 34, WS_SIZE)
    ST = Stamps(A, opts.get("stamps"), 1, 4, 36)
    ST(0)
    if opts.get("clk"): clk_stamp(A, 12)
    A("s_cmp_ge_u32 s36, 8")
    A("s_cbranch_scc1 K2_FNET")

    QA, QB, KF, V0, V1, P, SA, SB, OA, OB, CN = 4, 8, 12, 16, 20, 24, 32, 48, 64, 80, 100
    A("s_and_b32 s42, s36, 3", "qp: query-tile pair")
    A("s_lshr_b32 s49, s36, 2", "kh: key half")
    A("s_lshl_b32 s43, s41, 3")
    A("s_lshl_b32 s44, s42, 1")
    A("s_add_u32 s44, s44, s43", "q tile a = 8 qb + 2 qp")
    A("s_lshl_b32 s43, s40, 16")
    A("s_lshl_b32 s44, s44, 10")
    A("s_add_u32 s43, s43, s44", "head*65536 + tile_a*1024")
    A("v_lshlrev_b32 v1, 4, v0", "lane*16")
    A(f"s_add_u32 s45, s43, {hex(WS_Q)}" if WS_Q else "s_mov_b32 s45, s43")
    A(f"buffer_load_dwordx4 {vr(QA,4)}, v1, s[4:7], s45 offen")
    A(f"buffer_load_dwordx4 {vr(QB,4)}, v1, s[4:7], s45 offen offset:1024")
    A("s_lshl_b32 s50, s49, 15", "kh*32768")
    A("v_add_u32 v2, s50, v1", "K address")
    A.c("V address: lanes with (l&31)<16 read V rows; the others read a strip of bf16 ones (row sums come out of the same MFMA)")
    A("v_lshrrev_b32 v3, 5, v0")
    A("v_lshlrev_b32 v3, 8, v3", "h*256")
    A("v_and_b32 v28, 15, v0")
    A("v_lshl_add_u32 v3, v28, 4, v3")
    A(f"s_add_u32 s51, s50, {LDS_V}")
    A("v_add_u32 v3, s51, v3", "real V address")
    A("v_add_u32 v28, 4, v0")
    A("v_bfe_u32 v28, v28, 3, 1", "((l+4)>>3)&1 : 1 for lanes 20..27 (mod 32) -> bank offset 64")
    A("v_lshlrev_b32 v28, 6, v28")
    A(f"v_add_u32 v28, {LDS_ONES - 512}, v28")
    A("v_bfe_u32 v29, v0, 4, 1")
    A("v_cmp_eq_u32 vcc, 0, v29")
    A("v_mov_b32 v30, 0")
    A("v_mov_b32 v31, 2048")
    A("v_mov_b32 v97, v3", "real address (prologue / fallback)")
    A("v_cndmask_b32 v3, v28, v3, vcc")
    A("v_cndmask_b32 v96, v30, v31, vcc", "per-iteration increment (0 for ones lanes)")
    for r in range(16): A(f"v_mov_b32 v{OA+r}, 0")
    for r in range(16): A(f"v_mov_b32 v{OB+r}, 0")
    for r in range(4, 8): A(f"v_mov_b32 v{P+r}, 0")
    for r in range(4): A(f"v_mov_b32 v{V0+r}, 0x3f803f80")
    for r in range(4): A(f"v_mov_b32 v{V1+r}, 0")
    A("s_mov_b32 s46, 0x0000ffff")
    A("s_mov_b32 s47, 0x0000ffff", "exec mask of the real V lanes")
    A("s_mov_b32 s48, 0", "iteration")
    if opts.get("pprio"): A("s_setprio 3")
    A("s_barrier", "#0: chunk 0 of K/V landed")
    ST(1)
    A(f"ds_read_b128 {vr(KF,4)}, v2")
    A("s_mov_b64 exec, s[46:47]")
    A(f"ds_read_b128 {vr(V0,4)}, v97")
    A("s_mov_b64 exec, -1")
    A("s_waitcnt vmcnt(0) lgkmcnt(0)")
    A(f"v_mfma_f32_32x32x16_bf16 {vr(SA,16)}, {vr(KF,4)}, {vr(QA,4)}, 0")
    A("s_nop 15")
    A.raw(".p2align 6")
    A.label("K2_LOOP")
    def substep(S, mid1, mid2, mid3):
        e = lambda j: A(f"v_exp_f32 v{S+j}, v{S+j}")
        cv = lambda j: A(f"v_cvt_pk_bf16_f32 v{P+j}, v{S+2*j}, v{S+2*j+1}")
        mid1()
        e(0); e(1); e(2); e(3); cv(0); cv(1)
        mid2()
        e(4); e(5); e(6); e(7); cv(2); cv(3); e(8); e(9)
        mid3()
        e(10); e(11); cv(4); e(12); e(13); cv(5); e(14); e(15); cv(6); cv(7)
    mf = lambda d, a, b, c: A(f"v_mfma_f32_32x32x16_bf16 {vr(d,16)}, {vr(a,4)}, {vr(b,4)}, {c}")
    for u in range(2):
        if u == 1:
            A("s_and_b32 s52, s48, 13")
            A("s_cmp_eq_u32 s52, 0", "iterations 0 and 2")
            A("s_cbranch_scc0 K2_NOBAR")
            A("s_barrier", "#1 / #2: later K/V chunks landed")
            A.label("K2_NOBAR")
        def a1():
            mf(SB, KF, QB, "0")
            A(f"ds_read_b128 {vr(KF,4)}, v2 offset:{(u+1)*1024}")
        def a2():
            mf(OB, V1, P+4, vr(OB,16))
            A(f"ds_read_b128 {vr(V1,4)}, v3 offset:{u*1024+512}")
        def a3():
            A("s_waitcnt lgkmcnt(2)")
            mf(OA, V0, P, vr(OA,16))
        substep(SA, a1, a2, a3)
        def b1():
            A("s_waitcnt lgkmcnt(0)")
            mf(SA, KF, QA, "0")
        def b2():
            mf(OA, V1, P+4, vr(OA,16))
        def b3():
            mf(OB, V0, P, vr(OB,16))
            A(f"ds_read_b128 {vr(V0,4)}, v3 offset:{(u+1)*1024}")
        substep(SB, b1, b2, b3)
    A("v_add_u32 v2, 0x800, v2")
    A("v_add_u32 v3, v96, v3")
    A("s_add_u32 s48, s48, 1")
    if opts.get("pprio"):
        A.c("a wave that is behind gets the higher priority: 3,2,1,0 for iterations 0-3, 4-7, 8-11, 12-15")
        for lv, itn in ((2, 4), (1, 8), (0, 12)):
            lab = A.newlabel("K2_PR")
            A(f"s_cmp_eq_u32 s48, {itn}")
            A(f"s_cbranch_scc0 {lab}")
            A(f"s_setprio {lv}")
            A.label(lab)
    A("s_cmp_lt_u32 s48, 16")
    A("s_cbranch_scc1 K2_LOOP")
    ST(2)
    mf(OB, V1, P+4, vr(OB,16))
    A("s_waitcnt lgkmcnt(0)")
    A("s_nop 15")
    A.c("combine the two key halves: wave kh keeps query tile (a if kh==0 else b) and hands the other one to its partner (wave ^ 4)")
    A("s_cmp_eq_u32 s49, 0")
    A("s_cbranch_scc1 K2_KEEPA")
    for r in range(9):
        A(f"v_mov_b32 v{32+r}, v{OA+r}", "give a")
        A(f"v_mov_b32 v{OA+r}, v{OB+r}", "keep b")
    A("s_add_u32 s43, s43, 1024", "own tile = b")
    A("s_branch K2_XCH")
    A.label("K2_KEEPA")
    for r in range(9): A(f"v_mov_b32 v{32+r}, v{OB+r}", "give b")
    A.label("K2_XCH")
    O = OA
    A("s_mul_i32 s50, s36, 2304")
    A(f"s_add_u32 s50, s50, {LDS_X}")
    A("v_lshlrev_b32 v28, 2, v0")
    A("v_add_u32 v29, s50, v28")
    for r in range(9): A(f"ds_write_b32 v29, v{32+r} offset:{r*256}")
    A("s_lshl_b32 s51, s36, 2")
    A(f"s_add_u32 s51, s51, {LDS_CNT + 16}")
    A("v_mov_b32 v30, s51")
    A("v_mov_b32 v31, 1")
    A("s_waitcnt lgkmcnt(0)")
    A("ds_write_b32 v30, v31", "flag: my hand-over is in LDS")
    A("s_xor_b32 s52, s36, 4", "partner")
    A("s_mul_i32 s50, s52, 2304")
    A(f"s_add_u32 s50, s50, {LDS_X}")
    A("v_add_u32 v29, s50, v28")
    A("s_lshl_b32 s51, s52, 2")
    A(f"s_add_u32 s51, s51, {LDS_CNT + 16}")
    A("v_mov_b32 v30, s51")
    A.label("K2_XSPIN")
    A("ds_read_b32 v31, v30")
    A("s_waitcnt lgkmcnt(0)")
    A("v_readfirstlane_b32 s52, v31")
    A("s_cmp_eq_u32 s52, 1")
    A("s_cbranch_scc1 K2_XGO")
    A("s_sleep 1")
    A("s_branch K2_XSPIN")
    A.label("K2_XGO")
    for r in range(9): A(f"ds_read_b32 v{32+r}, v29 offset:{r*256}")
    A("s_waitcnt lgkmcnt(0)")
    for r in range(9): A(f"v_add_f32 v{O+r}, v{O+r}, v{32+r}")
    A.c("row 16 of O^T holds the row sum l (ones rows of the V operand)")
    def normalize():
        A(f"v_rcp_f32 v28, v{O+8}")
        A("s_nop 0")
        for r in range(8): A(f"v_mul_f32 v{O+r}, v{O+r}, v28")
    A(f"v_mov_b32 v29, v{O+8}", "l")
    normalize()
    A.c("run-time guard: softmax is shift invariant, so the unshifted exponentials give the same result as long as l stays far")
    A.c("from the fp32 range limits and O is finite; otherwise this tile is recomputed below with the true row max subtracted")
    A(f"v_add_f32 v30, abs(v{O}), abs(v{O+1})")
    for r in range(2, 8): A(f"v_add_f32 v30, v30, abs(v{O+r})")
    A(f"v_cmp_nle_f32 vcc, {hex(f2u(2.0**-60))}, v29", "!(2^-60 <= l)")
    A(f"s_mov_b32 s50, {hex(f2u(2.0**60))}")
    A(f"v_cmp_nle_f32 s[52:53], v29, s50", "!(l <= 2^60)")
    A(f"s_mov_b32 s50, {hex(f2u(2.0**126))}")
    A(f"v_cmp_nle_f32 s[54:55], v30, s50", "O not finite")
    A("s_nop 4")
    A("s_or_b64 vcc, vcc, s[52:53]")
    A("s_or_b64 vcc, vcc, s[54:55]")
    if opts.get("force_fallback"):
        A("s_mov_b64 vcc, -1")
    A("s_cmp_lg_u64 vcc, 0")
    A("s_cbranch_scc1 K2_FALLBACK")
    A.label("K2_STORE")
    for j in range(4): A(f"v_cvt_pk_bf16_f32 v{P+j}, v{O+2*j}, v{O+2*j+1}")
    A(f"s_add_u32 s45, s43, {hex(WS_O)}")
    A(f"buffer_store_dwordx4 {vr(P,4)}, v1, s[4:7], s45 offen")
    ST(3)
    if opts.get("clk"): clk_stamp(A, 14)
    ST.dump(4)
    if opts.get("rt"): A("s_waitcnt vmcnt(0)")
    rt_stamp(A, 1, 1, opts.get("rt"))
    A("s_endpgm")

    A.label("K2_FALLBACK")
    Q = QA
    A("s_cmp_eq_u32 s49, 0")
    A("s_cbranch_scc1 K2_FB0")
    for r in range(4): A(f"v_mov_b32 v{QA+r}, v{QB+r}")
    A.label("K2_FB0")
    A("v_mov_b32 v2, v1")
    A("v_mov_b32 v29, 0xff800000", "running max = -inf")
    A("s_mov_b32 s48, 0")
    A.label("K2_FB1")
    A(f"ds_read_b128 {vr(KF,4)}, v2")
    A("s_waitcnt lgkmcnt(0)")
    A(f"v_mfma_f32_32x32x16_bf16 {vr(SA,16)}, {vr(KF,4)}, {vr(Q,4)}, 0")
    A("s_nop 15")
    for r in range(0, 16, 2): A(f"v_max3_f32 v29, v{SA+r}, v{SA+r+1}, v29")
    A("v_add_u32 v2, 1024, v2")
    A("s_add_u32 s48, s48, 1")
    A("s_cmp_lt_u32 s48, 64")
    A("s_cbranch_scc1 K2_FB1")
    A("v_mov_b32 v30, v29")
    A("s_nop 1")
    A("v_permlane32_swap_b32 v30, v29")
    A("s_nop 1")
    A("v_max_f32 v29, v29, v30", "row max over both lane halves")
    for r in range(16): A(f"v_sub_f32 v{CN+r}, 0, v29")
    for r in range(16): A(f"v_mov_b32 v{O+r}, 0")
    for r in range(8): A(f"v_mov_b32 v{V0+r}, 0x3f803f80")
    A("v_mov_b32 v2, v1")
    A("s_lshl_b32 s50, s49, 15")
    A("v_subrev_u32 v3, s50, v97", "V address of tile 0")
    A("s_mov_b32 s48, 0")
    A.label("K2_FB2")
    A(f"ds_read_b128 {vr(KF,4)}, v2")
    A("s_mov_b64 exec, s[46:47]")
    A(f"ds_read_b128 {vr(V0,4)}, v3")
    A(f"ds_read_b128 {vr(V1,4)}, v3 offset:512")
    A("s_mov_b64 exec, -1")
    A("s_waitcnt lgkmcnt(0)")
    A(f"v_mfma_f32_32x32x16_bf16 {vr(SA,16)}, {vr(KF,4)}, {vr(Q,4)}, {vr(CN,16)}")
    A("s_nop 15")
    for r in range(16): A(f"v_exp_f32 v{SA+r}, v{SA+r}")
    A("s_nop 0")
    for j in range(8): A(f"v_cvt_pk_bf16_f32 v{P+j}, v{SA+2*j}, v{SA+2*j+1}")
    A("s_nop 1")
    A(f"v_mfma_f32_32x32x16_bf16 {vr(O,16)}, {vr(V0,4)}, {vr(P,4)}, {vr(O,16)}")
    A(f"v_mfma_f32_32x32x16_bf16 {vr(O,16)}, {vr(V1,4)}, {vr(P+4,4)}, {vr(O,16)}")
    A("v_add_u32 v2, 1024, v2")
    A("v_add_u32 v3, 1024, v3")
    A("s_add_u32 s48, s48, 1")
    A("s_cmp_lt_u32 s48, 64")
    A("s_cbranch_scc1 K2_FB2")
    A("s_nop 15")
    normalize()
    A("s_branch K2_STORE")

    A.label("K2_FNET")
    if opts.get("fprio", 2): A(f"s_setprio {opts.get('fprio', 2)}")
    A("s_sub_u32 s42, s36, 8", "j")
    A("v_lshlrev_b32 v1, 4, v0", "lane*16")
    A("s_lshl_b32 s43, s40, 16", "head*65536")
    A(f"s_add_u32 s44, s43, {hex(WS_K)}")
    A(f"s_add_u32 s45, s43, {hex(WS_V)}")
    def dma(first_tile_sreg, n, lab):
        A("s_mov_b32 s48, 0")
        A.label(lab)
        A("s_mov_b32 m0, s46")
        A("s_add_u32 s47, s44, s46")
        A("buffer_load_dwordx4 v1, s[4:7], s47 offen lds")
        A(f"s_add_u32 m0, s46, {LDS_V}")
        A("s_add_u32 s47, s45, s46")
        A("buffer_load_dwordx4 v1, s[4:7], s47 offen lds")
        A("s_add_u32 s46, s46, 1024")
        A("s_add_u32 s48, s48, 1")
        A(f"s_cmp_lt_u32 s48, {n}")
        A(f"s_cbranch_scc1 {lab}")
    A.c("local tiles (per key half): chunk 0: {0,1}; chunk 1: {2..5}; chunk 2: {6..31}.  wave j: half = j>>1")
    A("s_lshr_b32 s52, s42, 1")
    A("s_lshl_b32 s52, s52, 15", "half*32768")
    A("s_and_b32 s53, s42, 1")
    A("s_lshl_b32 s46, s53, 10")
    A("s_add_u32 s46, s46, s52")
    dma(46, 1, "K2_DMA0")
    A("s_lshl_b32 s46, s53, 11")
    A("s_add_u32 s46, s46, s52")
    A("s_add_u32 s46, s46, 2048")
    dma(46, 2, "K2_DMA1")
    A.c("ones strip and flags")
    A("v_mov_b32 v4, 0x3f803f80")
    A("v_mov_b32 v5, v4")
    A("v_mov_b32 v6, v4")
    A("v_mov_b32 v7, v4")
    A(f"v_add_u32 v2, {LDS_ONES}, v1")
    A("ds_write_b128 v2, v[4:7]")
    A("s_mov_b32 exec_lo, -1")
    A("s_mov_b32 exec_hi, 0xff", "40 lanes: 640 B")
    A("ds_write_b128 v2, v[4:7] offset:1024")
    A("s_mov_b64 exec, 0xf")
    A("v_mov_b32 v4, 0")
    A("v_mov_b32 v5, 0")
    A("v_mov_b32 v6, 0")
    A("v_mov_b32 v7, 0")
    A(f"v_add_u32 v2, {LDS_CNT}, v1")
    A("ds_write_b128 v2, v[4:7]")
    A("s_mov_b64 exec, -1")
    A("s_waitcnt vmcnt(4) lgkmcnt(0)")
    A("s_barrier", "#0")
    ST(1)
    A("s_mul_i32 s46, s53, 13312")
    A("s_add_u32 s46, s46, s52")
    A("s_add_u32 s46, s46, 6144")
    dma(46, 3, "K2_DMA2a")
    A("s_waitcnt vmcnt(6)")
    A("s_barrier", "#1")
    dma(46, 10, "K2_DMA2")
    ST(2)

    FR = 8
    E = 136
    NS = 16
    def job_setup(ti, ej, first):
        A(f"s_lshl_b32 s56, s{ti}, 5")
        A("v_and_b32 v2, 31, v0")
        A("v_add_u32 v3, s56, v2", "t = 32 i + (l&31)")
        A("v_lshlrev_b32 v2, 12, v3")
        A("v_lshrrev_b32 v4, 5, v0")
        A("v_lshl_add_u32 v2, v4, 4, v2", "t*4096 + h*16")
        if first:
            A.c("wave j: chain = j>>1 (0: E = Cr x A', 1: G = Ci x B'), K half = j&1")
            A("s_and_b32 s57, s42, 1")
            A("s_lshl_b32 s57, s57, 5", "ks0 = 32*(j&1)")
            A(f"s_mov_b32 s58, {hex(WS_BP)}")
            A("s_cmp_lt_u32 s42, 2")
            A("s_cselect_b32 s8, s24, s26")
            A("s_cselect_b32 s9, s25, s27")
            A(f"s_cselect_b32 s58, {hex(WS_AP)}, s58")
        else:
            A("s_lshl_b32 s57, s42, 4", "ks0 = 16 j")
            A("s_mov_b32 s8, s24")
            A("s_mov_b32 s9, s25")
            A(f"s_mov_b32 s58, {hex(WS_AP)}")
        A("s_and_b32 s9, s9, 0xffff")
        A("s_mov_b32 s10, 0x800000")
        A("s_mov_b32 s11, 0x20000")
        A(f"s_lshl_b32 s56, s{ej}, 16", "eblk*65536")
        A("s_add_u32 s60, s56, s58")
        A("s_lshl_b32 s56, s57, 10")
        A("s_add_u32 s60, s60, s56", "fragment base + ks0*1024")
        A("s_lshl_b32 s62, s57, 5", "ks0*32")
    def issue(slot, n):
        b = FR + 8*slot
        A(f"s_add_u32 s58, s60, {n*1024}")
        A(f"s_add_u32 s59, s62, {n*32}")
        A(f"buffer_load_dwordx4 {vr(b,4)}, v1, s[4:7], s58 offen")
        A(f"buffer_load_dwordx4 {vr(b+4,4)}, v2, s[8:11], s59 offen")
    def job_run(nsteps, jobidx, ej, tag):
        hasG = nsteps == 32
        for r in range(16): A(f"v_mov_b32 v{E+r}, 0")
        for n in range(nsteps):
            slot = n % NS
            b = FR + 8*slot
            rem_first = nsteps - NS
            cnt = 2*(NS-1) if n < rem_first else 2*(nsteps - 1 - n)
            A(f"s_waitcnt vmcnt({cnt})")
            A(f"v_mfma_f32_32x32x16_bf16 {vr(E,16)}, {vr(b,4)}, {vr(b+4,4)}, {vr(E,16)}")
            if n < rem_first: issue(slot, n + NS)
        A("s_nop 15")
        base = LDS_F
        A("s_cmp_eq_u32 s42, 0")
        A(f"s_cbranch_scc1 K2_COMB{tag}")
        if jobidx == 1:
            A.c("the partial-tile area is shared with job A: wait until wave 0 has read job A's partials")
            A(f"v_mov_b32 v6, {LDS_CNT + 8}")
            A.label("K2_SPINC")
            A("ds_read_b32 v7, v6")
            A("s_waitcnt lgkmcnt(0)")
            A("v_readfirstlane_b32 s57, v7")
            A("s_cmp_eq_u32 s57, 1")
            A("s_cbranch_scc1 K2_GOC")
            A("s_sleep 4")
            A("s_branch K2_SPINC")
            A.label("K2_GOC")
        A.c("waves 1..3: publish the partial tile in LDS")
        A("s_lshl_b32 s56, s42, 12")
        A(f"s_add_u32 s56, s56, {base - 4096}")
        A("v_add_u32 v5, s56, v1")
        for m in range(4): A(f"ds_write_b128 v5, {vr(E+4*m,4)} offset:{m*1024}")
        A(f"v_mov_b32 v6, {LDS_CNT + 4*jobidx}")
        A("v_mov_b32 v7, 1")
        A("s_waitcnt lgkmcnt(0)")
        A("s_mov_b64 exec, 1")
        A("ds_add_u32 v6, v7")
        A("s_waitcnt lgkmcnt(0)")
        A("s_mov_b64 exec, -1")
        A(f"s_branch K2_JOBDONE{tag}")
        A.label(f"K2_COMB{tag}")
        A.c("wave 0: wait for the three partials; E += (-1)^t A1024[e];  Ym = E - G, Yp = E + G")
        A("v_lshrrev_b32 v4, 5, v0")
        A("v_lshlrev_b32 v4, 4, v4", "4h*4 bytes")
        A(f"s_lshl_b32 s56, s{ej}, 7", "e0*4")
        A(f"s_add_u32 s57, s56, {hex(WS_A1024)}")
        for m in range(4):
            A(f"buffer_load_dwordx4 {vr(FR+4*m,4)}, v4, s[4:7], s57 offen offset:{m*32}")
        A(f"v_mov_b32 v6, {LDS_CNT + 4*jobidx}")
        A.label(f"K2_SPIN{tag}")
        A("ds_read_b32 v7, v6")
        A("s_waitcnt lgkmcnt(0)")
        A("v_readfirstlane_b32 s57, v7")
        A("s_cmp_eq_u32 s57, 3")
        A(f"s_cbranch_scc1 K2_GO{tag}")
        A("s_sleep 4")
        A(f"s_branch K2_SPIN{tag}")
        A.label(f"K2_GO{tag}")
        A(f"v_add_u32 v5, {base}, v1")
        for p in range(3):
            for m in range(4):
                A(f"ds_read_b128 {vr(FR+16+16*p+4*m,4)}, v5 offset:{p*4096 + m*1024}")
        A("v_and_b32 v6, 1, v0")
        A("v_lshlrev_b32 v6, 31, v6")
        A("v_or_b32 v6, 1.0, v6", "(-1)^t")
        A(f"s_movk_i32 s58, {YSB}")
        A("v_mul_lo_u32 v7, v3, s58")
        A("v_add_u32 v7, v7, v4", "t*YSB + 4h*4")
        A("s_waitcnt vmcnt(0) lgkmcnt(0)")
        if jobidx == 0:
            A(f"v_mov_b32 v5, {LDS_CNT + 8}")
            A("v_mov_b32 v4, 1")
            A("ds_write_b32 v5, v4", "job A partials consumed")
        P1, P2, P3 = FR+16, FR+32, FR+48
        for r in range(16): A(f"v_fmac_f32 v{E+r}, v6, v{FR+r}")
        for r in range(16): A(f"v_add_f32 v{E+r}, v{E+r}, v{P1+r}")
        for r in range(16): A(f"v_add_f32 v{P2+r}, v{P2+r}, v{P3+r}")
        if hasG:
            for r in range(16):
                A(f"v_sub_f32 v{P1+r}, v{E+r}, v{P2+r}")
                A(f"v_add_f32 v{P3+r}, v{E+r}, v{P2+r}")
            ym, yp = P1, P3
        else:
            for r in range(16): A(f"v_add_f32 v{E+r}, v{E+r}, v{P2+r}")
            ym, yp = E, E
        A(f"s_add_u32 s57, s56, {hex(WS_YM)}")
        A(f"s_add_u32 s58, s56, {hex(WS_YP)}")
        for m in range(4):
            A(f"buffer_store_dwordx4 {vr(ym+4*m,4)}, v7, s[4:7], s57 offen offset:{m*32}")
            A(f"buffer_store_dwordx4 {vr(yp+4*m,4)}, v7, s[4:7], s58 offen offset:{m*32}")
        A.label(f"K2_JOBDONE{tag}")

    if opts.get("nofnet"):
        A("s_waitcnt vmcnt(0) lgkmcnt(0)")
        A("s_barrier")
        A("s_endpgm")
    job_setup(40, 41, True)
    A("s_waitcnt vmcnt(0)")
    A("s_barrier", "#2: all of K/V landed")
    ST(3)
    for n in range(NS): issue(n, n)
    job_run(32, 0, 41, "A")
    ST(4)
    A.c("extra E-only jobs: row t=1024 (t-block 32) and column e=256 (e-block 8), on workgroups 0..40")
    A("s_cmp_ge_u32 s2, 41")
    A("s_cbranch_scc1 K2_FEND")
    A("s_sub_u32 s64, s2, 32")
    A("s_cmp_lt_u32 s2, 32")
    A("s_cselect_b32 s63, s2, 32", "t-block")
    A("s_cselect_b32 s64, 8, s64", "e-block")
    A("s_waitcnt vmcnt(0)")
    job_setup(63, 64, False)
    for n in range(NS): issue(n, n)
    job_run(16, 1, 64, "B")
    A.label("K2_FEND")
    ST(5)
    ST.dump(6)
    A.label("K2_END")
    if opts.get("rt"): A("s_waitcnt vmcnt(0)")
    rt_stamp(A, 1, 1, opts.get("rt"))
    A("s_endpgm")
    return name, 168, (96 if (opts.get('stamps') or opts.get('rt') or opts.get('clk')) else 66)
```

```python
from common import *

K3_LDS = 131072
def gen_k3(A, opts=None):
    opts = opts or {}
    name = "k3_out_kernel"
    kernel_header(A, name)
    A.c("K3: out = g * (O @ Wo) + (1-g) * Y.   256 WGs x 512 threads (4 compute + 4 loader waves)")
    A("s_cmp_ge_u32 s2, 256")
    A("s_cbranch_scc1 K3_END")
    rt_stamp(A, 2, 0, opts.get("rt"))
    A("s_load_dwordx2 s[24:25], s[0:1], 16", "wo")
    A("s_load_dwordx2 s[26:27], s[0:1], 72", "out")
    A("s_load_dwordx2 s[34:35], s[0:1], 88", "ws")
    A("v_lshrrev_b32 v1, 6, v0")
    A("v_and_b32 v0, 63, v0", "lane")
    A("v_readfirstlane_b32 s36, v1", "wave id")
    A("s_and_b32 s37, s2, 7", "x_")
    A("s_lshr_b32 s38, s2, 3", "r")
    A("s_and_b32 s39, s38, 3")
    A("s_lshl_b32 s40, s37, 2")
    A("s_add_u32 s40, s40, s39", "qp = 4x_ + (r&3)")
    A("s_lshr_b32 s41, s38, 2", "nb")
    A("s_waitcnt lgkmcnt(0)")
    srd(A, 4, 34, WS_SIZE)
    ST = Stamps(A, opts.get("stamps"), 2, 4, 36)
    ST(0)
    A("s_cmp_ge_u32 s36, 4")
    A("s_cbranch_scc1 K3_LOADER")

    srd(A, 8, 26, 0x200000)
    A("s_lshr_b32 s42, s36, 1", "qt (= rt: 0 rows s, 1 mirrored rows)")
    A("s_and_b32 s43, s36, 1", "nt")
    A.c("row of this lane: s = 32 qp + pi(i);  row = qt ? mirror(s) : s ;  t' = (row==1024) ? 1024 : s")
    A("v_and_b32 v8, 31, v0", "i")
    A("v_and_b32 v9, 19, v8", "bits 4,1,0")
    A("v_bfe_u32 v10, v8, 2, 1")
    A("v_lshl_or_b32 v9, v10, 3, v9")
    A("v_bfe_u32 v10, v8, 3, 1")
    A("v_lshl_or_b32 v9, v10, 2, v9", "pi(i)")
    A("s_lshl_b32 s44, s40, 5")
    A("v_add_u32 v9, s44, v9", "s")
    A("v_sub_u32 v10, 0x800, v9")
    A("v_mov_b32 v11, 0x400")
    A("v_cmp_eq_u32 vcc, 0, v9")
    A("s_cmp_eq_u32 s42, 1")
    A("s_cselect_b64 s[46:47], -1, 0")
    A("v_cndmask_b32 v10, v10, v11, vcc", "mirror(s)")
    A("v_cndmask_b32 v11, v9, v11, vcc", "t' for mirrored rows")
    A("v_cndmask_b32 v12, v9, v10, s[46:47]", "row")
    A("v_cndmask_b32 v13, v9, v11, s[46:47]", "t'")
    A("v_lshrrev_b32 v14, 5, v0", "h")
    A.c("g[row]")
    A("v_lshlrev_b32 v15, 2, v12")
    A(f"s_mov_b32 s48, {hex(WS_G)}")
    A("buffer_load_dword v32, v15, s[4:7], s48 offen")
    A.c("Y: base = ((qt ^ (nb>=4)) ? YP : YM) + t'*YSB ;  n0 = 64nb + 32nt + 16h")
    A("s_lshl_b32 s49, s41, 6")
    A("s_lshl_b32 s50, s43, 5")
    A("s_add_u32 s49, s49, s50", "64nb + 32nt")
    A("s_lshr_b32 s50, s41, 2", "nb>=4")
    A("s_xor_b32 s51, s50, s42")
    A(f"s_mov_b32 s52, {hex(WS_YP)}")
    A("s_cmp_eq_u32 s51, 0")
    A(f"s_cselect_b32 s52, {hex(WS_YM)}, s52")
    A(f"s_movk_i32 s53, {YSB}")
    A("v_mul_lo_u32 v15, v13, s53", "t'*YSB")
    A("v_lshlrev_b32 v16, 4, v14", "16h")
    A("v_add_u32 v16, s49, v16", "n0")
    A("v_sub_u32 v17, 497, v16", "512 - n0 - 15")
    A("s_cmp_eq_u32 s50, 1")
    A("s_cselect_b64 s[54:55], -1, 0")
    A("v_cndmask_b32 v17, v16, v17, s[54:55]", "first e'")
    A("v_lshl_add_u32 v15, v17, 2, v15")
    for m in range(4):
        A(f"buffer_load_dwordx4 {vr(36+4*m,4)}, v15, s[4:7], s52 offen offset:{16*m}")
    A.c("output offset: row*1024 + n0*2")
    A("v_lshlrev_b32 v18, 10, v12")
    A("v_lshl_add_u32 v18, v16, 1, v18")
    A.c("O' fragment address: (head*2 + qt)*1024 + lane*16")
    A("s_lshl_b32 s44, s42, 10")
    A("v_lshlrev_b32 v2, 4, v0")
    A("v_add_u32 v2, s44, v2")
    A.c("Wo^T fragment address (tr reads): k row = 16 hd + 4h + r (+8 for the second read)")
    A("v_bfe_u32 v10, v0, 2, 2", "r")
    A("v_lshl_add_u32 v11, v14, 2, v10", "4h + r")
    A("v_lshlrev_b32 v11, 7, v11", "*128")
    A.c("column = 32nt + 16*(c4&1) + 8g' + 4*(c4>>1) -> byte = 2*col ; logical piece = col/8 = 4nt + 2(c4&1) + g' ; within piece 8*(c4>>1)")
    A("v_and_b32 v19, 1, v0")
    A("v_lshlrev_b32 v19, 1, v19", "2(c4&1)")
    A("v_bfe_u32 v20, v0, 4, 1", "g'")
    A("v_add_u32 v19, v19, v20")
    A("s_lshl_b32 s44, s43, 2")
    A("v_add_u32 v19, s44, v19", "logical piece")
    A("v_bfe_u32 v20, v0, 3, 1", "(r>>1)&1")
    A("v_lshlrev_b32 v20, 2, v20")
    A("v_xor_b32 v19, v19, v20")
    A("v_lshlrev_b32 v19, 4, v19")
    A("v_bfe_u32 v20, v0, 1, 1", "c4>>1")
    A("v_lshlrev_b32 v20, 3, v20")
    A("v_add3_u32 v3, v11, v19, v20")
    A("v_add_u32 v3, 0x10000, v3", "Wo image at 64 KB")
    ACC = 64
    for r in range(16): A(f"v_mov_b32 v{ACC+r}, 0")
    OF = [4, 20]; WFR = [8, 24]
    def reads(st, hd):
        A(f"ds_read_b128 {vr(OF[st],4)}, v2 offset:{hd*2048}")
        A(f"ds_read_b64_tr_b16 {vr(WFR[st],2)}, v3 offset:{hd*2048}")
        A(f"ds_read_b64_tr_b16 {vr(WFR[st]+2,2)}, v3 offset:{hd*2048+1024}")
    A("s_mov_b32 s45, 0")
    ST(1)
    A.raw(".p2align 6")
    A.label("K3_LOOP")
    A("s_barrier", "chunk landed")
    reads(0, 0)
    for hd in range(8):
        st = hd & 1
        if hd < 7:
            reads(1 - st, hd + 1)
            A("s_waitcnt lgkmcnt(3)")
        else:
            A("s_waitcnt lgkmcnt(0)")
        A(f"v_mfma_f32_32x32x16_bf16 {vr(ACC,16)}, {vr(WFR[st],4)}, {vr(OF[st],4)}, {vr(ACC,16)}")
    A("v_add_u32 v2, 0x4000, v2")
    A("v_add_u32 v3, 0x4000, v3")
    A("s_add_u32 s45, s45, 1")
    A("s_cmp_lt_u32 s45, 4")
    A("s_cbranch_scc1 K3_LOOP")
    ST(2)
    A("s_waitcnt vmcnt(0)")
    ST(3)
    A("v_sub_f32 v33, 1.0, v32", "1-g")
    A("s_cmp_eq_u32 s50, 1")
    A("s_nop 7")
    A("s_cbranch_scc1 K3_EPI_M")
    for r in range(16): A(f"v_mul_f32 v{36+r}, v33, v{36+r}")
    A("s_branch K3_EPI2")
    A.label("K3_EPI_M")
    A.c("mirrored columns: loaded y index idx <-> r = 15 - idx")
    for r in range(8):
        A(f"v_mul_f32 v34, v33, v{36+r}")
        A(f"v_mul_f32 v{36+r}, v33, v{36+15-r}")
        A(f"v_mov_b32 v{36+15-r}, v34")
    A.label("K3_EPI2")
    for r in range(16): A(f"v_fmac_f32 v{36+r}, v32, v{ACC+r}")
    for j in range(8): A(f"v_cvt_pk_bf16_f32 v{52+j}, v{36+2*j}, v{36+2*j+1}")
    A("buffer_store_dwordx4 v[52:55], v18, s[8:11], 0 offen")
    A("buffer_store_dwordx4 v[56:59], v18, s[8:11], 0 offen offset:16")
    ST(4)
    if opts.get("stamps"): A("s_waitcnt vmcnt(0)")
    ST(5)
    ST.dump(6)
    if opts.get("rt"): A("s_waitcnt vmcnt(0)")
    rt_stamp(A, 2, 1, opts.get("rt"))
    A("s_endpgm")

    A.label("K3_LOADER")
    srd(A, 8, 24, 0x80000)
    A("s_sub_u32 s42, s36, 4", "j")
    A("v_lshlrev_b32 v1, 4, v0", "lane*16")
    A.c("per chunk c (8 heads): O' frags (hd = 8c + 2j + {0,1}, qt = {0,1}) -> 4 instr; Wo rows k = 128c + 32j + 8u + a -> 4 instr")
    A("v_lshrrev_b32 v9, 3, v0", "a")
    A("v_and_b32 v11, 7, v0")
    A("v_bfe_u32 v13, v9, 1, 1")
    A("v_lshlrev_b32 v13, 2, v13")
    A("v_xor_b32 v13, v11, v13", "logical piece q")
    A("v_lshlrev_b32 v13, 4, v13")
    A("s_lshl_b32 s44, s42, 5", "32j")
    A("v_add_u32 v9, s44, v9")
    A("v_lshlrev_b32 v9, 10, v9", "(32j + a)*1024")
    A("s_lshl_b32 s45, s41, 7", "64nb*2")
    A("v_add3_u32 v2, v9, v13, s45", "Wo voffset")
    A("s_lshl_b32 s46, s42, 17", "2j*65536")
    A("s_lshl_b32 s47, s40, 11", "2qp*1024")
    A("s_add_u32 s46, s46, s47")
    A(f"s_add_u32 s46, s46, {hex(WS_O)}", "O' soffset for hd = 2j, qt = 0")
    A("s_lshl_b32 s47, s42, 12", "O' LDS: (hd*2+qt)*1024 = 2j*2048")
    A("s_lshl_b32 s48, s42, 12", "Wo LDS: 32j*128")
    A("s_add_u32 s48, s48, 0x10000")
    A("s_mov_b32 s49, 0", "Wo soffset")
    A("s_mov_b32 s50, 0")
    A.label("K3_ISSUE")
    for hh in range(2):
        for qt in range(2):
            A(f"s_add_u32 m0, s47, {hh*2048 + qt*1024}")
            A(f"s_add_u32 s51, s46, {hh*65536 + qt*1024}")
            A("buffer_load_dwordx4 v1, s[4:7], s51 offen lds")
    for u in range(4):
        A(f"s_add_u32 m0, s48, {u*1024}")
        A(f"s_add_u32 s51, s49, {u*8192}")
        A("buffer_load_dwordx4 v2, s[8:11], s51 offen lds")
    A("s_add_u32 s46, s46, 0x80000", "8 heads")
    A("s_add_u32 s47, s47, 0x4000")
    A("s_add_u32 s48, s48, 0x4000")
    A("s_add_u32 s49, s49, 0x20000", "128 rows")
    A("s_add_u32 s50, s50, 1")
    A.c("issue c0 c1 | wait c0, bar | c2 | wait c1, bar | c3 | wait c2, bar | wait c3, bar")
    A("s_cmp_eq_u32 s50, 1")
    A("s_cbranch_scc1 K3_ISSUE")
    A("s_waitcnt vmcnt(8)")
    A("s_barrier")
    A("s_cmp_lt_u32 s50, 4")
    A("s_cbranch_scc1 K3_ISSUE")
    ST(1)
    A("s_waitcnt vmcnt(0)")
    A("s_barrier")
    ST(2)
    ST.dump(3)
    A.label("K3_END")
    if opts.get("rt"): A("s_waitcnt vmcnt(0)")
    rt_stamp(A, 2, 1, opts.get("rt"))
    A("s_endpgm")
    return name, 80, (96 if (opts.get('stamps') or opts.get('rt')) else 58)
```

```python
from common import *

def gen_k1(A, opts=None):
    opts = opts or {}
    name = "k1_proj_kernel"
    kernel_header(A, name)
    A.c("K1: QKV projection + FNet hidden-DFT stage (folded over s) + gate.  256 WGs x 512 threads")
    A("s_cmp_ge_u32 s2, 256")
    A("s_cbranch_scc1 K1_END")
    rt_stamp(A, 0, 0, opts.get("rt"))
    A("s_load_dwordx4 s[24:27], s[0:1], 0", "x, wqkv")
    A("s_load_dwordx4 s[28:31], s[0:1], 48", "hid_re, hid_im")
    A("s_load_dwordx2 s[32:33], s[0:1], 64", "gate_w")
    A("s_load_dwordx2 s[34:35], s[0:1], 88", "ws")
    A("v_lshrrev_b32 v1, 6, v0")
    A("v_and_b32 v0, 63, v0", "lane")
    A("v_readfirstlane_b32 s36, v1", "wave id")
    if opts.get("map1"):
        A("s_and_b32 s37, s2, 7", "hg = head group")
        A("s_lshr_b32 s38, s2, 3")
        A("s_and_b32 s39, s38, 1", "type: 0 = K|V tile, 1 = Q|FNet tile")
        A("s_lshr_b32 s40, s38, 1", "rb")
    else:
        A.c("workgroups with equal id&7 usually share an XCD (speed only): give them an 8 row-block x 4 column-pair patch")
        A("s_and_b32 s38, s2, 7")
        A("s_lshr_b32 s40, s2, 3", "r")
        A("s_and_b32 s39, s40, 1", "type: 0 = K|V tile, 1 = Q|FNet tile")
        A("s_and_b32 s37, s38, 6")
        A("s_bfe_u32 s41, s40, 0x10001")
        A("s_add_u32 s37, s37, s41", "hg = head group (0..7) = 2*(x>>1) + ((r>>1)&1)")
        A("s_lshr_b32 s40, s40, 2")
        A("s_and_b32 s38, s38, 1")
        A("s_lshl_b32 s38, s38, 3")
        A("s_add_u32 s40, s40, s38", "rb = 8*(x&1) + (r>>2)")
    A("s_waitcnt lgkmcnt(0)")
    srd(A, 16, 34, WS_SIZE)
    ST = Stamps(A, opts.get("stamps"), 0, 16, 36)
    ST(0)
    A("s_cmp_ge_u32 s36, 4")
    A("s_cbranch_scc1 K1_LOADER")

    A.c("compute waves: wr = w>>1, wc = w&1")
    A("s_lshr_b32 s42, s36, 1", "wr")
    A("s_and_b32 s43, s36, 1", "wc")
    if opts.get("touch", 1):
        A.c("L2 warm-up (speed only): the 32 workgroups that usually share an XCD each touch a distinct 1/32 of the lines that XCD needs")
        srd(A, 4, 24, 0x200000)
        A("s_lshr_b32 s50, s2, 3", "r")
        A("s_and_b32 s51, s50, 3", "c")
        A("s_lshr_b32 s50, s50, 2", "i")
        A.c("x: row = c<2 ? 64rb + 32c + l : 2048 - (64rb + 32(c-2) + l) ; chunk = 2w + (lane>>5)")
        A("s_and_b32 s52, s51, 1")
        A("s_lshl_b32 s52, s52, 5")
        A("s_lshl_b32 s53, s40, 6")
        A("s_add_u32 s52, s52, s53")
        A("v_and_b32 v8, 31, v0")
        A("v_add_u32 v8, s52, v8")
        A("v_sub_u32 v9, 0x800, v8")
        A("s_cmp_ge_u32 s51, 2")
        A("s_cselect_b64 s[54:55], -1, 0")
        A("v_cndmask_b32 v8, v8, v9, s[54:55]")
        A("v_lshlrev_b32 v8, 10, v8")
        A("v_lshrrev_b32 v9, 5, v0")
        A("v_lshl_add_u32 v8, v9, 7, v8")
        A("s_lshl_b32 s52, s36, 8", "2w*128")
        A("buffer_load_dword v14, v8, s[4:7], s52 offen")
        A.c("W: waves 0 and 2: chunks 2w + (lane>>4), k row = 64 chunk + 16 (i&3) + (lane&15), group g = i>>2")
        A("s_bitcmp1_b32 s36, 0")
        A("s_cbranch_scc1 K1_NOWT")
        A("s_cmp_lt_u32 s37, 4")
        A("s_cselect_b32 s44, s28, s30")
        A("s_cselect_b32 s45, s29, s31")
        A("s_lshl_b32 s47, s37, 7")
        A("s_and_b32 s49, s37, 3")
        A("s_lshl_b32 s49, s49, 7")
        A("s_add_u32 s53, s47, 2048")
        A("s_movk_i32 s56, 1024")
        A("s_cmp_eq_u32 s39, 0")
        A("s_cselect_b32 s8, s26, s44")
        A("s_cselect_b32 s9, s27, s45")
        A("s_cselect_b32 s46, 3072, s56", "stride1")
        A("s_cselect_b32 s48, s56, 0")
        A("s_cselect_b32 s49, s53, s49", "colbase1*2")
        A("s_add_u32 s48, s48, s47", "colbase0*2")
        A("s_cmp_lt_u32 s50, 4", "group 0 -> wqkv / colbase0 / stride 3072")
        A("s_cselect_b32 s8, s26, s8")
        A("s_cselect_b32 s9, s27, s9")
        A("s_cselect_b32 s46, 3072, s46")
        A("s_cselect_b32 s48, s48, s49")
        A("s_and_b32 s9, s9, 0xffff")
        A("s_cmp_eq_u32 s46, 1024")
        A("s_mov_b32 s10, 0x180000")
        A("s_cselect_b32 s10, 0x80000, s10")
        A("s_mov_b32 s11, 0x20000")
        A("s_and_b32 s52, s50, 3")
        A("s_lshl_b32 s52, s52, 4")
        A("s_lshl_b32 s53, s36, 7", "2w*64")
        A("s_add_u32 s52, s52, s53")
        A("v_lshrrev_b32 v9, 4, v0")
        A("v_lshlrev_b32 v9, 6, v9")
        A("v_and_b32 v10, 15, v0")
        A("v_add3_u32 v9, v9, v10, s52", "k row")
        A("v_mul_lo_u32 v9, v9, s46")
        A("buffer_load_dword v15, v9, s[8:11], s48 offen")
        A.label("K1_NOWT")
    A("v_and_b32 v8, 31, v0", "i")
    A("v_lshrrev_b32 v9, 5, v0", "h")
    A("v_bfe_u32 v10, v0, 1, 3", "sw = (i>>1)&7")
    A("v_xor_b32 v10, v10, v9")
    A("v_lshlrev_b32 v10, 4, v10", "(h^sw)*16")
    A("s_lshl_b32 s44, s42, 13", "wr*64*128")
    A("v_lshlrev_b32 v11, 7, v8")
    A("v_add3_u32 v2, v11, v10, s44", "ax[0]")
    A("v_xor_b32 v3, 32, v2")
    A("v_xor_b32 v4, 64, v2")
    A("v_xor_b32 v5, 0x60, v2")
    A("v_bfe_u32 v10, v0, 2, 2", "r")
    A("v_lshl_add_u32 v11, v9, 3, v10", "8h + r")
    A("v_lshlrev_b32 v11, 7, v11", "*128")
    A("v_bfe_u32 v12, v0, 4, 1", "g'")
    A("v_bfe_u32 v13, v0, 1, 1", "c4>>1")
    A("v_lshl_add_u32 v12, v12, 1, v13", "2g' + (c4>>1)")
    A("v_bfe_u32 v13, v0, 3, 1", "(r>>1)&1")
    A("v_lshlrev_b32 v13, 2, v13")
    A("v_xor_b32 v12, v12, v13", "phys piece (ct=0)")
    A("v_lshlrev_b32 v12, 4, v12")
    A("v_and_b32 v13, 1, v0")
    A("v_lshlrev_b32 v13, 3, v13", "8*(c4&1)")
    A("v_add3_u32 v11, v11, v12, v13")
    A("s_lshl_b32 s44, s43, 13")
    A("s_add_u32 s44, s44, 16384")
    A("v_add_u32 v6, s44, v11", "aw[0]")
    A("v_xor_b32 v7, 64, v6", "aw[1]")
    for r in range(64, 128):
        A(f"v_mov_b32 v{r}, 0")
    XF = [[16, 20], [32, 36]]
    WF = [[24, 28], [40, 44]]
    def acc(rt, ct): return 64 + 16*(2*rt + ct)
    def reads(st, ks):
        L = []
        L.append(f"ds_read_b128 {vr(XF[st][0],4)}, v{2+ks}")
        L.append(f"ds_read_b128 {vr(XF[st][1],4)}, v{2+ks} offset:4096")
        for ct in range(2):
            L.append(f"ds_read_b64_tr_b16 {vr(WF[st][ct],2)}, v{6+ct} offset:{ks*2048}")
            L.append(f"ds_read_b64_tr_b16 {vr(WF[st][ct]+2,2)}, v{6+ct} offset:{ks*2048+512}")
        return L
    def mfmas(st, wc):
        L = []
        for rt in range(2):
            for ct in range(2):
                a = acc(rt, ct)
                if wc == 0:
                    L.append(f"v_mfma_f32_32x32x16_bf16 {vr(a,16)}, {vr(WF[st][ct],4)}, {vr(XF[st][rt],4)}, {vr(a,16)}")
                else:
                    L.append(f"v_mfma_f32_32x32x16_bf16 {vr(a,16)}, {vr(XF[st][rt],4)}, {vr(WF[st][ct],4)}, {vr(a,16)}")
        return L
    ST(1)
    A("s_barrier", "#0: stage 0 landed")
    ST(2)
    for s in reads(0, 0): A(s)
    A("s_mov_b32 s45, 0", "stage counter")
    A("s_cmp_eq_u32 s43, 0")
    A("s_cbranch_scc0 K1_LOOP1")
    for wc in range(2):
        A.raw(".p2align 6")
        A.label(f"K1_LOOP{wc}")
        for ks in range(4):
            st = ks & 1
            A("s_waitcnt lgkmcnt(0)")
            if ks == 3:
                A("s_mov_b32 s46, 0x8000")
                A("s_cmp_eq_u32 s45, 4")
                A("s_cselect_b32 s46, 0xfffe0000, s46", "5-slot ring: slot 4 -> slot 0")
                for r in range(2, 8):
                    A(f"v_add_u32 v{r}, s46, v{r}")
                A("s_cmp_eq_u32 s45, 7")
                lab = f"K1_NOBAR{wc}"
                A(f"s_cbranch_scc1 {lab}")
                A("s_barrier")
                A.label(lab)
            rd = reads(1 - st, (ks + 1) & 3)
            mf = mfmas(st, wc)
            if opts.get("noreads"): rd = ["s_nop 0"]*6
            if opts.get("nomfma"): mf = ["s_nop 0"]*4
            A(mf[0]); A(rd[0]); A(rd[1]); A(rd[2]); A(mf[1]); A(rd[3]); A(rd[4]); A(rd[5]); A(mf[2]); A(mf[3])
        A("s_add_u32 s45, s45, 1")
        A("s_cmp_lt_u32 s45, 8")
        A(f"s_cbranch_scc1 K1_LOOP{wc}")
        if wc == 0:
            A("s_branch K1_EPI_QK")
    A("s_cmp_eq_u32 s39, 0")
    A("s_cbranch_scc0 K1_EPI_F")

    ST(3)
    A.c("V epilogue")
    A("s_waitcnt lgkmcnt(0)")
    A("v_and_b32 v8, 15, v0", "d")
    A("v_lshlrev_b32 v8, 4, v8")
    A("v_bfe_u32 v9, v0, 4, 1", "head low bit")
    A("v_lshlrev_b32 v9, 16, v9")
    A("v_lshrrev_b32 v10, 5, v0")
    A("v_lshlrev_b32 v10, 8, v10", "h*256")
    A("v_add3_u32 v8, v8, v9, v10")
    A.c("soffset = WS_V + (4x_)*65536 + tile*1024, tile = 4rb + 2wr + rt")
    A("s_lshl_b32 s46, s37, 18")
    A("s_lshl_b32 s47, s40, 2")
    A("s_lshl_b32 s48, s42, 1")
    A("s_add_u32 s47, s47, s48")
    A("s_lshl_b32 s47, s47, 10")
    A("s_add_u32 s46, s46, s47")
    A(f"s_add_u32 s46, s46, {hex(WS_V)}")
    A("s_nop 7")
    tmp = 16
    for rt in range(2):
        for ct in range(2):
            a = acc(rt, ct)
            for ch in range(2):
                for j in range(4):
                    A(f"v_cvt_pk_bf16_f32 v{tmp+j}, v{a+8*ch+2*j}, v{a+8*ch+2*j+1}")
                A(f"s_add_u32 s47, s46, {rt*1024 + ct*2*65536}")
                A(f"buffer_store_dwordx4 {vr(tmp,4)}, v8, s[16:19], s47 offen offset:{ch*512}")
                tmp = 16 + (tmp - 16 + 4) % 32
    ST(4)
    if opts.get("stamps"): A("s_waitcnt vmcnt(0)")
    ST(5)
    ST.dump(6)
    if opts.get("rt"): A("s_waitcnt vmcnt(0)")
    rt_stamp(A, 0, 1, opts.get("rt"))
    A("s_endpgm")

    A.label("K1_EPI_F")
    ST(3)
    A.c("FNet epilogue: A' = acc(s) + acc(mirror) (re), B' = acc(s) - acc(mirror) (im)")
    A("s_waitcnt lgkmcnt(0)")
    A("s_cmp_lt_u32 s37, 4")
    A("s_cselect_b32 s46, 1.0, -1.0", "sign")
    A(f"s_mov_b32 s48, {hex(WS_BP)}")
    A(f"s_cselect_b32 s47, {hex(WS_AP)}, s48")
    A("s_and_b32 s48, s37, 3")
    A("s_lshl_b32 s48, s48, 17", "eblk*65536, eblk = 2*(x_&3)")
    A("s_add_u32 s47, s47, s48")
    A("s_lshl_b32 s48, s40, 2")
    A("s_lshl_b32 s49, s42, 1")
    A("s_add_u32 s48, s48, s49", "ks0 = 4rb + 2wr")
    A("s_lshl_b32 s49, s48, 10")
    A("s_add_u32 s47, s47, s49")
    A("v_lshlrev_b32 v8, 4, v0")
    A("s_nop 4")
    A.c("s == 0 special: row 0 pairs with row 1024 (only for re columns, rb == 0, wr == 0)")
    A("s_cmp_eq_u32 s48, 0")
    A("s_cbranch_scc0 K1_EPI_F2")
    A("s_cmp_lt_u32 s37, 4")
    A("s_cbranch_scc0 K1_EPI_F2")
    A("s_mov_b32 exec_lo, -1", "lanes 0..31")
    A("s_mov_b32 exec_hi, 0")
    A("v_lshlrev_b32 v9, 2, v0")
    A("s_lshl_b32 s49, s37, 8", "e base = 64 x_ -> *4 bytes")
    A(f"s_add_u32 s49, s49, {hex(WS_A1024)}")
    for ct in range(2):
        A(f"buffer_store_dword v{acc(1,ct)}, v9, s[16:19], s49 offen offset:{ct*128}")
    A("s_nop 1")
    for ct in range(2):
        A(f"v_mov_b32 v{acc(1,ct)}, 0")
    A("s_mov_b64 exec, -1")
    A.label("K1_EPI_F2")
    tmp = 16
    for ct in range(2):
        a0 = acc(0, ct); a1 = acc(1, ct)
        for r in range(16):
            A(f"v_fma_f32 v{a0+r}, v{a1+r}, s46, v{a0+r}")
        for ch in range(2):
            for j in range(4):
                A(f"v_cvt_pk_bf16_f32 v{tmp+j}, v{a0+8*ch+2*j}, v{a0+8*ch+2*j+1}")
            A(f"s_add_u32 s49, s47, {ct*65536}")
            A(f"buffer_store_dwordx4 {vr(tmp,4)}, v8, s[16:19], s49 offen offset:{ch*1024}")
            tmp = 16 + (tmp - 16 + 4) % 32
    ST(4)
    if opts.get("stamps"): A("s_waitcnt vmcnt(0)")
    ST(5)
    ST.dump(6)
    if opts.get("rt"): A("s_waitcnt vmcnt(0)")
    rt_stamp(A, 0, 1, opts.get("rt"))
    A("s_endpgm")

    A.label("K1_EPI_QK")
    ST(3)
    A.c("Q/K epilogue")
    A("s_waitcnt lgkmcnt(0)")
    c = 0.25*math.log2(math.e)
    A("s_cmp_eq_u32 s39, 0")
    A(f"s_cselect_b32 s46, 1.0, {hex(f2u(c))}", "K: 1.0, Q: 0.25*log2(e)")
    A(f"s_cselect_b32 s47, {hex(WS_K)}, {hex(WS_Q)}" if WS_Q > 64 else f"s_cselect_b32 s47, {hex(WS_K)}, {WS_Q}")
    A("s_lshl_b32 s48, s37, 18", "head base 4x_ * 65536")
    A("s_add_u32 s47, s47, s48")
    A("s_lshl_b32 s48, s40, 2")
    A("s_lshl_b32 s49, s42, 1")
    A("s_add_u32 s48, s48, s49")
    A("s_lshl_b32 s48, s48, 10", "tile*1024")
    A("s_add_u32 s47, s47, s48")
    A("v_lshlrev_b32 v8, 4, v0")
    A("s_nop 7")
    tmp = 16
    for rt in range(2):
        for ct in range(2):
            a = acc(rt, ct)
            for hd in range(2):
                for j in range(8):
                    A(f"v_mul_f32 v{a+8*hd+j}, s46, v{a+8*hd+j}")
                for j in range(4):
                    A(f"v_cvt_pk_bf16_f32 v{tmp+j}, v{a+8*hd+2*j}, v{a+8*hd+2*j+1}")
                A(f"s_add_u32 s49, s47, {rt*1024 + (2*ct+hd)*65536}")
                A(f"buffer_store_dwordx4 {vr(tmp,4)}, v8, s[16:19], s49 offen")
                tmp = 16 + (tmp - 16 + 4) % 32
    ST(4)
    if opts.get("stamps"): A("s_waitcnt vmcnt(0)")
    ST(5)
    ST.dump(6)
    if opts.get("rt"): A("s_waitcnt vmcnt(0)")
    rt_stamp(A, 0, 1, opts.get("rt"))
    A("s_endpgm")

    A.label("K1_LOADER")
    srd(A, 4, 24, 0x200000)
    A("s_sub_u32 s41, s36, 4", "j")
    A("s_lshr_b32 s42, s41, 1", "wr")
    A("s_and_b32 s43, s41, 1", "rt")
    A("v_lshrrev_b32 v9, 3, v0", "a")
    A("v_lshrrev_b32 v10, 2, v9")
    A("v_lshlrev_b32 v10, 3, v10", "8*(a>>2)")
    A("v_and_b32 v11, 3, v9")
    A("s_lshl_b32 s52, s40, 6")
    A("s_lshl_b32 s53, s42, 5")
    A("s_add_u32 s52, s52, s53", "64rb + 32wr")
    A("v_add3_u32 v10, v10, v11, s52", "sa")
    A("v_and_b32 v11, 7, v0")
    A("v_lshrrev_b32 v12, 1, v9")
    A("v_xor_b32 v12, v11, v12", "p0")
    A("s_cmp_eq_u32 s43, 1")
    A("s_cselect_b64 s[68:69], -1, 0")
    A("v_mov_b32 v14, 0x400")
    A("s_lshl_b32 s53, s41, 12", "j*4096")
    A.c("K-chunk order is rotated per workgroup so that workgroups sharing x rows / W columns first-touch different chunks")
    A("s_lshr_b32 s66, s2, 3", "r")
    A("s_lshr_b32 s67, s66, 2")
    A("s_and_b32 s66, s66, 3")
    A("s_lshl_b32 s66, s66, 1")
    A("s_add_u32 s66, s66, s67")
    A("s_and_b32 s66, s66, 7" if opts.get("rot", 1) else "s_mov_b32 s66, 0", "kappa")
    A("s_lshl_b32 s55, s66, 7", "x soffset = kappa*128")
    for u in range(4):
        A(f"v_add_u32 v13, {16*(u>>1)+4*(u&1)}, v10")
        A(f"v_sub_u32 v15, 0x800, v13")
        A(f"v_cndmask_b32 v13, v13, v15, s[68:69]")
        if u == 0:
            A("v_cmp_eq_u32 vcc, 0x800, v13")
            A("s_nop 1")
            A("v_cndmask_b32 v13, v13, v14, vcc")
        A(f"v_lshlrev_b32 v13, 10, v13")
        if u & 1:
            A(f"v_xor_b32 v15, 4, v12")
            A(f"v_lshl_add_u32 v{2+u}, v15, 4, v13")
        else:
            A(f"v_lshl_add_u32 v{2+u}, v12, 4, v13")
        A(f"s_add_u32 m0, s53, {u*1024}")
        A("s_nop 0")
        A(f"buffer_load_dwordx4 v{2+u}, s[4:7], s55 offen lds", "x, stage 0")
    srd(A, 8, 26, 0x180000)
    srd(A, 20, 32, 0x400)
    A.c("W1 source: type 0 -> wqkv V columns; type 1 -> hid_re (hg<4) / hid_im")
    A("s_cmp_lt_u32 s37, 4")
    A("s_cselect_b32 s44, s28, s30")
    A("s_cselect_b32 s45, s29, s31")
    A("s_lshl_b32 s47, s37, 7", "64 hg * 2")
    A("s_and_b32 s49, s37, 3")
    A("s_lshl_b32 s49, s49, 7", "64 (hg&3) * 2")
    A("s_add_u32 s63, s47, 2048", "(1024 + 64hg)*2")
    A("s_mov_b32 s64, 0x80000")
    A("s_movk_i32 s65, 1024")
    A("s_cmp_eq_u32 s39, 0")
    A("s_cselect_b32 s12, s26, s44")
    A("s_cselect_b32 s13, s27, s45")
    A("s_cselect_b32 s14, 0x180000, s64")
    A("s_mov_b32 s15, 0x20000")
    A("s_cselect_b32 s46, 3072, s65", "stride1")
    A("s_cselect_b32 s48, s65, 0", "type0: K columns start at 512")
    A("s_cselect_b32 s49, s63, s49", "colbase1*2")
    A("s_and_b32 s13, s13, 0xffff")
    A("s_add_u32 s48, s48, s47", "colbase0*2")
    A("v_bfe_u32 v13, v9, 1, 1")
    A("v_lshlrev_b32 v13, 2, v13")
    A("v_xor_b32 v13, v11, v13", "q")
    A("v_lshlrev_b32 v13, 4, v13", "q*16")
    A("s_lshl_b32 s52, s41, 4")
    A("v_add_u32 v15, s52, v9", "k = 16j + a")
    A("s_movk_i32 s63, 3072")
    A("v_mul_lo_u32 v6, v15, s63")
    A("v_add3_u32 v6, v6, v13, s48")
    A("v_mul_lo_u32 v7, v15, s46")
    A("v_add3_u32 v7, v7, v13, s49")
    A("s_lshl_b32 s54, s41, 11")
    A("s_add_u32 s54, s54, 16384", "16384 + j*2048")
    A("s_mov_b32 s52, 0", "slot base")
    A("s_lshl_b32 s58, s46, 3", "8*stride1")
    A("s_lshl_b32 s59, s46, 6", "64*stride1")
    A("s_mul_i32 s56, s66, 196608", "w0 soffset")
    A("s_mul_i32 s57, s66, s59", "w1 soffset")
    A("s_mov_b32 s62, 0", "cnt")
    A("s_branch K1_ISSUE_W")
    A.label("K1_ISSUE")
    A("s_add_u32 s60, s52, s53")
    for u in range(4):
        A(f"s_add_u32 m0, s60, {u*1024}")
        A("s_nop 0")
        if not opts.get("nodma"): A(f"buffer_load_dwordx4 v{2+u}, s[4:7], s55 offen lds")
    A.label("K1_ISSUE_W")
    A("s_add_u32 s60, s52, s54")
    A("s_mov_b32 m0, s60")
    A("s_add_u32 s61, s56, 24576")
    if not opts.get('nodma'): A("buffer_load_dwordx4 v6, s[8:11], s56 offen lds")
    A("s_add_u32 m0, s60, 1024")
    A("s_nop 0")
    if not opts.get('nodma'): A("buffer_load_dwordx4 v6, s[8:11], s61 offen lds")
    A("s_add_u32 m0, s60, 8192")
    A("s_add_u32 s61, s57, s58")
    if not opts.get('nodma'): A("buffer_load_dwordx4 v7, s[12:15], s57 offen lds")
    A("s_add_u32 m0, s60, 9216")
    A("s_nop 0")
    if not opts.get('nodma'): A("buffer_load_dwordx4 v7, s[12:15], s61 offen lds")
    A("s_add_u32 s52, s52, 0x8000")
    A("s_cmp_eq_u32 s52, 0x28000")
    A("s_cselect_b32 s52, 0, s52", "5-slot ring")
    A("s_add_u32 s55, s55, 128")
    A("s_add_u32 s56, s56, 196608")
    A("s_add_u32 s57, s57, s59")
    A("s_cmp_eq_u32 s55, 1024", "kappa wraps")
    A("s_cselect_b32 s55, 0, s55")
    A("s_cselect_b32 s56, 0, s56")
    A("s_cselect_b32 s57, 0, s57")
    A("s_add_u32 s62, s62, 1")
    A.c("st0 st1 | wait st0, bar0 | st2 st3 | wait st1, bar1 | st4 st5 | wait st2, bar2 | st6 | bar3 | st7 | bar4 | bar5 | bar6 | bar7")
    A("s_bitcmp1_b32 0x2a, s62", "after issuing stage 0, 2, 4 (cnt = 1, 3, 5): issue the next one at once")
    A("s_cbranch_scc1 K1_ISSUE")
    A("s_cmp_eq_u32 s62, 2")
    A("s_cbranch_scc0 K1_NOT2")
    ST(1)
    A("s_waitcnt vmcnt(8)")
    A("s_barrier", "#0")
    ST(2)
    A("s_branch K1_ISSUE")
    A.label("K1_NOT2")
    A("s_cmp_eq_u32 s62, 4")
    A("s_cbranch_scc0 K1_NOT4")
    A("s_waitcnt vmcnt(16)")
    A("s_barrier", "#1")
    A("s_branch K1_ISSUE")
    A.label("K1_NOT4")
    A("s_waitcnt vmcnt(24)")
    A("s_barrier", "#2 (cnt 6), #3 (cnt 7), #4 (cnt 8)")
    A("s_cmp_lt_u32 s62, 8")
    A("s_cbranch_scc1 K1_ISSUE")
    A("s_waitcnt vmcnt(16)")
    A("s_barrier", "#5")
    A.c("gate rows (loaded now: the DMA queue is nearly drained): pair pi = (2hg+type)*4 + j ; s = 64rb + pi")
    A("s_lshl_b32 s50, s37, 1")
    A("s_add_u32 s50, s50, s39")
    A("s_lshl_b32 s50, s50, 2")
    A("s_add_u32 s50, s50, s41")
    A("s_lshl_b32 s51, s40, 6")
    A("s_add_u32 s50, s50, s51", "s50 = s")
    A("s_sub_u32 s51, 2048, s50")
    A("s_cmp_eq_u32 s50, 0")
    A("s_cselect_b32 s51, 1024, s51", "s51 = mirror row")
    A("v_lshlrev_b32 v8, 4, v0")
    A("s_lshl_b32 s52, s50, 10")
    A("s_lshl_b32 s53, s51, 10")
    A("buffer_load_dwordx4 v[16:19], v8, s[4:7], s52 offen")
    A("buffer_load_dwordx4 v[20:23], v8, s[4:7], s53 offen")
    A("buffer_load_dwordx4 v[24:27], v8, s[20:23], 0 offen")
    A("s_waitcnt vmcnt(11)")
    A("s_barrier", "#6")
    A("s_waitcnt vmcnt(3)")
    A("s_barrier", "#7")
    ST(3)
    A("s_waitcnt vmcnt(0)")
    A.c("gate z = sum x*w ; alt = sum (-1)^d x   for rows s (v16..19) and mirror (v20..23)")
    for j in range(4):
        A(f"v_lshlrev_b32 v{28+2*j}, 16, v{24+j}", "w lo")
        A(f"v_and_b32 v{29+2*j}, 0xffff0000, v{24+j}", "w hi")
    for row in range(2):
        z = 40 + row; al = 42 + row
        for j in range(4):
            src = 16 + 4*row + j
            A(f"v_lshlrev_b32 v36, 16, v{src}")
            A(f"v_and_b32 v37, 0xffff0000, v{src}")
            if j == 0:
                A(f"v_mul_f32 v{z}, v36, v28")
                A(f"v_sub_f32 v{al}, v36, v37")
            else:
                A(f"v_fmac_f32 v{z}, v36, v{28+2*j}")
                A(f"v_add_f32 v{al}, v{al}, v36")
                A(f"v_sub_f32 v{al}, v{al}, v37")
            A(f"v_fmac_f32 v{z}, v37, v{29+2*j}")
    A("s_nop 1")
    for dpp in ["quad_perm:[1,0,3,2] row_mask:0xf bank_mask:0xf", "quad_perm:[2,3,0,1] row_mask:0xf bank_mask:0xf",
                "row_half_mirror row_mask:0xf bank_mask:0xf", "row_mirror row_mask:0xf bank_mask:0xf",
                "row_bcast:15 row_mask:0xa bank_mask:0xf", "row_bcast:31 row_mask:0xc bank_mask:0xf"]:
        for r in range(40, 44):
            A(f"v_add_f32_dpp v{r}, v{r}, v{r} {dpp}")
    A("s_nop 1")
    A("s_mov_b32 exec_lo, 0")
    A("s_mov_b32 exec_hi, 0x80000000", "lane 63 holds the totals")
    nl2e = f2u(-math.log2(math.e))
    for row in range(2):
        A(f"v_mul_f32 v{40+row}, {hex(nl2e)}, v{40+row}")
        A(f"v_exp_f32 v{40+row}, v{40+row}")
        A("s_nop 0")
        A(f"v_add_f32 v{40+row}, 1.0, v{40+row}")
        A(f"v_rcp_f32 v{40+row}, v{40+row}")
    A("s_lshl_b32 s52, s50, 2")
    A("s_lshl_b32 s53, s51, 2")
    A(f"s_add_u32 s52, s52, {hex(WS_G)}")
    A(f"s_add_u32 s53, s53, {hex(WS_G)}")
    A("v_mov_b32 v8, 0")
    A("buffer_store_dword v40, v8, s[16:19], s52 offen")
    A("buffer_store_dword v41, v8, s[16:19], s53 offen")
    A.c("A'256[s] = alt(s) + alt(mirror)  (s >= 1);  s == 0: A'256[0] = alt(0), A1024[256] = alt(1024)")
    A("s_cmp_eq_u32 s50, 0")
    A("s_cbranch_scc0 K1_G2")
    A(f"s_mov_b32 s52, {hex(WS_A1024 + 256*4)}")
    A("buffer_store_dword v43, v8, s[16:19], s52 offen")
    A("s_nop 1")
    A("v_mov_b32 v43, 0")
    A.label("K1_G2")
    A("v_add_f32 v42, v42, v43")
    A("s_lshr_b32 s52, s50, 4")
    A("s_lshl_b32 s52, s52, 10", "ks*1024")
    A("s_bfe_u32 s53, s50, 0x10003", "(s>>3)&1")
    A("s_lshl_b32 s53, s53, 9")
    A("s_add_u32 s52, s52, s53")
    A("s_and_b32 s53, s50, 7")
    A("s_lshl_b32 s53, s53, 1")
    A("s_add_u32 s52, s52, s53")
    A(f"s_add_u32 s52, s52, {hex(WS_AP + 8*65536)}")
    A("v_cvt_pk_bf16_f32 v42, v42, v42")
    A("buffer_store_short v42, v8, s[16:19], s52 offen")
    ST(4)
    ST(5)
    ST.dump(6)
    A.label("K1_END")
    if opts.get("rt"): A("s_waitcnt vmcnt(0)")
    rt_stamp(A, 0, 1, opts.get("rt"))
    A("s_endpgm")
    return name, 128, (96 if (opts.get('stamps') or opts.get('rt')) else 70)
```

```python
from common import *

LDS_V = 65536
LDS_F = 131072
LDS_X = LDS_F + 12288
LDS_ONES = LDS_X + 18432
LDS_CNT = LDS_ONES + 1664
K2_LDS = LDS_CNT + 64
assert LDS_ONES % 256 == 0 and K2_LDS <= 163840

def gen_k2(A, opts=None):
    opts = opts or {}
    name = "k2_attn_kernel"
    kernel_header(A, name)
    A.c("K2: attention (8 waves) + K/V loaders & FNet sequence-DFT stage (4 waves).  256 WGs x 768 threads")
    A("s_cmp_ge_u32 s2, 256")
    A("s_cbranch_scc1 K2_END")
    rt_stamp(A, 1, 0, opts.get("rt"))
    A("s_load_dwordx4 s[24:27], s[0:1], 32", "seq_re, seq_im")
    A("s_load_dwordx2 s[34:35], s[0:1], 88", "ws")
    A("v_lshrrev_b32 v1, 6, v0")
    A("v_and_b32 v0, 63, v0", "lane")
    A("v_readfirstlane_b32 s36, v1", "wave id")
    A("s_and_b32 s37, s2, 7", "x_")
    A("s_lshr_b32 s38, s2, 3", "r")
    A("s_and_b32 s39, s38, 3")
    A("s_lshl_b32 s40, s37, 2")
    A("s_add_u32 s40, s40, s39", "head = 4x_ + (r&3)   (also FNet t-block i)")
    A("s_lshr_b32 s41, s38, 2", "qb (also FNet e-block)")
    A("s_waitcnt lgkmcnt(0)")
    srd(A, 4, 34, WS_SIZE)
    ST = Stamps(A, opts.get("stamps"), 1, 4, 36)
    ST(0)
    if opts.get("clk"): clk_stamp(A, 12)
    A("s_cmp_ge_u32 s36, 8")
    A("s_cbranch_scc1 K2_FNET")

    QA, QB, KF, V0, V1, P, SA, SB, OA, OB, CN = 4, 8, 12, 16, 20, 24, 32, 48, 64, 80, 100
    A("s_and_b32 s42, s36, 3", "qp: query-tile pair")
    A("s_lshr_b32 s49, s36, 2", "kh: key half")
    A("s_lshl_b32 s43, s41, 3")
    A("s_lshl_b32 s44, s42, 1")
    A("s_add_u32 s44, s44, s43", "q tile a = 8 qb + 2 qp")
    A("s_lshl_b32 s43, s40, 16")
    A("s_lshl_b32 s44, s44, 10")
    A("s_add_u32 s43, s43, s44", "head*65536 + tile_a*1024")
    A("v_lshlrev_b32 v1, 4, v0", "lane*16")
    A(f"s_add_u32 s45, s43, {hex(WS_Q)}" if WS_Q else "s_mov_b32 s45, s43")
    A(f"buffer_load_dwordx4 {vr(QA,4)}, v1, s[4:7], s45 offen")
    A(f"buffer_load_dwordx4 {vr(QB,4)}, v1, s[4:7], s45 offen offset:1024")
    A("s_lshl_b32 s50, s49, 15", "kh*32768")
    A("v_add_u32 v2, s50, v1", "K address")
    A.c("V address: lanes with (l&31)<16 read V rows; the others read a strip of bf16 ones (row sums come out of the same MFMA)")
    A("v_lshrrev_b32 v3, 5, v0")
    A("v_lshlrev_b32 v3, 8, v3", "h*256")
    A("v_and_b32 v28, 15, v0")
    A("v_lshl_add_u32 v3, v28, 4, v3")
    A(f"s_add_u32 s51, s50, {LDS_V}")
    A("v_add_u32 v3, s51, v3", "real V address")
    A("v_add_u32 v28, 4, v0")
    A("v_bfe_u32 v28, v28, 3, 1", "1 for lanes 20..27 (mod 32)")
    A("v_lshlrev_b32 v28, 6, v28", "-> strip offset 64 (zeros, other banks)")
    if opts.get("zrows", 1):
        A("v_and_b32 v29, 31, v0")
        A("v_cmp_eq_u32 vcc, 16, v29")
        A("v_max_u32 v29, 16, v28", "other lanes: offset 16 or 64 (zeros)")
        A("v_mov_b32 v30, 0")
        A("v_cndmask_b32 v28, v29, v30, vcc", "lane 16 / 48: offset 0 (ones)")
    A(f"v_add_u32 v28, {LDS_ONES - 512}, v28")
    A("v_bfe_u32 v29, v0, 4, 1")
    A("v_cmp_eq_u32 vcc, 0, v29")
    A("v_mov_b32 v30, 0")
    A("v_mov_b32 v31, 2048")
    A("v_mov_b32 v97, v3", "real address (prologue / fallback)")
    A("v_cndmask_b32 v3, v28, v3, vcc")
    A("v_cndmask_b32 v96, v30, v31, vcc", "per-iteration increment (0 for ones lanes)")
    for r in range(16): A(f"v_mov_b32 v{OA+r}, 0")
    for r in range(16): A(f"v_mov_b32 v{OB+r}, 0")
    for r in range(4, 8): A(f"v_mov_b32 v{P+r}, 0")
    if opts.get("zrows", 1):
        A("v_and_b32 v29, 31, v0")
        A("v_cmp_eq_u32 vcc, 16, v29")
        A("v_mov_b32 v30, 0x3f803f80")
        A("v_mov_b32 v31, 0")
        A("v_cndmask_b32 v98, v31, v30, vcc", "ones in the row-16 lanes, zeros in rows 17..31")
    else:
        A("v_mov_b32 v98, 0x3f803f80")
    for r in range(4): A(f"v_mov_b32 v{V0+r}, v98")
    for r in range(4): A(f"v_mov_b32 v{V1+r}, 0")
    A("s_mov_b32 s46, 0x0000ffff")
    A("s_mov_b32 s47, 0x0000ffff", "exec mask of the real V lanes")
    A("s_mov_b32 s48, 0", "iteration")
    if opts.get("pprio"): A("s_setprio 3")
    A("s_barrier", "#0: chunk 0 of K/V landed")
    ST(1)
    A(f"ds_read_b128 {vr(KF,4)}, v2")
    A("s_mov_b64 exec, s[46:47]")
    A(f"ds_read_b128 {vr(V0,4)}, v97")
    A("s_mov_b64 exec, -1")
    A("s_waitcnt vmcnt(0) lgkmcnt(0)")
    A(f"v_mfma_f32_32x32x16_bf16 {vr(SA,16)}, {vr(KF,4)}, {vr(QA,4)}, 0")
    A("s_nop 15")
    A.raw(".p2align 6")
    A.label("K2_LOOP")
    def substep(S, mid1, mid2, mid3):
        e = lambda j: A(f"v_exp_f32 v{S+j}, v{S+j}")
        cv = lambda j: A(f"v_cvt_pk_bf16_f32 v{P+j}, v{S+2*j}, v{S+2*j+1}")
        mid1()
        e(0); e(1); e(2); e(3); cv(0); cv(1)
        mid2()
        e(4); e(5); e(6); e(7); cv(2); cv(3); e(8); e(9)
        mid3()
        e(10); e(11); cv(4); e(12); e(13); cv(5); e(14); e(15); cv(6); cv(7)
    mf = lambda d, a, b, c: A(f"v_mfma_f32_32x32x16_bf16 {vr(d,16)}, {vr(a,4)}, {vr(b,4)}, {c}")
    for u in range(2):
        if u == 1:
            A("s_and_b32 s52, s48, 13")
            A("s_cmp_eq_u32 s52, 0", "iterations 0 and 2")
            A("s_cbranch_scc0 K2_NOBAR")
            A("s_barrier", "#1 / #2: later K/V chunks landed")
            A.label("K2_NOBAR")
        def a1():
            mf(SB, KF, QB, "0")
            A(f"ds_read_b128 {vr(KF,4)}, v2 offset:{(u+1)*1024}")
        def a2():
            mf(OB, V1, P+4, vr(OB,16))
            A(f"ds_read_b128 {vr(V1,4)}, v3 offset:{u*1024+512}")
        def a3():
            A("s_waitcnt lgkmcnt(2)")
            mf(OA, V0, P, vr(OA,16))
        substep(SA, a1, a2, a3)
        def b1():
            A("s_waitcnt lgkmcnt(0)")
            mf(SA, KF, QA, "0")
        def b2():
            mf(OA, V1, P+4, vr(OA,16))
        def b3():
            mf(OB, V0, P, vr(OB,16))
            A(f"ds_read_b128 {vr(V0,4)}, v3 offset:{(u+1)*1024}")
        substep(SB, b1, b2, b3)
    A("v_add_u32 v2, 0x800, v2")
    A("v_add_u32 v3, v96, v3")
    if opts.get("itst"):
        A("s_memtime s[70:71]")
        A("s_lshl_b32 s72, s2, 4")
        A("s_add_u32 s72, s72, s36")
        A("s_lshl_b32 s72, s72, 6")
        A("s_lshl_b32 s73, s48, 2")
        A("s_add_u32 s72, s72, s73")
        A(f"s_add_u32 s72, s72, {hex(WS_STAMP + 3*0x40000)}")
        A("s_waitcnt lgkmcnt(0)")
        A("v_mov_b32 v99, s70")
        A("v_mov_b32 v100, 0")
        A("s_mov_b64 exec, 1")
        A("buffer_store_dword v99, v100, s[4:7], s72 offen")
        A("s_mov_b64 exec, -1")
    A("s_add_u32 s48, s48, 1")
    if opts.get("pprio"):
        A.c("a wave that is behind gets the higher priority: 3,2,1,0 for iterations 0-3, 4-7, 8-11, 12-15")
        for lv, itn in ((2, 4), (1, 8), (0, 12)):
            lab = A.newlabel("K2_PR")
            A(f"s_cmp_eq_u32 s48, {itn}")
            A(f"s_cbranch_scc0 {lab}")
            A(f"s_setprio {lv}")
            A.label(lab)
    A("s_cmp_lt_u32 s48, 16")
    A("s_cbranch_scc1 K2_LOOP")
    ST(2)
    mf(OB, V1, P+4, vr(OB,16))
    A("s_waitcnt lgkmcnt(0)")
    A("s_nop 15")
    A.c("combine the two key halves: wave kh keeps query tile (a if kh==0 else b) and hands the other one to its partner (wave ^ 4)")
    A("s_cmp_eq_u32 s49, 0")
    A("s_cbranch_scc1 K2_KEEPA")
    for r in range(9):
        A(f"v_mov_b32 v{32+r}, v{OA+r}", "give a")
        A(f"v_mov_b32 v{OA+r}, v{OB+r}", "keep b")
    A("s_add_u32 s43, s43, 1024", "own tile = b")
    A("s_branch K2_XCH")
    A.label("K2_KEEPA")
    for r in range(9): A(f"v_mov_b32 v{32+r}, v{OB+r}", "give b")
    A.label("K2_XCH")
    O = OA
    A("s_mul_i32 s50, s36, 2304")
    A(f"s_add_u32 s50, s50, {LDS_X}")
    A("v_lshlrev_b32 v28, 2, v0")
    A("v_add_u32 v29, s50, v28")
    for r in range(9): A(f"ds_write_b32 v29, v{32+r} offset:{r*256}")
    A("s_lshl_b32 s51, s36, 2")
    A(f"s_add_u32 s51, s51, {LDS_CNT + 16}")
    A("v_mov_b32 v30, s51")
    A("v_mov_b32 v31, 1")
    A("s_waitcnt lgkmcnt(0)")
    A("ds_write_b32 v30, v31", "flag: my hand-over is in LDS")
    A("s_xor_b32 s52, s36, 4", "partner")
    A("s_mul_i32 s50, s52, 2304")
    A(f"s_add_u32 s50, s50, {LDS_X}")
    A("v_add_u32 v29, s50, v28")
    A("s_lshl_b32 s51, s52, 2")
    A(f"s_add_u32 s51, s51, {LDS_CNT + 16}")
    A("v_mov_b32 v30, s51")
    A.label("K2_XSPIN")
    A("ds_read_b32 v31, v30")
    A("s_waitcnt lgkmcnt(0)")
    A("v_readfirstlane_b32 s52, v31")
    A("s_cmp_eq_u32 s52, 1")
    A("s_cbranch_scc1 K2_XGO")
    A("s_sleep 1")
    A("s_branch K2_XSPIN")
    A.label("K2_XGO")
    for r in range(9): A(f"ds_read_b32 v{32+r}, v29 offset:{r*256}")
    A("s_waitcnt lgkmcnt(0)")
    for r in range(9): A(f"v_add_f32 v{O+r}, v{O+r}, v{32+r}")
    A.c("row 16 of O^T holds the row sum l (ones rows of the V operand)")
    def normalize():
        if opts.get("zrows", 1):
            A(f"v_mov_b32 v29, v{O+8}")
            A("s_nop 1")
            A(f"v_permlane32_swap_b32 v29, v{O+8}", "l lives in lanes 0..31 only: copy it to the upper half")
            A("s_nop 1")
            A(f"v_mov_b32 v{O+8}, v29")
        A(f"v_rcp_f32 v28, v{O+8}")
        A("s_nop 0")
        for r in range(8): A(f"v_mul_f32 v{O+r}, v{O+r}, v28")
    normalize()
    A(f"v_mov_b32 v29, v{O+8}", "l")
    A.c("run-time guard: softmax is shift invariant, so the unshifted exponentials give the same result as long as l stays far")
    A.c("from the fp32 range limits and O is finite; otherwise this tile is recomputed below with the true row max subtracted")
    A(f"v_add_f32 v30, abs(v{O}), abs(v{O+1})")
    for r in range(2, 8): A(f"v_add_f32 v30, v30, abs(v{O+r})")
    A(f"v_cmp_nle_f32 vcc, {hex(f2u(2.0**-60))}, v29", "!(2^-60 <= l)")
    A(f"s_mov_b32 s50, {hex(f2u(2.0**60))}")
    A(f"v_cmp_nle_f32 s[52:53], v29, s50", "!(l <= 2^60)")
    A(f"s_mov_b32 s50, {hex(f2u(2.0**126))}")
    A(f"v_cmp_nle_f32 s[54:55], v30, s50", "O not finite")
    A("s_nop 4")
    A("s_or_b64 vcc, vcc, s[52:53]")
    A("s_or_b64 vcc, vcc, s[54:55]")
    if opts.get("force_fallback"):
        A("s_mov_b64 vcc, -1")
    A("s_cmp_lg_u64 vcc, 0")
    A("s_cbranch_scc1 K2_FALLBACK")
    A.label("K2_STORE")
    for j in range(4): A(f"v_cvt_pk_bf16_f32 v{P+j}, v{O+2*j}, v{O+2*j+1}")
    A(f"s_add_u32 s45, s43, {hex(WS_O)}")
    A(f"buffer_store_dwordx4 {vr(P,4)}, v1, s[4:7], s45 offen")
    ST(3)
    if opts.get("clk"): clk_stamp(A, 14)
    ST.dump(4)
    if opts.get("rt"): A("s_waitcnt vmcnt(0)")
    rt_stamp(A, 1, 1, opts.get("rt"))
    A("s_endpgm")

    A.label("K2_FALLBACK")
    Q = QA
    A("s_cmp_eq_u32 s49, 0")
    A("s_cbranch_scc1 K2_FB0")
    for r in range(4): A(f"v_mov_b32 v{QA+r}, v{QB+r}")
    A.label("K2_FB0")
    A("v_mov_b32 v2, v1")
    A("v_mov_b32 v29, 0xff800000", "running max = -inf")
    A("s_mov_b32 s48, 0")
    A.label("K2_FB1")
    A(f"ds_read_b128 {vr(KF,4)}, v2")
    A("s_waitcnt lgkmcnt(0)")
    A(f"v_mfma_f32_32x32x16_bf16 {vr(SA,16)}, {vr(KF,4)}, {vr(Q,4)}, 0")
    A("s_nop 15")
    for r in range(0, 16, 2): A(f"v_max3_f32 v29, v{SA+r}, v{SA+r+1}, v29")
    A("v_add_u32 v2, 1024, v2")
    A("s_add_u32 s48, s48, 1")
    A("s_cmp_lt_u32 s48, 64")
    A("s_cbranch_scc1 K2_FB1")
    A("v_mov_b32 v30, v29")
    A("s_nop 1")
    A("v_permlane32_swap_b32 v30, v29")
    A("s_nop 1")
    A("v_max_f32 v29, v29, v30", "row max over both lane halves")
    for r in range(16): A(f"v_sub_f32 v{CN+r}, 0, v29")
    for r in range(16): A(f"v_mov_b32 v{O+r}, 0")
    for r in range(8): A(f"v_mov_b32 v{V0+r}, v98")
    A("v_mov_b32 v2, v1")
    A("s_lshl_b32 s50, s49, 15")
    A("v_subrev_u32 v3, s50, v97", "V address of tile 0")
    A("s_mov_b32 s48, 0")
    A.label("K2_FB2")
    A(f"ds_read_b128 {vr(KF,4)}, v2")
    A("s_mov_b64 exec, s[46:47]")
    A(f"ds_read_b128 {vr(V0,4)}, v3")
    A(f"ds_read_b128 {vr(V1,4)}, v3 offset:512")
    A("s_mov_b64 exec, -1")
    A("s_waitcnt lgkmcnt(0)")
    A(f"v_mfma_f32_32x32x16_bf16 {vr(SA,16)}, {vr(KF,4)}, {vr(Q,4)}, {vr(CN,16)}")
    A("s_nop 15")
    for r in range(16): A(f"v_exp_f32 v{SA+r}, v{SA+r}")
    A("s_nop 0")
    for j in range(8): A(f"v_cvt_pk_bf16_f32 v{P+j}, v{SA+2*j}, v{SA+2*j+1}")
    A("s_nop 1")
    A(f"v_mfma_f32_32x32x16_bf16 {vr(O,16)}, {vr(V0,4)}, {vr(P,4)}, {vr(O,16)}")
    A(f"v_mfma_f32_32x32x16_bf16 {vr(O,16)}, {vr(V1,4)}, {vr(P+4,4)}, {vr(O,16)}")
    A("v_add_u32 v2, 1024, v2")
    A("v_add_u32 v3, 1024, v3")
    A("s_add_u32 s48, s48, 1")
    A("s_cmp_lt_u32 s48, 64")
    A("s_cbranch_scc1 K2_FB2")
    A("s_nop 15")
    normalize()
    A("s_branch K2_STORE")

    A.label("K2_FNET")
    if opts.get("fprio", 2): A(f"s_setprio {opts.get('fprio', 2)}")
    A("s_sub_u32 s42, s36, 8", "j")
    A("v_lshlrev_b32 v1, 4, v0", "lane*16")
    A("s_lshl_b32 s43, s40, 16", "head*65536")
    A(f"s_add_u32 s44, s43, {hex(WS_K)}")
    A(f"s_add_u32 s45, s43, {hex(WS_V)}")
    def dma(first_tile_sreg, n, lab):
        A("s_mov_b32 s48, 0")
        A.label(lab)
        A("s_mov_b32 m0, s46")
        A("s_add_u32 s47, s44, s46")
        A("buffer_load_dwordx4 v1, s[4:7], s47 offen lds")
        A(f"s_add_u32 m0, s46, {LDS_V}")
        A("s_add_u32 s47, s45, s46")
        A("buffer_load_dwordx4 v1, s[4:7], s47 offen lds")
        A("s_add_u32 s46, s46, 1024")
        A("s_add_u32 s48, s48, 1")
        A(f"s_cmp_lt_u32 s48, {n}")
        A(f"s_cbranch_scc1 {lab}")
    A.c("local tiles (per key half): chunk 0: {0,1}; chunk 1: {2..5}; chunk 2: {6..31}.  wave j: half = j>>1")
    A("s_lshr_b32 s52, s42, 1")
    A("s_lshl_b32 s52, s52, 15", "half*32768")
    A("s_and_b32 s53, s42, 1")
    A("s_lshl_b32 s46, s53, 10")
    A("s_add_u32 s46, s46, s52")
    dma(46, 1, "K2_DMA0")
    A("s_lshl_b32 s46, s53, 11")
    A("s_add_u32 s46, s46, s52")
    A("s_add_u32 s46, s46, 2048")
    dma(46, 2, "K2_DMA1")
    A.c("ones strip and flags")
    if opts.get("zrows", 1):
        A("v_and_b32 v5, 15, v0")
        A("v_cmp_eq_u32 vcc, 0, v5")
        A("v_mov_b32 v6, 0x3f803f80")
        A("v_mov_b32 v7, 0")
        A("v_cndmask_b32 v4, v7, v6, vcc")
    else:
        A("v_mov_b32 v4, 0x3f803f80")
    A("v_mov_b32 v5, v4")
    A("v_mov_b32 v6, v4")
    A("v_mov_b32 v7, v4")
    A(f"v_add_u32 v2, {LDS_ONES}, v1")
    A("ds_write_b128 v2, v[4:7]")
    A("s_mov_b32 exec_lo, -1")
    A("s_mov_b32 exec_hi, 0xff", "40 lanes: 640 B")
    A("ds_write_b128 v2, v[4:7] offset:1024")
    A("s_mov_b64 exec, 0xf")
    A("v_mov_b32 v4, 0")
    A("v_mov_b32 v5, 0")
    A("v_mov_b32 v6, 0")
    A("v_mov_b32 v7, 0")
    A(f"v_add_u32 v2, {LDS_CNT}, v1")
    A("ds_write_b128 v2, v[4:7]")
    A("s_mov_b64 exec, -1")
    A("s_waitcnt vmcnt(4) lgkmcnt(0)")
    A("s_barrier", "#0")
    ST(1)
    A("s_mul_i32 s46, s53, 13312")
    A("s_add_u32 s46, s46, s52")
    A("s_add_u32 s46, s46, 6144")
    dma(46, 3, "K2_DMA2a")
    A("s_waitcnt vmcnt(6)")
    A("s_barrier", "#1")
    dma(46, 10, "K2_DMA2")
    ST(2)

    FR = 8
    E = 136
    NS = 16
    def job_setup(ti, ej, first):
        A(f"s_lshl_b32 s56, s{ti}, 5")
        A("v_and_b32 v2, 31, v0")
        A("v_add_u32 v3, s56, v2", "t = 32 i + (l&31)")
        A("v_lshlrev_b32 v2, 12, v3")
        A("v_lshrrev_b32 v4, 5, v0")
        A("v_lshl_add_u32 v2, v4, 4, v2", "t*4096 + h*16")
        if first:
            A.c("wave j: chain = j>>1 (0: E = Cr x A', 1: G = Ci x B'), K half = j&1")
            A("s_and_b32 s57, s42, 1")
            A("s_lshl_b32 s57, s57, 5", "ks0 = 32*(j&1)")
            A(f"s_mov_b32 s58, {hex(WS_BP)}")
            A("s_cmp_lt_u32 s42, 2")
            A("s_cselect_b32 s8, s24, s26")
            A("s_cselect_b32 s9, s25, s27")
            A(f"s_cselect_b32 s58, {hex(WS_AP)}, s58")
        else:
            A("s_lshl_b32 s57, s42, 4", "ks0 = 16 j")
            A("s_mov_b32 s8, s24")
            A("s_mov_b32 s9, s25")
            A(f"s_mov_b32 s58, {hex(WS_AP)}")
        A("s_and_b32 s9, s9, 0xffff")
        A("s_mov_b32 s10, 0x800000")
        A("s_mov_b32 s11, 0x20000")
        A(f"s_lshl_b32 s56, s{ej}, 16", "eblk*65536")
        A("s_add_u32 s60, s56, s58")
        A("s_lshl_b32 s56, s57, 10")
        A("s_add_u32 s60, s60, s56", "fragment base + ks0*1024")
        A("s_lshl_b32 s62, s57, 5", "ks0*32")
    def issue(slot, n):
        b = FR + 8*slot
        A(f"s_add_u32 s58, s60, {n*1024}")
        A(f"s_add_u32 s59, s62, {n*32}")
        A(f"buffer_load_dwordx4 {vr(b,4)}, v1, s[4:7], s58 offen")
        A(f"buffer_load_dwordx4 {vr(b+4,4)}, v2, s[8:11], s59 offen")
    def job_run(nsteps, jobidx, ej, tag):
        hasG = nsteps == 32
        for r in range(16): A(f"v_mov_b32 v{E+r}, 0")
        for n in range(nsteps):
            slot = n % NS
            b = FR + 8*slot
            rem_first = nsteps - NS
            cnt = 2*(NS-1) if n < rem_first else 2*(nsteps - 1 - n)
            A(f"s_waitcnt vmcnt({cnt})")
            A(f"v_mfma_f32_32x32x16_bf16 {vr(E,16)}, {vr(b,4)}, {vr(b+4,4)}, {vr(E,16)}")
            if n < rem_first: issue(slot, n + NS)
        A("s_nop 15")
        base = LDS_F
        A("s_cmp_eq_u32 s42, 0")
        A(f"s_cbranch_scc1 K2_COMB{tag}")
        if jobidx == 1:
            A.c("the partial-tile area is shared with job A: wait until wave 0 has read job A's partials")
            A(f"v_mov_b32 v6, {LDS_CNT + 8}")
            A.label("K2_SPINC")
            A("ds_read_b32 v7, v6")
            A("s_waitcnt lgkmcnt(0)")
            A("v_readfirstlane_b32 s57, v7")
            A("s_cmp_eq_u32 s57, 1")
            A("s_cbranch_scc1 K2_GOC")
            A("s_sleep 4")
            A("s_branch K2_SPINC")
            A.label("K2_GOC")
        A.c("waves 1..3: publish the partial tile in LDS")
        A("s_lshl_b32 s56, s42, 12")
        A(f"s_add_u32 s56, s56, {base - 4096}")
        A("v_add_u32 v5, s56, v1")
        for m in range(4): A(f"ds_write_b128 v5, {vr(E+4*m,4)} offset:{m*1024}")
        A(f"v_mov_b32 v6, {LDS_CNT + 4*jobidx}")
        A("v_mov_b32 v7, 1")
        A("s_waitcnt lgkmcnt(0)")
        A("s_mov_b64 exec, 1")
        A("ds_add_u32 v6, v7")
        A("s_waitcnt lgkmcnt(0)")
        A("s_mov_b64 exec, -1")
        A(f"s_branch K2_JOBDONE{tag}")
        A.label(f"K2_COMB{tag}")
        A.c("wave 0: wait for the three partials; E += (-1)^t A1024[e];  Ym = E - G, Yp = E + G")
        A("v_lshrrev_b32 v4, 5, v0")
        A("v_lshlrev_b32 v4, 4, v4", "4h*4 bytes")
        A(f"s_lshl_b32 s56, s{ej}, 7", "e0*4")
        A(f"s_add_u32 s57, s56, {hex(WS_A1024)}")
        for m in range(4):
            A(f"buffer_load_dwordx4 {vr(FR+4*m,4)}, v4, s[4:7], s57 offen offset:{m*32}")
        A(f"v_mov_b32 v6, {LDS_CNT + 4*jobidx}")
        A.label(f"K2_SPIN{tag}")
        A("ds_read_b32 v7, v6")
        A("s_waitcnt lgkmcnt(0)")
        A("v_readfirstlane_b32 s57, v7")
        A("s_cmp_eq_u32 s57, 3")
        A(f"s_cbranch_scc1 K2_GO{tag}")
        A("s_sleep 4")
        A(f"s_branch K2_SPIN{tag}")
        A.label(f"K2_GO{tag}")
        A(f"v_add_u32 v5, {base}, v1")
        for p in range(3):
            for m in range(4):
                A(f"ds_read_b128 {vr(FR+16+16*p+4*m,4)}, v5 offset:{p*4096 + m*1024}")
        A("v_and_b32 v6, 1, v0")
        A("v_lshlrev_b32 v6, 31, v6")
        A("v_or_b32 v6, 1.0, v6", "(-1)^t")
        A(f"s_movk_i32 s58, {YSB}")
        A("v_mul_lo_u32 v7, v3, s58")
        A("v_add_u32 v7, v7, v4", "t*YSB + 4h*4")
        A("s_waitcnt vmcnt(0) lgkmcnt(0)")
        if jobidx == 0:
            A(f"v_mov_b32 v5, {LDS_CNT + 8}")
            A("v_mov_b32 v4, 1")
            A("ds_write_b32 v5, v4", "job A partials consumed")
        P1, P2, P3 = FR+16, FR+32, FR+48
        for r in range(16): A(f"v_fmac_f32 v{E+r}, v6, v{FR+r}")
        for r in range(16): A(f"v_add_f32 v{E+r}, v{E+r}, v{P1+r}")
        for r in range(16): A(f"v_add_f32 v{P2+r}, v{P2+r}, v{P3+r}")
        if hasG:
            for r in range(16):
                A(f"v_sub_f32 v{P1+r}, v{E+r}, v{P2+r}")
                A(f"v_add_f32 v{P3+r}, v{E+r}, v{P2+r}")
            ym, yp = P1, P3
        else:
            for r in range(16): A(f"v_add_f32 v{E+r}, v{E+r}, v{P2+r}")
            ym, yp = E, E
        A(f"s_add_u32 s57, s56, {hex(WS_YM)}")
        A(f"s_add_u32 s58, s56, {hex(WS_YP)}")
        for m in range(4):
            A(f"buffer_store_dwordx4 {vr(ym+4*m,4)}, v7, s[4:7], s57 offen offset:{m*32}")
            A(f"buffer_store_dwordx4 {vr(yp+4*m,4)}, v7, s[4:7], s58 offen offset:{m*32}")
        A.label(f"K2_JOBDONE{tag}")

    if opts.get("nofnet"):
        A("s_waitcnt vmcnt(0) lgkmcnt(0)")
        A("s_barrier")
        A("s_endpgm")
    job_setup(40, 41, True)
    A("s_waitcnt vmcnt(0)")
    A("s_barrier", "#2: all of K/V landed")
    ST(3)
    for n in range(NS): issue(n, n)
    job_run(32, 0, 41, "A")
    ST(4)
    A.c("extra E-only jobs: row t=1024 (t-block 32) and column e=256 (e-block 8), on workgroups 0..40")
    A("s_cmp_ge_u32 s2, 41")
    A("s_cbranch_scc1 K2_FEND")
    A("s_sub_u32 s64, s2, 32")
    A("s_cmp_lt_u32 s2, 32")
    A("s_cselect_b32 s63, s2, 32", "t-block")
    A("s_cselect_b32 s64, 8, s64", "e-block")
    A("s_waitcnt vmcnt(0)")
    job_setup(63, 64, False)
    for n in range(NS): issue(n, n)
    job_run(16, 1, 64, "B")
    A.label("K2_FEND")
    ST(5)
    ST.dump(6)
    A.label("K2_END")
    if opts.get("rt"): A("s_waitcnt vmcnt(0)")
    rt_stamp(A, 1, 1, opts.get("rt"))
    A("s_endpgm")
    return name, 168, (96 if (opts.get('stamps') or opts.get('rt') or opts.get('clk') or opts.get('itst')) else 66)
```

```python
import math

WS_Q     = 0x000000
WS_K     = 0x200000
WS_V     = 0x400000
WS_AP    = 0x600000
WS_BP    = 0x6A0000
WS_A1024 = 0x720000
WS_G     = 0x721000
WS_F1    = 0x728000
WS_F2    = 0x730000
WS_O     = 0x800000
WS_Y     = 0xA00000
WS_YM    = 0xA00000
WS_YP    = 0xC00000
WS_SIZE  = 0x1000000
YS       = 288
YSB      = YS*4

NAME = "gated_mix__softmax_full_mha__spectral_fnet__prompt"

class Asm:
    def __init__(self):
        self.lines = []
        self.nlab = 0
    def __call__(self, s, comment=None):
        if comment: s = f"{s:<72}; {comment}"
        self.lines.append("    " + s)
    def label(self, name):
        self.lines.append(f"{name}:")
    def c(self, s):
        self.lines.append(f"    ; {s}")
    def raw(self, s):
        self.lines.append(s)
    def newlabel(self, base):
        self.nlab += 1
        return f"{base}_{self.nlab}"
    def text(self):
        return "\n".join(self.lines) + "\n"

def vr(a, n=1):
    return f"v{a}" if n == 1 else f"v[{a}:{a+n-1}]"
def sr(a, n=1):
    return f"s{a}" if n == 1 else f"s[{a}:{a+n-1}]"

def srd(A, dst, ptr, size):
    A(f"s_mov_b32 s{dst}, s{ptr}")
    A(f"s_and_b32 s{dst+1}, s{ptr+1}, 0xffff")
    A(f"s_mov_b32 s{dst+2}, {hex(size)}")
    A(f"s_mov_b32 s{dst+3}, 0x20000")

def kernel_header(A, name):
    A.raw(f".globl {name}")
    A.raw(".p2align 8")
    A.raw(f".type {name},@function")
    A.raw(f"{name}:")

def kernel_desc(name, vgpr, sgpr):
    acc = (vgpr + 3)//4*4
    return f""".section .rodata,"a"
.p2align 6
.amdhsa_kernel {name}
  .amdhsa_next_free_vgpr {vgpr}
  .amdhsa_next_free_sgpr {sgpr}
  .amdhsa_accum_offset {acc}
  .amdhsa_group_segment_fixed_size 0
  .amdhsa_kernarg_size 96
  .amdhsa_user_sgpr_count 2
  .amdhsa_user_sgpr_kernarg_segment_ptr 1
  .amdhsa_system_sgpr_workgroup_id_x 1
.end_amdhsa_kernel
.text
"""
def f2u(x):
    import struct
    return struct.unpack("<I", struct.pack("<f", x))[0]

WS_STAMP = 0xE00000
class Stamps:
    def __init__(self, A, on, kidx, srd_ws, swave):
        self.A, self.on, self.k, self.srd, self.sw = A, on, kidx, srd_ws, swave
    def __call__(self, i):
        if not self.on: return
        A = self.A
        A("s_memrealtime s[70:71]" if self.on == 2 else "s_memtime s[70:71]")
        A("s_waitcnt lgkmcnt(0)")
        A(f"s_mov_b32 s{72+i}, s70")
    def dump(self, n):
        if not self.on: return
        A = self.A
        A("s_mov_b64 exec, 1")
        A("s_lshl_b32 s70, s2, 4")
        A(f"s_add_u32 s70, s70, s{self.sw}")
        A("s_lshl_b32 s70, s70, 6")
        A(f"s_add_u32 s70, s70, {hex(WS_STAMP + self.k*0x40000)}")
        A("v_mov_b32 v8, 0")
        for i in range(n):
            A(f"v_mov_b32 v9, s{72+i}")
            A(f"buffer_store_dword v9, v8, s[{self.srd}:{self.srd+3}], s70 offen offset:{i*4}")
            A("s_nop 1")
        A("s_waitcnt vmcnt(0)")

def rt_stamp(A, kidx, which, on):
    if not on: return
    lab = A.newlabel("RT")
    A("s_and_b32 s94, s2, 255")
    A("s_cmp_eq_u32 s94, 0")
    A("s_cselect_b32 s95, 1, 0")
    A("s_cmp_eq_u32 s2, 255")
    A("s_cselect_b32 s94, 1, 0")
    A("s_or_b32 s95, s95, s94")
    A("s_cmp_eq_u32 s95, 0")
    A(f"s_cbranch_scc1 {lab}")
    A("s_cmp_ge_u32 s2, 256")
    A(f"s_cbranch_scc1 {lab}")
    A("s_load_dwordx2 s[88:89], s[0:1], 80")
    A("s_memrealtime s[90:91]")
    A("s_waitcnt lgkmcnt(0)")
    if on == 3:
        A(f"s_add_u32 s88, s88, {512*(2-kidx)}")
        A("s_addc_u32 s89, s89, 0")
    if which == 0: A("s_not_b32 s90, s90")
    A("s_lshl_b32 s94, s94, 2")
    A(f"s_add_u32 s94, s94, {(kidx*4 + which*2)*4}")
    A("s_mov_b64 s[92:93], exec")
    A("s_mov_b64 exec, 1")
    A("v_mov_b32 v62, s90")
    A(f"v_mov_b32 v63, s94")
    A("global_atomic_umax v63, v62, s[88:89]")
    A("s_mov_b64 exec, s[92:93]")
    A.label(lab)

def clk_stamp(A, slot):
    lab = A.newlabel("CK")
    A("s_cmp_eq_u32 s2, 0")
    A(f"s_cbranch_scc0 {lab}")
    A("s_cmp_eq_u32 s36, 4")
    A(f"s_cbranch_scc0 {lab}")
    A("s_load_dwordx2 s[88:89], s[0:1], 80")
    A("s_memrealtime s[90:91]")
    A("s_memtime s[92:93]")
    A("s_waitcnt lgkmcnt(0)")
    A("s_add_u32 s88, s88, 512")
    A("s_addc_u32 s89, s89, 0")
    A("s_mov_b64 s[94:95], exec")
    A("s_mov_b64 exec, 1")
    A("v_mov_b32 v62, s90")
    A("v_mov_b32 v63, s92")
    A(f"v_mov_b32 v61, {slot*4}")
    A("global_store_dwordx2 v61, v[62:63], s[88:89]")
    A("s_waitcnt vmcnt(0)")
    A("s_mov_b64 exec, s[94:95]")
    A.label(lab)
```

```python
from common import *

LDS_V = 65536
LDS_F = 131072
LDS_X = LDS_F + 12288
LDS_ONES = LDS_X + 18432
LDS_CNT = LDS_ONES + 1664
K2_LDS = LDS_CNT + 64
assert LDS_ONES % 256 == 0 and K2_LDS <= 163840

def gen_k2(A, opts=None):
    opts = opts or {}
    name = "k2_attn_kernel"
    kernel_header(A, name)
    A.c("K2: attention (8 waves) + K/V loaders & FNet sequence-DFT stage (4 waves).  256 WGs x 768 threads")
    A("s_cmp_ge_u32 s2, 256")
    A("s_cbranch_scc1 K2_END")
    rt_stamp(A, 1, 0, opts.get("rt"))
    A("s_load_dwordx4 s[24:27], s[0:1], 32", "seq_re, seq_im")
    A("s_load_dwordx2 s[34:35], s[0:1], 88", "ws")
    if opts.get("fuse23"):
        A("s_load_dwordx2 s[28:29], s[0:1], 16", "wo")
        A("s_load_dwordx4 s[84:87], s[0:1], 72", "out, debug")
    A("v_lshrrev_b32 v1, 6, v0")
    A("v_and_b32 v0, 63, v0", "lane")
    A("v_readfirstlane_b32 s36, v1", "wave id")
    A("s_and_b32 s37, s2, 7", "x_")
    A("s_lshr_b32 s38, s2, 3", "r")
    A("s_and_b32 s39, s38, 3")
    A("s_lshl_b32 s40, s37, 2")
    A("s_add_u32 s40, s40, s39", "head = 4x_ + (r&3)   (also FNet t-block i)")
    A("s_lshr_b32 s41, s38, 2", "qb (also FNet e-block)")
    A("s_waitcnt lgkmcnt(0)")
    srd(A, 4, 34, WS_SIZE)
    ST = Stamps(A, opts.get("stamps"), 1, 4, 36)
    ST(0)
    if opts.get("clk"): clk_stamp(A, 12)
    A("s_cmp_ge_u32 s36, 8")
    A("s_cbranch_scc1 K2_FNET")

    QA, QB, KF, V0, V1, P, SA, SB, OA, OB, CN = 4, 8, 12, 16, 20, 24, 32, 48, 64, 80, 100
    A("s_and_b32 s42, s36, 3", "qp: query-tile pair")
    A("s_lshr_b32 s49, s36, 2", "kh: key half")
    A("s_lshl_b32 s43, s41, 3")
    A("s_lshl_b32 s44, s42, 1")
    A("s_add_u32 s44, s44, s43", "q tile a = 8 qb + 2 qp")
    A("s_lshl_b32 s43, s40, 16")
    A("s_lshl_b32 s44, s44, 10")
    A("s_add_u32 s43, s43, s44", "head*65536 + tile_a*1024")
    A("v_lshlrev_b32 v1, 4, v0", "lane*16")
    A(f"s_add_u32 s45, s43, {hex(WS_Q)}" if WS_Q else "s_mov_b32 s45, s43")
    A(f"buffer_load_dwordx4 {vr(QA,4)}, v1, s[4:7], s45 offen")
    A(f"buffer_load_dwordx4 {vr(QB,4)}, v1, s[4:7], s45 offen offset:1024")
    A("s_lshl_b32 s50, s49, 15", "kh*32768")
    A("v_add_u32 v2, s50, v1", "K address")
    A.c("V address: lanes with (l&31)<16 read V rows; the others read a strip of bf16 ones (row sums come out of the same MFMA)")
    A("v_lshrrev_b32 v3, 5, v0")
    A("v_lshlrev_b32 v3, 8, v3", "h*256")
    A("v_and_b32 v28, 15, v0")
    A("v_lshl_add_u32 v3, v28, 4, v3")
    A(f"s_add_u32 s51, s50, {LDS_V}")
    A("v_add_u32 v3, s51, v3", "real V address")
    A("v_add_u32 v28, 4, v0")
    A("v_bfe_u32 v28, v28, 3, 1", "1 for lanes 20..27 (mod 32)")
    A("v_lshlrev_b32 v28, 6, v28", "-> strip offset 64 (zeros, other banks)")
    if opts.get("zrows", 1):
        A("v_and_b32 v29, 31, v0")
        A("v_cmp_eq_u32 vcc, 16, v29")
        A("v_max_u32 v29, 16, v28", "other lanes: offset 16 or 64 (zeros)")
        A("v_mov_b32 v30, 0")
        A("v_cndmask_b32 v28, v29, v30, vcc", "lane 16 / 48: offset 0 (ones)")
    A(f"v_add_u32 v28, {LDS_ONES - 512}, v28")
    A("v_bfe_u32 v29, v0, 4, 1")
    A("v_cmp_eq_u32 vcc, 0, v29")
    A("v_mov_b32 v30, 0")
    A("v_mov_b32 v31, 2048")
    A("v_mov_b32 v97, v3", "real address (prologue / fallback)")
    A("v_cndmask_b32 v3, v28, v3, vcc")
    A("v_cndmask_b32 v96, v30, v31, vcc", "per-iteration increment (0 for ones lanes)")
    for r in range(16): A(f"v_mov_b32 v{OA+r}, 0")
    for r in range(16): A(f"v_mov_b32 v{OB+r}, 0")
    for r in range(4, 8): A(f"v_mov_b32 v{P+r}, 0")
    if opts.get("zrows", 1):
        A("v_and_b32 v29, 31, v0")
        A("v_cmp_eq_u32 vcc, 16, v29")
        A("v_mov_b32 v30, 0x3f803f80")
        A("v_mov_b32 v31, 0")
        A("v_cndmask_b32 v98, v31, v30, vcc", "ones in the row-16 lanes, zeros in rows 17..31")
    else:
        A("v_mov_b32 v98, 0x3f803f80")
    for r in range(4): A(f"v_mov_b32 v{V0+r}, v98")
    for r in range(4): A(f"v_mov_b32 v{V1+r}, 0")
    A("s_mov_b32 s46, 0x0000ffff")
    A("s_mov_b32 s47, 0x0000ffff", "exec mask of the real V lanes")
    A("s_mov_b32 s48, 0", "iteration")
    if opts.get("pprio"): A("s_setprio 3")
    A("s_barrier", "#0: chunk 0 of K/V landed")
    ST(1)
    A(f"ds_read_b128 {vr(KF,4)}, v2")
    A("s_mov_b64 exec, s[46:47]")
    A(f"ds_read_b128 {vr(V0,4)}, v97")
    A("s_mov_b64 exec, -1")
    A("s_waitcnt vmcnt(0) lgkmcnt(0)")
    A(f"v_mfma_f32_32x32x16_bf16 {vr(SA,16)}, {vr(KF,4)}, {vr(QA,4)}, 0")
    A("s_nop 15")
    A.raw(".p2align 6")
    A.label("K2_LOOP")
    def substep(S, mid1, mid2, mid3):
        e = lambda j: A(f"v_exp_f32 v{S+j}, v{S+j}")
        cv = lambda j: A(f"v_cvt_pk_bf16_f32 v{P+j}, v{S+2*j}, v{S+2*j+1}")
        mid1()
        e(0); e(1); e(2); e(3); cv(0); cv(1)
        mid2()
        e(4); e(5); e(6); e(7); cv(2); cv(3); e(8); e(9)
        mid3()
        e(10); e(11); cv(4); e(12); e(13); cv(5); e(14); e(15); cv(6); cv(7)
    mf = lambda d, a, b, c: A(f"v_mfma_f32_32x32x16_bf16 {vr(d,16)}, {vr(a,4)}, {vr(b,4)}, {c}")
    for u in range(2):
        if u == 1:
            A("s_and_b32 s52, s48, 13")
            A("s_cmp_eq_u32 s52, 0", "iterations 0 and 2")
            A("s_cbranch_scc0 K2_NOBAR")
            A("s_barrier", "#1 / #2: later K/V chunks landed")
            A.label("K2_NOBAR")
        def a1():
            mf(SB, KF, QB, "0")
            A(f"ds_read_b128 {vr(KF,4)}, v2 offset:{(u+1)*1024}")
        def a2():
            mf(OB, V1, P+4, vr(OB,16))
            A(f"ds_read_b128 {vr(V1,4)}, v3 offset:{u*1024+512}")
        def a3():
            A("s_waitcnt lgkmcnt(2)")
            mf(OA, V0, P, vr(OA,16))
        substep(SA, a1, a2, a3)
        def b1():
            A("s_waitcnt lgkmcnt(0)")
            mf(SA, KF, QA, "0")
        def b2():
            mf(OA, V1, P+4, vr(OA,16))
        def b3():
            mf(OB, V0, P, vr(OB,16))
            A(f"ds_read_b128 {vr(V0,4)}, v3 offset:{(u+1)*1024}")
        substep(SB, b1, b2, b3)
    A("v_add_u32 v2, 0x800, v2")
    A("v_add_u32 v3, v96, v3")
    if opts.get("itst"):
        A("s_memtime s[70:71]")
        A("s_lshl_b32 s72, s2, 4")
        A("s_add_u32 s72, s72, s36")
        A("s_lshl_b32 s72, s72, 6")
        A("s_lshl_b32 s73, s48, 2")
        A("s_add_u32 s72, s72, s73")
        A(f"s_add_u32 s72, s72, {hex(WS_STAMP + 3*0x40000)}")
        A("s_waitcnt lgkmcnt(0)")
        A("v_mov_b32 v99, s70")
        A("v_mov_b32 v100, 0")
        A("s_mov_b64 exec, 1")
        A("buffer_store_dword v99, v100, s[4:7], s72 offen")
        A("s_mov_b64 exec, -1")
    A("s_add_u32 s48, s48, 1")
    if opts.get("pprio"):
        A.c("a wave that is behind gets the higher priority: 3,2,1,0 for iterations 0-3, 4-7, 8-11, 12-15")
        for lv, itn in ((2, 4), (1, 8), (0, 12)):
            lab = A.newlabel("K2_PR")
            A(f"s_cmp_eq_u32 s48, {itn}")
            A(f"s_cbranch_scc0 {lab}")
            A(f"s_setprio {lv}")
            A.label(lab)
    A("s_cmp_lt_u32 s48, 16")
    A("s_cbranch_scc1 K2_LOOP")
    ST(2)
    mf(OB, V1, P+4, vr(OB,16))
    A("s_waitcnt lgkmcnt(0)")
    A("s_nop 15")
    A.c("combine the two key halves: wave kh keeps query tile (a if kh==0 else b) and hands the other one to its partner (wave ^ 4)")
    A("s_cmp_eq_u32 s49, 0")
    A("s_cbranch_scc1 K2_KEEPA")
    for r in range(9):
        A(f"v_mov_b32 v{32+r}, v{OA+r}", "give a")
        A(f"v_mov_b32 v{OA+r}, v{OB+r}", "keep b")
    A("s_add_u32 s43, s43, 1024", "own tile = b")
    A("s_branch K2_XCH")
    A.label("K2_KEEPA")
    for r in range(9): A(f"v_mov_b32 v{32+r}, v{OB+r}", "give b")
    A.label("K2_XCH")
    O = OA
    A("s_mul_i32 s50, s36, 2304")
    A(f"s_add_u32 s50, s50, {LDS_X}")
    A("v_lshlrev_b32 v28, 2, v0")
    A("v_add_u32 v29, s50, v28")
    for r in range(9): A(f"ds_write_b32 v29, v{32+r} offset:{r*256}")
    A("s_lshl_b32 s51, s36, 2")
    A(f"s_add_u32 s51, s51, {LDS_CNT + 16}")
    A("v_mov_b32 v30, s51")
    A("v_mov_b32 v31, 1")
    A("s_waitcnt lgkmcnt(0)")
    A("ds_write_b32 v30, v31", "flag: my hand-over is in LDS")
    A("s_xor_b32 s52, s36, 4", "partner")
    A("s_mul_i32 s50, s52, 2304")
    A(f"s_add_u32 s50, s50, {LDS_X}")
    A("v_add_u32 v29, s50, v28")
    A("s_lshl_b32 s51, s52, 2")
    A(f"s_add_u32 s51, s51, {LDS_CNT + 16}")
    A("v_mov_b32 v30, s51")
    A.label("K2_XSPIN")
    A("ds_read_b32 v31, v30")
    A("s_waitcnt lgkmcnt(0)")
    A("v_readfirstlane_b32 s52, v31")
    A("s_cmp_eq_u32 s52, 1")
    A("s_cbranch_scc1 K2_XGO")
    A("s_sleep 1")
    A("s_branch K2_XSPIN")
    A.label("K2_XGO")
    for r in range(9): A(f"ds_read_b32 v{32+r}, v29 offset:{r*256}")
    A("s_waitcnt lgkmcnt(0)")
    for r in range(9): A(f"v_add_f32 v{O+r}, v{O+r}, v{32+r}")
    A.c("row 16 of O^T holds the row sum l (ones rows of the V operand)")
    def normalize():
        if opts.get("zrows", 1):
            A(f"v_mov_b32 v29, v{O+8}")
            A("s_nop 1")
            A(f"v_permlane32_swap_b32 v29, v{O+8}", "l lives in lanes 0..31 only: copy it to the upper half")
            A("s_nop 1")
            A(f"v_mov_b32 v{O+8}, v29")
        A(f"v_rcp_f32 v28, v{O+8}")
        A("s_nop 0")
        for r in range(8): A(f"v_mul_f32 v{O+r}, v{O+r}, v28")
    normalize()
    A(f"v_mov_b32 v29, v{O+8}", "l")
    A.c("run-time guard: softmax is shift invariant, so the unshifted exponentials give the same result as long as l stays far")
    A.c("from the fp32 range limits and O is finite; otherwise this tile is recomputed below with the true row max subtracted")
    A(f"v_add_f32 v30, abs(v{O}), abs(v{O+1})")
    for r in range(2, 8): A(f"v_add_f32 v30, v30, abs(v{O+r})")
    A(f"v_cmp_nle_f32 vcc, {hex(f2u(2.0**-60))}, v29", "!(2^-60 <= l)")
    A(f"s_mov_b32 s50, {hex(f2u(2.0**60))}")
    A(f"v_cmp_nle_f32 s[52:53], v29, s50", "!(l <= 2^60)")
    A(f"s_mov_b32 s50, {hex(f2u(2.0**126))}")
    A(f"v_cmp_nle_f32 s[54:55], v30, s50", "O not finite")
    A("s_nop 4")
    A("s_or_b64 vcc, vcc, s[52:53]")
    A("s_or_b64 vcc, vcc, s[54:55]")
    if opts.get("force_fallback"):
        A("s_mov_b64 vcc, -1")
    A("s_cmp_lg_u64 vcc, 0")
    A("s_cbranch_scc1 K2_FALLBACK")
    A.label("K2_STORE")
    for j in range(4): A(f"v_cvt_pk_bf16_f32 v{P+j}, v{O+2*j}, v{O+2*j+1}")
    A(f"s_add_u32 s45, s43, {hex(WS_O)}")
    SC = " sc1" if opts.get("fuse23") else ""
    A(f"buffer_store_dwordx4 {vr(P,4)}, v1, s[4:7], s45 offen{SC}")
    ST(3)
    if opts.get("clk"): clk_stamp(A, 14)
    if opts.get("fuse23"):
        A("s_branch K2_PHASE3")
    else:
        ST.dump(4)
        if opts.get("rt"): A("s_waitcnt vmcnt(0)")
        rt_stamp(A, 1, 1, opts.get("rt"))
        A("s_endpgm")

    A.label("K2_FALLBACK")
    Q = QA
    A("s_cmp_eq_u32 s49, 0")
    A("s_cbranch_scc1 K2_FB0")
    for r in range(4): A(f"v_mov_b32 v{QA+r}, v{QB+r}")
    A.label("K2_FB0")
    A("v_mov_b32 v2, v1")
    A("v_mov_b32 v29, 0xff800000", "running max = -inf")
    A("s_mov_b32 s48, 0")
    A.label("K2_FB1")
    A(f"ds_read_b128 {vr(KF,4)}, v2")
    A("s_waitcnt lgkmcnt(0)")
    A(f"v_mfma_f32_32x32x16_bf16 {vr(SA,16)}, {vr(KF,4)}, {vr(Q,4)}, 0")
    A("s_nop 15")
    for r in range(0, 16, 2): A(f"v_max3_f32 v29, v{SA+r}, v{SA+r+1}, v29")
    A("v_add_u32 v2, 1024, v2")
    A("s_add_u32 s48, s48, 1")
    A("s_cmp_lt_u32 s48, 64")
    A("s_cbranch_scc1 K2_FB1")
    A("v_mov_b32 v30, v29")
    A("s_nop 1")
    A("v_permlane32_swap_b32 v30, v29")
    A("s_nop 1")
    A("v_max_f32 v29, v29, v30", "row max over both lane halves")
    for r in range(16): A(f"v_sub_f32 v{CN+r}, 0, v29")
    for r in range(16): A(f"v_mov_b32 v{O+r}, 0")
    for r in range(8): A(f"v_mov_b32 v{V0+r}, v98")
    A("v_mov_b32 v2, v1")
    A("s_lshl_b32 s50, s49, 15")
    A("v_subrev_u32 v3, s50, v97", "V address of tile 0")
    A("s_mov_b32 s48, 0")
    A.label("K2_FB2")
    A(f"ds_read_b128 {vr(KF,4)}, v2")
    A("s_mov_b64 exec, s[46:47]")
    A(f"ds_read_b128 {vr(V0,4)}, v3")
    A(f"ds_read_b128 {vr(V1,4)}, v3 offset:512")
    A("s_mov_b64 exec, -1")
    A("s_waitcnt lgkmcnt(0)")
    A(f"v_mfma_f32_32x32x16_bf16 {vr(SA,16)}, {vr(KF,4)}, {vr(Q,4)}, {vr(CN,16)}")
    A("s_nop 15")
    for r in range(16): A(f"v_exp_f32 v{SA+r}, v{SA+r}")
    A("s_nop 0")
    for j in range(8): A(f"v_cvt_pk_bf16_f32 v{P+j}, v{SA+2*j}, v{SA+2*j+1}")
    A("s_nop 1")
    A(f"v_mfma_f32_32x32x16_bf16 {vr(O,16)}, {vr(V0,4)}, {vr(P,4)}, {vr(O,16)}")
    A(f"v_mfma_f32_32x32x16_bf16 {vr(O,16)}, {vr(V1,4)}, {vr(P+4,4)}, {vr(O,16)}")
    A("v_add_u32 v2, 1024, v2")
    A("v_add_u32 v3, 1024, v3")
    A("s_add_u32 s48, s48, 1")
    A("s_cmp_lt_u32 s48, 64")
    A("s_cbranch_scc1 K2_FB2")
    A("s_nop 15")
    normalize()
    A("s_branch K2_STORE")

    A.label("K2_FNET")
    if opts.get("fprio", 2): A(f"s_setprio {opts.get('fprio', 2)}")
    A("s_sub_u32 s42, s36, 8", "j")
    if opts.get("fuse23"):
        srd(A, 12, 86, 0x100)
        A.c("launch epoch: workgroup 0 publishes a nonzero time stamp in d_debug[0] (zero at launch); hand-off flags in d_ws carry it")
        A("s_or_b32 s50, s2, s42")
        A("s_cmp_eq_u32 s50, 0")
        A("s_cbranch_scc0 K2_NOEPOCH")
        A("s_memrealtime s[50:51]")
        A("s_waitcnt lgkmcnt(0)")
        A("s_or_b32 s50, s50, 1")
        A("v_mov_b32 v2, s50")
        A("v_mov_b32 v3, 0")
        A("s_mov_b64 exec, 1")
        A("buffer_store_dword v2, v3, s[12:15], 0 offen sc1")
        A("s_mov_b64 exec, -1")
        A("s_waitcnt vmcnt(0)")
        A.label("K2_NOEPOCH")
    A("v_lshlrev_b32 v1, 4, v0", "lane*16")
    A("s_lshl_b32 s43, s40, 16", "head*65536")
    A(f"s_add_u32 s44, s43, {hex(WS_K)}")
    A(f"s_add_u32 s45, s43, {hex(WS_V)}")
    def dma(first_tile_sreg, n, lab):
        A("s_mov_b32 s48, 0")
        A.label(lab)
        A("s_mov_b32 m0, s46")
        A("s_add_u32 s47, s44, s46")
        A("buffer_load_dwordx4 v1, s[4:7], s47 offen lds")
        A(f"s_add_u32 m0, s46, {LDS_V}")
        A("s_add_u32 s47, s45, s46")
        A("buffer_load_dwordx4 v1, s[4:7], s47 offen lds")
        A("s_add_u32 s46, s46, 1024")
        A("s_add_u32 s48, s48, 1")
        A(f"s_cmp_lt_u32 s48, {n}")
        A(f"s_cbranch_scc1 {lab}")
    A.c("local tiles (per key half): chunk 0: {0,1}; chunk 1: {2..5}; chunk 2: {6..31}.  wave j: half = j>>1")
    A("s_lshr_b32 s52, s42, 1")
    A("s_lshl_b32 s52, s52, 15", "half*32768")
    A("s_and_b32 s53, s42, 1")
    A("s_lshl_b32 s46, s53, 10")
    A("s_add_u32 s46, s46, s52")
    dma(46, 1, "K2_DMA0")
    A("s_lshl_b32 s46, s53, 11")
    A("s_add_u32 s46, s46, s52")
    A("s_add_u32 s46, s46, 2048")
    dma(46, 2, "K2_DMA1")
    A.c("ones strip and flags")
    if opts.get("zrows", 1):
        A("v_and_b32 v5, 15, v0")
        A("v_cmp_eq_u32 vcc, 0, v5")
        A("v_mov_b32 v6, 0x3f803f80")
        A("v_mov_b32 v7, 0")
        A("v_cndmask_b32 v4, v7, v6, vcc")
    else:
        A("v_mov_b32 v4, 0x3f803f80")
    A("v_mov_b32 v5, v4")
    A("v_mov_b32 v6, v4")
    A("v_mov_b32 v7, v4")
    A(f"v_add_u32 v2, {LDS_ONES}, v1")
    A("ds_write_b128 v2, v[4:7]")
    A("s_mov_b32 exec_lo, -1")
    A("s_mov_b32 exec_hi, 0xff", "40 lanes: 640 B")
    A("ds_write_b128 v2, v[4:7] offset:1024")
    A("s_mov_b64 exec, 0xf")
    A("v_mov_b32 v4, 0")
    A("v_mov_b32 v5, 0")
    A("v_mov_b32 v6, 0")
    A("v_mov_b32 v7, 0")
    A(f"v_add_u32 v2, {LDS_CNT}, v1")
    A("ds_write_b128 v2, v[4:7]")
    A("s_mov_b64 exec, -1")
    A("s_waitcnt vmcnt(4) lgkmcnt(0)")
    A("s_barrier", "#0")
    ST(1)
    A("s_mul_i32 s46, s53, 13312")
    A("s_add_u32 s46, s46, s52")
    A("s_add_u32 s46, s46, 6144")
    dma(46, 3, "K2_DMA2a")
    A("s_waitcnt vmcnt(6)")
    A("s_barrier", "#1")
    dma(46, 10, "K2_DMA2")
    ST(2)

    FR = 8
    E = 136
    NS = 16
    def job_setup(ti, ej, first):
        A(f"s_lshl_b32 s56, s{ti}, 5")
        A("v_and_b32 v2, 31, v0")
        A("v_add_u32 v3, s56, v2", "t = 32 i + (l&31)")
        A("v_lshlrev_b32 v2, 12, v3")
        A("v_lshrrev_b32 v4, 5, v0")
        A("v_lshl_add_u32 v2, v4, 4, v2", "t*4096 + h*16")
        if first:
            A.c("wave j: chain = j>>1 (0: E = Cr x A', 1: G = Ci x B'), K half = j&1")
            A("s_and_b32 s57, s42, 1")
            A("s_lshl_b32 s57, s57, 5", "ks0 = 32*(j&1)")
            A(f"s_mov_b32 s58, {hex(WS_BP)}")
            A("s_cmp_lt_u32 s42, 2")
            A("s_cselect_b32 s8, s24, s26")
            A("s_cselect_b32 s9, s25, s27")
            A(f"s_cselect_b32 s58, {hex(WS_AP)}, s58")
        else:
            A("s_lshl_b32 s57, s42, 4", "ks0 = 16 j")
            A("s_mov_b32 s8, s24")
            A("s_mov_b32 s9, s25")
            A(f"s_mov_b32 s58, {hex(WS_AP)}")
        A("s_and_b32 s9, s9, 0xffff")
        A("s_mov_b32 s10, 0x800000")
        A("s_mov_b32 s11, 0x20000")
        A(f"s_lshl_b32 s56, s{ej}, 16", "eblk*65536")
        A("s_add_u32 s60, s56, s58")
        A("s_lshl_b32 s56, s57, 10")
        A("s_add_u32 s60, s60, s56", "fragment base + ks0*1024")
        A("s_lshl_b32 s62, s57, 5", "ks0*32")
    def issue(slot, n):
        b = FR + 8*slot
        A(f"s_add_u32 s58, s60, {n*1024}")
        A(f"s_add_u32 s59, s62, {n*32}")
        A(f"buffer_load_dwordx4 {vr(b,4)}, v1, s[4:7], s58 offen")
        A(f"buffer_load_dwordx4 {vr(b+4,4)}, v2, s[8:11], s59 offen")
    def job_run(nsteps, jobidx, ej, tag):
        hasG = nsteps == 32
        for r in range(16): A(f"v_mov_b32 v{E+r}, 0")
        for n in range(nsteps):
            slot = n % NS
            b = FR + 8*slot
            rem_first = nsteps - NS
            cnt = 2*(NS-1) if n < rem_first else 2*(nsteps - 1 - n)
            A(f"s_waitcnt vmcnt({cnt})")
            A(f"v_mfma_f32_32x32x16_bf16 {vr(E,16)}, {vr(b,4)}, {vr(b+4,4)}, {vr(E,16)}")
            if n < rem_first: issue(slot, n + NS)
        A("s_nop 15")
        base = LDS_F
        A("s_cmp_eq_u32 s42, 0")
        A(f"s_cbranch_scc1 K2_COMB{tag}")
        if jobidx == 1:
            A.c("the partial-tile area is shared with job A: wait until wave 0 has read job A's partials")
            A(f"v_mov_b32 v6, {LDS_CNT + 8}")
            A.label("K2_SPINC")
            A("ds_read_b32 v7, v6")
            A("s_waitcnt lgkmcnt(0)")
            A("v_readfirstlane_b32 s57, v7")
            A("s_cmp_eq_u32 s57, 1")
            A("s_cbranch_scc1 K2_GOC")
            A("s_sleep 4")
            A("s_branch K2_SPINC")
            A.label("K2_GOC")
        A.c("waves 1..3: publish the partial tile in LDS")
        A("s_lshl_b32 s56, s42, 12")
        A(f"s_add_u32 s56, s56, {base - 4096}")
        A("v_add_u32 v5, s56, v1")
        for m in range(4): A(f"ds_write_b128 v5, {vr(E+4*m,4)} offset:{m*1024}")
        A(f"v_mov_b32 v6, {LDS_CNT + 4*jobidx}")
        A("v_mov_b32 v7, 1")
        A("s_waitcnt lgkmcnt(0)")
        A("s_mov_b64 exec, 1")
        A("ds_add_u32 v6, v7")
        A("s_waitcnt lgkmcnt(0)")
        A("s_mov_b64 exec, -1")
        A(f"s_branch K2_JOBDONE{tag}")
        A.label(f"K2_COMB{tag}")
        A.c("wave 0: wait for the three partials; E += (-1)^t A1024[e];  Ym = E - G, Yp = E + G")
        A("v_lshrrev_b32 v4, 5, v0")
        A("v_lshlrev_b32 v4, 4, v4", "4h*4 bytes")
        A(f"s_lshl_b32 s56, s{ej}, 7", "e0*4")
        A(f"s_add_u32 s57, s56, {hex(WS_A1024)}")
        for m in range(4):
            A(f"buffer_load_dwordx4 {vr(FR+4*m,4)}, v4, s[4:7], s57 offen offset:{m*32}")
        A(f"v_mov_b32 v6, {LDS_CNT + 4*jobidx}")
        A.label(f"K2_SPIN{tag}")
        A("ds_read_b32 v7, v6")
        A("s_waitcnt lgkmcnt(0)")
        A("v_readfirstlane_b32 s57, v7")
        A("s_cmp_eq_u32 s57, 3")
        A(f"s_cbranch_scc1 K2_GO{tag}")
        A("s_sleep 4")
        A(f"s_branch K2_SPIN{tag}")
        A.label(f"K2_GO{tag}")
        A(f"v_add_u32 v5, {base}, v1")
        for p in range(3):
            for m in range(4):
                A(f"ds_read_b128 {vr(FR+16+16*p+4*m,4)}, v5 offset:{p*4096 + m*1024}")
        A("v_and_b32 v6, 1, v0")
        A("v_lshlrev_b32 v6, 31, v6")
        A("v_or_b32 v6, 1.0, v6", "(-1)^t")
        A(f"s_movk_i32 s58, {YSB}")
        A("v_mul_lo_u32 v7, v3, s58")
        A("v_add_u32 v7, v7, v4", "t*YSB + 4h*4")
        A("s_waitcnt vmcnt(0) lgkmcnt(0)")
        if jobidx == 0:
            A(f"v_mov_b32 v5, {LDS_CNT + 8}")
            A("v_mov_b32 v4, 1")
            A("ds_write_b32 v5, v4", "job A partials consumed")
        P1, P2, P3 = FR+16, FR+32, FR+48
        for r in range(16): A(f"v_fmac_f32 v{E+r}, v6, v{FR+r}")
        for r in range(16): A(f"v_add_f32 v{E+r}, v{E+r}, v{P1+r}")
        for r in range(16): A(f"v_add_f32 v{P2+r}, v{P2+r}, v{P3+r}")
        if hasG:
            for r in range(16):
                A(f"v_sub_f32 v{P1+r}, v{E+r}, v{P2+r}")
                A(f"v_add_f32 v{P3+r}, v{E+r}, v{P2+r}")
            ym, yp = P1, P3
        else:
            for r in range(16): A(f"v_add_f32 v{E+r}, v{E+r}, v{P2+r}")
            ym, yp = E, E
        if opts.get("fuse23"):
            A.c("Y tiles: [(i*9 + j)*2 + arr][m][lane][4] : every store instruction writes 1 KB of whole lines")
            ti = 40 if jobidx == 0 else 63
            A(f"s_mul_i32 s57, s{ti}, 9")
            A(f"s_add_u32 s57, s57, s{ej}")
            A("s_lshl_b32 s57, s57, 13")
            A(f"s_add_u32 s57, s57, {hex(WS_Y)}")
            A("s_add_u32 s58, s57, 4096")
            for m in range(4):
                A(f"buffer_store_dwordx4 {vr(ym+4*m,4)}, v1, s[4:7], s57 offen offset:{m*1024} sc1")
                A(f"buffer_store_dwordx4 {vr(yp+4*m,4)}, v1, s[4:7], s58 offen offset:{m*1024} sc1")
        else:
            A(f"s_add_u32 s57, s56, {hex(WS_YM)}")
            A(f"s_add_u32 s58, s56, {hex(WS_YP)}")
            for m in range(4):
                A(f"buffer_store_dwordx4 {vr(ym+4*m,4)}, v7, s[4:7], s57 offen offset:{m*32}")
                A(f"buffer_store_dwordx4 {vr(yp+4*m,4)}, v7, s[4:7], s58 offen offset:{m*32}")
        A.label(f"K2_JOBDONE{tag}")

    if opts.get("nofnet"):
        A("s_waitcnt vmcnt(0) lgkmcnt(0)")
        A("s_barrier")
        A("s_endpgm")
    job_setup(40, 41, True)
    A("s_waitcnt vmcnt(0)")
    A("s_barrier", "#2: all of K/V landed")
    ST(3)
    if opts.get("fuse23"):
        A.c("epoch (wave 8 only): d_debug[0] becomes nonzero once workgroup 0 has started")
        A("s_cmp_eq_u32 s36, 8")
        A("s_cbranch_scc0 K2_EPDONE")
        A("v_mov_b32 v5, 0")
        A("s_mov_b32 s51, 0")
        A.label("K2_EPSPIN")
        A("buffer_load_dword v6, v5, s[12:15], 0 offen sc1")
        A("s_waitcnt vmcnt(0)")
        A("v_readfirstlane_b32 s65, v6")
        A("s_add_u32 s51, s51, 1")
        A("s_cmp_lg_u32 s65, 0")
        A("s_cbranch_scc1 K2_EPDONE")
        A("s_sleep 8")
        A("s_cmp_lt_u32 s51, 0x40000")
        A("s_cbranch_scc1 K2_EPSPIN")
        A.label("K2_EPDONE")
    for n in range(NS): issue(n, n)
    job_run(32, 0, 41, "A")
    ST(4)
    if opts.get("fuse23"):
        A.c("L2 warm-up of this workgroup's Wo columns (512 rows x 128 B): 128 lines per wave")
        srd(A, 16, 28, 0x80000)
        A("s_lshl_b32 s56, s42, 7")
        A("v_add_u32 v5, s56, v0")
        A("v_lshlrev_b32 v5, 10, v5", "row*1024")
        A("s_lshl_b32 s57, s41, 7", "64nb*2")
        A("buffer_load_dword v6, v5, s[16:19], s57 offen")
        A("buffer_load_dword v6, v5, s[16:19], s57 offen offset:64")
        A("s_add_u32 s57, s57, 65536", "+64 rows")
        A("buffer_load_dword v7, v5, s[16:19], s57 offen")
        A("buffer_load_dword v7, v5, s[16:19], s57 offen offset:64")
    A.c("extra E-only jobs: row t=1024 (t-block 32) and column e=256 (e-block 8), on workgroups 0..40")
    A("s_cmp_ge_u32 s2, 41")
    A("s_cbranch_scc1 K2_FEND")
    A("s_sub_u32 s64, s2, 32")
    A("s_cmp_lt_u32 s2, 32")
    A("s_cselect_b32 s63, s2, 32", "t-block")
    A("s_cselect_b32 s64, 8, s64", "e-block")
    A("s_waitcnt vmcnt(0)")
    job_setup(63, 64, False)
    for n in range(NS): issue(n, n)
    job_run(16, 1, 64, "B")
    A.label("K2_FEND")
    ST(5)
    if not opts.get("fuse23"):
        ST.dump(6)
        A.label("K2_END")
        if opts.get("rt"): A("s_waitcnt vmcnt(0)")
        rt_stamp(A, 1, 1, opts.get("rt"))
        A("s_endpgm")
        return name, 168, (96 if (opts.get('stamps') or opts.get('rt') or opts.get('clk') or opts.get('itst')) else 66)
    gen_phase3(A, opts, ST)
    return name, 168, 96


def gen_phase3(A, opts, ST):
    A.label("K2_PHASE3")
    A("s_waitcnt vmcnt(0)", "this wave's phase-2 stores have reached memory")
    A("s_barrier", "all phase-2 stores of the workgroup are done; LDS is free")
    ST(6)
    A("s_cmp_lt_u32 s36, 8")
    A("s_cbranch_scc1 K3_COMPUTE")
    A("s_cmp_eq_u32 s36, 8")
    A("s_cbranch_scc0 K3_WO")
    A.c("flag lines (128 B each): L1[qb] (8): dword = head ; L2[t-block] (32): dword j = job A e-block, 8 = job B column 256, 9.. = row 1024 jobs (in L2[0])")
    A("s_mov_b32 s50, s65", "epoch")
    A("s_lshl_b32 s52, s41, 7")
    A("s_lshl_b32 s53, s40, 2")
    A("s_add_u32 s52, s52, s53", "L1[qb][head]")
    A("s_lshl_b32 s53, s40, 7")
    A("s_lshl_b32 s54, s41, 2")
    A("s_add_u32 s53, s53, s54")
    A("s_add_u32 s53, s53, 1024", "L2[head][qb]")
    A("s_lshl_b32 s54, s2, 7")
    A("s_add_u32 s54, s54, 1056", "b<32: L2[b][8]")
    A("s_lshl_b32 s55, s2, 2")
    A("s_add_u32 s55, s55, 932", "32<=b<41: L2[0][9 + b-32] = 1024 + 36 + 4(b-32)")
    A("s_cmp_lt_u32 s2, 32")
    A("s_cselect_b32 s54, s54, s55")
    A("s_cmp_lt_u32 s2, 41")
    A("s_cselect_b32 s54, s54, s53", "no job B: repeat the job A flag")
    A("v_mov_b32 v3, s52")
    A("v_mov_b32 v4, s53")
    A("v_mov_b32 v5, s54")
    A("v_cmp_eq_u32 vcc, 1, v0")
    A("v_mov_b32 v2, s50")
    A("s_nop 0")
    A("v_cndmask_b32 v3, v3, v4, vcc")
    A("v_cmp_eq_u32 vcc, 2, v0")
    A("s_nop 1")
    A("v_cndmask_b32 v3, v3, v5, vcc")
    A(f"s_mov_b32 s52, {hex(WS_F2)}")
    A("s_mov_b64 exec, 7")
    A("buffer_store_dword v2, v3, s[4:7], s52 offen sc1")
    A("s_mov_b64 exec, -1")
    A.c("poll: lanes 0..31: L1[qp>>2][lane]; lanes 32..40: L2[qp][lane-32]; lanes 41..49 (qp == 0 only): L2[0][9..17]; others: lane 0's word")
    A("s_lshr_b32 s53, s40, 2")
    A("s_lshl_b32 s53, s53, 7", "L1 line")
    A("s_lshl_b32 s54, s40, 7")
    A("s_add_u32 s54, s54, 896", "L2[qp] - 32*4 = 1024 + 128qp - 128")
    A("v_lshlrev_b32 v4, 2, v0")
    A("v_add_u32 v5, s54, v4")
    A("v_add_u32 v4, s53, v4")
    A("v_cmp_le_u32 vcc, 32, v0")
    A("s_cmp_eq_u32 s40, 0")
    A("s_cselect_b32 s55, 50, 41", "number of lanes that matter")
    A("v_cndmask_b32 v4, v4, v5, vcc")
    A("v_cmp_le_u32 vcc, s55, v0")
    A("v_mov_b32 v6, s53")
    A("s_nop 0")
    A("v_cndmask_b32 v4, v4, v6, vcc")
    A("s_mov_b32 s51, 0")
    A(f"s_sleep {opts.get('sleep0', 12)}")
    A.label("K3_POLL")
    A("buffer_load_dword v5, v4, s[4:7], s52 offen sc1")
    A("s_waitcnt vmcnt(0)")
    A("v_cmp_ne_u32 vcc, s50, v5")
    A("s_add_u32 s51, s51, 1")
    A("s_nop 3")
    A("s_cmp_eq_u64 vcc, 0")
    A("s_cbranch_scc1 K3_JOIN")
    A(f"s_sleep {opts.get('sleep1', 6)}")
    A("s_cmp_lt_u32 s51, 0x40000", "bounded: never hang")
    A("s_cbranch_scc1 K3_POLL")
    A.label("K3_JOIN")
    ST(8)
    if opts.get("stamps"): A("s_mov_b32 s81, s51")
    A("s_barrier", "inputs published, Wo staged")
    ST(7)
    ST.dump(10)
    A.label("K2_END")
    if opts.get("rt"): A("s_waitcnt vmcnt(0)")
    rt_stamp(A, 1, 1, opts.get("rt"))
    A("s_endpgm")

    A.label("K3_WO")
    srd(A, 8, 28, 0x80000)
    A("s_sub_u32 s42, s36, 9", "first 8-row group")
    A("v_lshrrev_b32 v9, 3, v0", "a")
    A("v_and_b32 v11, 7, v0")
    A("v_bfe_u32 v13, v9, 1, 1")
    A("v_lshlrev_b32 v13, 2, v13")
    A("v_xor_b32 v13, v11, v13", "logical piece q")
    A("v_lshlrev_b32 v13, 4, v13")
    A("v_lshlrev_b32 v9, 10, v9", "a*1024")
    A("s_lshl_b32 s45, s41, 7", "64nb*2")
    A("v_add3_u32 v2, v9, v13, s45", "Wo voffset")
    A.label("K3_WOL")
    A("s_lshl_b32 m0, s42, 10")
    A("s_lshl_b32 s49, s42, 13")
    A("buffer_load_dwordx4 v2, s[8:11], s49 offen lds")
    A("s_add_u32 s42, s42, 3")
    A("s_cmp_lt_u32 s42, 64")
    A("s_cbranch_scc1 K3_WOL")
    A("s_waitcnt vmcnt(0)")
    A("s_branch K3_JOIN")

    A.label("K3_COMPUTE")
    srd(A, 8, 84, 0x200000)
    A("s_and_b32 s42, s36, 1", "qt (0 rows s, 1 mirrored rows)")
    A("s_bfe_u32 s43, s36, 0x10001", "nt")
    A("s_lshr_b32 s44, s36, 2", "kh")
    A("v_and_b32 v8, 31, v0", "i")
    A("v_and_b32 v9, 19, v8", "bits 4,1,0")
    A("v_bfe_u32 v10, v8, 2, 1")
    A("v_lshl_or_b32 v9, v10, 3, v9")
    A("v_bfe_u32 v10, v8, 3, 1")
    A("v_lshl_or_b32 v9, v10, 2, v9", "pi(i)")
    A("s_lshl_b32 s45, s40, 5")
    A("v_add_u32 v9, s45, v9", "s")
    A("v_sub_u32 v10, 0x800, v9")
    A("v_mov_b32 v11, 0x400")
    A("v_cmp_eq_u32 vcc, 0, v9")
    A("s_cmp_eq_u32 s42, 1")
    A("s_cselect_b64 s[46:47], -1, 0")
    A("v_cndmask_b32 v10, v10, v11, vcc", "mirror(s)")
    A("v_cndmask_b32 v11, v9, v11, vcc", "t' for mirrored rows")
    A("v_cndmask_b32 v12, v9, v10, s[46:47]", "row")
    A("v_cndmask_b32 v13, v9, v11, s[46:47]", "t'")
    A("v_lshrrev_b32 v14, 5, v0", "h")
    A("v_lshlrev_b32 v15, 2, v12")
    A(f"s_mov_b32 s48, {hex(WS_G)}")
    A("buffer_load_dword v55, v15, s[4:7], s48 offen" + (" sc1" if opts.get("fuse12") else ""), "g[row]")
    A.c("this lane finalizes 8 columns: n0 = 64nb + 32nt + 16h + 8kh")
    A("s_lshl_b32 s49, s41, 6")
    A("s_lshl_b32 s50, s43, 5")
    A("s_add_u32 s49, s49, s50")
    A("s_lshl_b32 s50, s44, 3")
    A("s_add_u32 s49, s49, s50")
    A("v_lshlrev_b32 v6, 4, v14")
    A("v_add_u32 v6, s49, v6", "n0")
    A("v_lshlrev_b32 v4, 10, v12")
    A("v_lshl_add_u32 v4, v6, 1, v4", "v4 = output offset")
    A("s_lshr_b32 s50, s41, 2", "nb>=4: mirrored columns")
    A("s_xor_b32 s51, s50, s42", "arr = Yp when exactly one of row / column is mirrored")
    A("v_sub_u32 v7, 505, v6", "512 - n0 - 7")
    A("s_cmp_eq_u32 s50, 1")
    A("s_cselect_b64 s[54:55], -1, 0")
    A("v_cndmask_b32 v7, v6, v7, s[54:55]", "first e'")
    A("v_lshrrev_b32 v7, 2, v7", "q0 = piece of the first e'")
    A.c("tile row base = ((t'>>5)*9*2 + arr)*4096 + (t'&31)*16")
    A("v_lshrrev_b32 v15, 5, v13")
    A("v_mul_u32_u24 v15, 18, v15")
    A("v_add_u32 v15, s51, v15")
    A("v_lshlrev_b32 v15, 12, v15")
    A("v_and_b32 v5, 31, v13")
    A("v_lshl_add_u32 v15, v5, 4, v15")
    for p in range(3):
        A(f"v_add_u32 v5, {p}, v7", "piece q")
        A("v_lshrrev_b32 v10, 3, v5", "e-block")
        A("v_lshlrev_b32 v10, 13, v10")
        A("v_bfe_u32 v11, v5, 1, 2", "m")
        A("v_lshl_add_u32 v10, v11, 10, v10")
        A("v_and_b32 v11, 1, v5", "h of the piece")
        A("v_lshl_add_u32 v10, v11, 9, v10")
        A(f"v_add_u32 v{50+p}, v10, v15")
    A("v_lshlrev_b32 v2, 4, v0", "v2 = lane*16")
    A("v_bfe_u32 v10, v0, 2, 2", "r")
    A("v_lshl_add_u32 v11, v14, 2, v10", "4h + r")
    A("v_lshlrev_b32 v11, 7, v11", "*128")
    A("v_and_b32 v12, 1, v0")
    A("v_lshlrev_b32 v12, 1, v12", "2(c4&1)")
    A("v_bfe_u32 v13, v0, 4, 1", "g'")
    A("v_add_u32 v12, v12, v13")
    A("s_lshl_b32 s45, s43, 2")
    A("v_add_u32 v12, s45, v12", "logical piece")
    A("v_bfe_u32 v13, v0, 3, 1", "(r>>1)&1")
    A("v_lshlrev_b32 v13, 2, v13")
    A("v_xor_b32 v12, v12, v13")
    A("v_lshlrev_b32 v12, 4, v12")
    A("v_bfe_u32 v13, v0, 1, 1", "c4>>1")
    A("v_lshlrev_b32 v13, 3, v13")
    A("v_add3_u32 v3, v11, v12, v13")
    A("s_lshl_b32 s45, s44, 15", "16 heads * 2048")
    A("v_add_u32 v3, s45, v3", "v3 = Wo^T fragment address")
    ACC, WF, Y, OR = 16, [32, 36], 56, 72
    for r in range(16): A(f"v_mov_b32 v{ACC+r}, 0")
    A("s_lshl_b32 s56, s40, 11")
    A("s_lshl_b32 s57, s42, 10")
    A("s_add_u32 s56, s56, s57")
    A("s_lshl_b32 s57, s44, 20", "16 heads * 65536")
    A("s_add_u32 s56, s56, s57")
    A(f"s_add_u32 s56, s56, {hex(WS_O)}", "O' soffset")
    A(f"s_mov_b32 s52, {hex(WS_Y)}")
    A("s_barrier", "inputs published, Wo staged")
    ST(7)
    for n in range(16):
        A(f"s_add_u32 s57, s56, {n*65536}")
        A(f"buffer_load_dwordx4 {vr(OR+4*n,4)}, v2, s[4:7], s57 offen sc1")
    for p in range(3):
        A(f"buffer_load_dwordx4 {vr(Y+4*p,4)}, v{50+p}, s[4:7], s52 offen sc1")
    def wr(st, hd):
        A(f"ds_read_b64_tr_b16 {vr(WF[st],2)}, v3 offset:{hd*2048}")
        A(f"ds_read_b64_tr_b16 {vr(WF[st]+2,2)}, v3 offset:{hd*2048+1024}")
    wr(0, 0)
    for n in range(16):
        st = n & 1
        if n < 15:
            wr(1 - st, n + 1)
            lg = 2
        else:
            lg = 0
        A(f"s_waitcnt vmcnt({18 - n}) lgkmcnt({lg})")
        A(f"v_mfma_f32_32x32x16_bf16 {vr(ACC,16)}, {vr(WF[st],4)}, {vr(OR+4*n,4)}, {vr(ACC,16)}")
    ST(8)
    A.c("exchange: kh=0 keeps regs 0..7 (columns 16h+0..7), kh=1 keeps regs 8..15")
    A("s_lshl_b32 s45, s36, 11")
    A("s_add_u32 s45, s45, 0x10000")
    A("v_add_u32 v10, s45, v2", "own slot")
    A("s_xor_b32 s45, s36, 4")
    A("s_lshl_b32 s45, s45, 11")
    A("s_add_u32 s45, s45, 0x10000")
    A("v_add_u32 v11, s45, v2", "partner slot")
    A("s_nop 9")
    A("s_cmp_eq_u32 s44, 0")
    A("s_cbranch_scc0 K3_X1")
    A(f"ds_write_b128 v10, {vr(ACC+8,4)}")
    A(f"ds_write_b128 v10, {vr(ACC+12,4)} offset:1024")
    A("s_branch K3_X2")
    A.label("K3_X1")
    A(f"ds_write_b128 v10, {vr(ACC,4)}")
    A(f"ds_write_b128 v10, {vr(ACC+4,4)} offset:1024")
    A("s_waitcnt lgkmcnt(0)")
    for r in range(8): A(f"v_mov_b32 v{ACC+r}, v{ACC+8+r}")
    A.label("K3_X2")
    A("s_waitcnt lgkmcnt(0)")
    A("s_barrier")
    A(f"ds_read_b128 {vr(ACC+8,4)}, v11")
    A(f"ds_read_b128 {vr(ACC+12,4)}, v11 offset:1024")
    A("v_sub_f32 v54, 1.0, v55", "1-g")
    A("s_waitcnt vmcnt(0) lgkmcnt(0)")
    for r in range(8): A(f"v_add_f32 v{ACC+r}, v{ACC+r}, v{ACC+8+r}")
    A("s_cmp_eq_u32 s50, 1")
    A("s_cbranch_scc1 K3_EPI_M")
    for r in range(8): A(f"v_mul_f32 v{40+r}, v54, v{Y+r}")
    A("s_branch K3_EPI2")
    A.label("K3_EPI_M")
    A.c("mirrored: first e' = 505 - n0 = 1 mod 4 -> loaded index 1..8 ; column r <-> index 8 - r")
    for r in range(8): A(f"v_mul_f32 v{40+r}, v54, v{Y+8-r}")
    A.label("K3_EPI2")
    for r in range(8): A(f"v_fmac_f32 v{40+r}, v55, v{ACC+r}")
    for j in range(4): A(f"v_cvt_pk_bf16_f32 v{48+j}, v{40+2*j}, v{40+2*j+1}")
    A("buffer_store_dwordx4 v[48:51], v4, s[8:11], 0 offen")
    ST(9)
    ST.dump(10)
    if opts.get("rt"): A("s_waitcnt vmcnt(0)")
    rt_stamp(A, 1, 1, opts.get("rt"))
    A("s_endpgm")
```

```python
import sys
from common import *
from k1 import gen_k1
from k2 import gen_k2, K2_LDS
from k3 import gen_k3, K3_LDS

HEADER = """; Kernarg layout for this problem (96 bytes, ptrs only, base s[0:1]):
"""
def build(opts=None):
    opts = opts or {}
    A = Asm()
    ks = []
    gens = [lambda a: gen_k1(a, opts), lambda a: gen_k2(a, opts)]
    if not opts.get("fuse23"): gens.append(lambda a: gen_k3(a, opts))
    for g in gens:
        ks.append(g(A))
        A.raw("")
    if opts.get("empty"):
        kernel_header(A, "noop_kernel")
        A("s_endpgm")
        ks.append(("noop_kernel", 8, 16))
    out = HEADER
    noop = "; @launch kernel=noop_kernel grid=(1,1,1) block=(64,1,1) lds=0\n"
    em = opts.get("empty", 0)
    if em == 3: out += noop + noop
    out += f"; @launch kernel={ks[0][0]} grid=(256,1,1) block=(512,1,1) lds=163840\n"
    if opts.get("k1twice"): out += f"; @launch kernel={ks[0][0]} grid=(256,1,1) block=(512,1,1) lds=163840\n"
    if em == 1: out += noop
    out += f"; @launch kernel={ks[1][0]} grid=(256,1,1) block=(768,1,1) lds={K2_LDS}\n"
    if opts.get("k2twice"): out += f"; @launch kernel={ks[1][0]} grid=(256,1,1) block=(768,1,1) lds={K2_LDS}\n"
    if opts.get("k3twice"): out += f"; @launch kernel={ks[2][0]} grid=(256,1,1) block=(512,1,1) lds={K3_LDS}\n"
    if not opts.get("fuse23"): out += f"; @launch kernel={ks[2][0]} grid=(256,1,1) block=(512,1,1) lds={K3_LDS}\n"
    if em == 2: out += noop
    if em == 4: out += noop*4
    out += '.amdgcn_target "amdgcn-amd-amdhsa--gfx950"\n.text\n'
    out += A.text()
    for n, v, s in ks:
        out += kernel_desc(n, v, s)
    return out
if __name__ == "__main__":
    path = sys.argv[1] if len(sys.argv) > 1 else f"cdna_kernels/{NAME}.s"
    opts = {}
    for a in sys.argv[2:]:
        k, _, v = a.partition("=")
        opts[k] = int(v) if v else 1
    open(path, "w").write(build(opts))
    print("wrote", path)
```

```python
from common import *

def gen_k1(A, opts=None):
    opts = opts or {}
    F = opts.get("fuse12")
    SC = " sc1" if F else ""
    name = NAME + "_kernel" if F else "k1_proj_kernel"
    kernel_header(A, name)
    A.c("phase 1: QKV projection + FNet hidden-DFT stage (folded over s) + gate")
    A("s_cmp_ge_u32 s2, 256")
    A("s_cbranch_scc1 " + ("K2_END" if F else "K1_END"))
    rt_stamp(A, 0, 0, opts.get("rt"))
    if F: A("s_load_dwordx2 s[86:87], s[0:1], 80", "debug")
    A("s_load_dwordx4 s[24:27], s[0:1], 0", "x, wqkv")
    A("s_load_dwordx4 s[28:31], s[0:1], 48", "hid_re, hid_im")
    A("s_load_dwordx2 s[32:33], s[0:1], 64", "gate_w")
    A("s_load_dwordx2 s[34:35], s[0:1], 88", "ws")
    A("v_lshrrev_b32 v1, 6, v0")
    A("v_and_b32 v0, 63, v0", "lane")
    A("v_readfirstlane_b32 s36, v1", "wave id")
    if opts.get("map1"):
        A("s_and_b32 s37, s2, 7", "hg = head group")
        A("s_lshr_b32 s38, s2, 3")
        A("s_and_b32 s39, s38, 1", "type: 0 = K|V tile, 1 = Q|FNet tile")
        A("s_lshr_b32 s40, s38, 1", "rb")
    else:
        A.c("workgroups with equal id&7 usually share an XCD (speed only): give them an 8 row-block x 4 column-pair patch")
        A("s_and_b32 s38, s2, 7")
        A("s_lshr_b32 s40, s2, 3", "r")
        A("s_and_b32 s39, s40, 1", "type: 0 = K|V tile, 1 = Q|FNet tile")
        A("s_and_b32 s37, s38, 6")
        A("s_bfe_u32 s41, s40, 0x10001")
        A("s_add_u32 s37, s37, s41", "hg = head group (0..7) = 2*(x>>1) + ((r>>1)&1)")
        A("s_lshr_b32 s40, s40, 2")
        A("s_and_b32 s38, s38, 1")
        A("s_lshl_b32 s38, s38, 3")
        A("s_add_u32 s40, s40, s38", "rb = 8*(x&1) + (r>>2)")
    A("s_waitcnt lgkmcnt(0)")
    srd(A, 16, 34, WS_SIZE)
    ST = opts.get("_ST") or Stamps(A, opts.get("stamps"), 0, 16, 36)
    STF = Stamps(A, opts.get("stamps") if (F and opts.get("p1st")) else False, 0, 16, 36)
    if F: ST = Stamps(A, False, 0, 16, 36)
    if F and opts.get("stamps"):
        A("s_memrealtime s[70:71]" if opts.get("stamps") == 2 else "s_memtime s[70:71]")
        A("s_waitcnt lgkmcnt(0)")
        A("s_mov_b32 s72, s70")
    ST(0)
    if F:
        A("s_cmp_ge_u32 s36, 8")
        A("s_cbranch_scc1 K1_LOADER")
        A("s_cmp_ge_u32 s36, 4")
        A("s_cbranch_scc0 K1_COMPUTE")
        A.c("waves 4..7 have no phase-1 work: they only take part in the 8 stage barriers")
        for b in range(8): A("s_barrier")
        A("s_branch P1_END")
        A.label("K1_COMPUTE")
    else:
        A("s_cmp_ge_u32 s36, 4")
        A("s_cbranch_scc1 K1_LOADER")

    A.c("compute waves: wr = w>>1, wc = w&1")
    A("s_lshr_b32 s42, s36, 1", "wr")
    A("s_and_b32 s43, s36, 1", "wc")
    if opts.get("touch", 1):
        A.c("L2 warm-up (speed only): the 32 workgroups that usually share an XCD each touch a distinct 1/32 of the lines that XCD needs")
        srd(A, 4, 24, 0x200000)
        A("s_lshr_b32 s50, s2, 3", "r")
        A("s_and_b32 s51, s50, 3", "c")
        A("s_lshr_b32 s50, s50, 2", "i")
        A.c("x: row = c<2 ? 64rb + 32c + l : 2048 - (64rb + 32(c-2) + l) ; chunk = 2w + (lane>>5)")
        A("s_and_b32 s52, s51, 1")
        A("s_lshl_b32 s52, s52, 5")
        A("s_lshl_b32 s53, s40, 6")
        A("s_add_u32 s52, s52, s53")
        A("v_and_b32 v8, 31, v0")
        A("v_add_u32 v8, s52, v8")
        A("v_sub_u32 v9, 0x800, v8")
        A("s_cmp_ge_u32 s51, 2")
        A("s_cselect_b64 s[54:55], -1, 0")
        A("v_cndmask_b32 v8, v8, v9, s[54:55]")
        A("v_lshlrev_b32 v8, 10, v8")
        A("v_lshrrev_b32 v9, 5, v0")
        A("v_lshl_add_u32 v8, v9, 7, v8")
        A("s_lshl_b32 s52, s36, 8", "2w*128")
        A("buffer_load_dword v14, v8, s[4:7], s52 offen")
        A.c("W: waves 0 and 2: chunks 2w + (lane>>4), k row = 64 chunk + 16 (i&3) + (lane&15), group g = i>>2")
        A("s_bitcmp1_b32 s36, 0")
        A("s_cbranch_scc1 K1_NOWT")
        A("s_cmp_lt_u32 s37, 4")
        A("s_cselect_b32 s44, s28, s30")
        A("s_cselect_b32 s45, s29, s31")
        A("s_lshl_b32 s47, s37, 7")
        A("s_and_b32 s49, s37, 3")
        A("s_lshl_b32 s49, s49, 7")
        A("s_add_u32 s53, s47, 2048")
        A("s_movk_i32 s56, 1024")
        A("s_cmp_eq_u32 s39, 0")
        A("s_cselect_b32 s8, s26, s44")
        A("s_cselect_b32 s9, s27, s45")
        A("s_cselect_b32 s46, 3072, s56", "stride1")
        A("s_cselect_b32 s48, s56, 0")
        A("s_cselect_b32 s49, s53, s49", "colbase1*2")
        A("s_add_u32 s48, s48, s47", "colbase0*2")
        A("s_cmp_lt_u32 s50, 4", "group 0 -> wqkv / colbase0 / stride 3072")
        A("s_cselect_b32 s8, s26, s8")
        A("s_cselect_b32 s9, s27, s9")
        A("s_cselect_b32 s46, 3072, s46")
        A("s_cselect_b32 s48, s48, s49")
        A("s_and_b32 s9, s9, 0xffff")
        A("s_cmp_eq_u32 s46, 1024")
        A("s_mov_b32 s10, 0x180000")
        A("s_cselect_b32 s10, 0x80000, s10")
        A("s_mov_b32 s11, 0x20000")
        A("s_and_b32 s52, s50, 3")
        A("s_lshl_b32 s52, s52, 4")
        A("s_lshl_b32 s53, s36, 7", "2w*64")
        A("s_add_u32 s52, s52, s53")
        A("v_lshrrev_b32 v9, 4, v0")
        A("v_lshlrev_b32 v9, 6, v9")
        A("v_and_b32 v10, 15, v0")
        A("v_add3_u32 v9, v9, v10, s52", "k row")
        A("v_mul_lo_u32 v9, v9, s46")
        A("buffer_load_dword v15, v9, s[8:11], s48 offen")
        A.label("K1_NOWT")
    A("v_and_b32 v8, 31, v0", "i")
    A("v_lshrrev_b32 v9, 5, v0", "h")
    A("v_bfe_u32 v10, v0, 1, 3", "sw = (i>>1)&7")
    A("v_xor_b32 v10, v10, v9")
    A("v_lshlrev_b32 v10, 4, v10", "(h^sw)*16")
    A("s_lshl_b32 s44, s42, 13", "wr*64*128")
    A("v_lshlrev_b32 v11, 7, v8")
    A("v_add3_u32 v2, v11, v10, s44", "ax[0]")
    A("v_xor_b32 v3, 32, v2")
    A("v_xor_b32 v4, 64, v2")
    A("v_xor_b32 v5, 0x60, v2")
    A("v_bfe_u32 v10, v0, 2, 2", "r")
    A("v_lshl_add_u32 v11, v9, 3, v10", "8h + r")
    A("v_lshlrev_b32 v11, 7, v11", "*128")
    A("v_bfe_u32 v12, v0, 4, 1", "g'")
    A("v_bfe_u32 v13, v0, 1, 1", "c4>>1")
    A("v_lshl_add_u32 v12, v12, 1, v13", "2g' + (c4>>1)")
    A("v_bfe_u32 v13, v0, 3, 1", "(r>>1)&1")
    A("v_lshlrev_b32 v13, 2, v13")
    A("v_xor_b32 v12, v12, v13", "phys piece (ct=0)")
    A("v_lshlrev_b32 v12, 4, v12")
    A("v_and_b32 v13, 1, v0")
    A("v_lshlrev_b32 v13, 3, v13", "8*(c4&1)")
    A("v_add3_u32 v11, v11, v12, v13")
    A("s_lshl_b32 s44, s43, 13")
    A("s_add_u32 s44, s44, 16384")
    A("v_add_u32 v6, s44, v11", "aw[0]")
    A("v_xor_b32 v7, 64, v6", "aw[1]")
    for r in range(64, 128):
        A(f"v_mov_b32 v{r}, 0")
    XF = [[16, 20], [32, 36]]
    WF = [[24, 28], [40, 44]]
    def acc(rt, ct): return 64 + 16*(2*rt + ct)
    def reads(st, ks):
        L = []
        L.append(f"ds_read_b128 {vr(XF[st][0],4)}, v{2+ks}")
        L.append(f"ds_read_b128 {vr(XF[st][1],4)}, v{2+ks} offset:4096")
        for ct in range(2):
            L.append(f"ds_read_b64_tr_b16 {vr(WF[st][ct],2)}, v{6+ct} offset:{ks*2048}")
            L.append(f"ds_read_b64_tr_b16 {vr(WF[st][ct]+2,2)}, v{6+ct} offset:{ks*2048+512}")
        return L
    def mfmas(st, wc):
        L = []
        for rt in range(2):
            for ct in range(2):
                a = acc(rt, ct)
                if wc == 0:
                    L.append(f"v_mfma_f32_32x32x16_bf16 {vr(a,16)}, {vr(WF[st][ct],4)}, {vr(XF[st][rt],4)}, {vr(a,16)}")
                else:
                    L.append(f"v_mfma_f32_32x32x16_bf16 {vr(a,16)}, {vr(XF[st][rt],4)}, {vr(WF[st][ct],4)}, {vr(a,16)}")
        return L
    ST(1)
    A("s_barrier", "#0: stage 0 landed")
    STF(4)
    ST(2)
    for s in reads(0, 0): A(s)
    A("s_mov_b32 s45, 0", "stage counter")
    A("s_cmp_eq_u32 s43, 0")
    A("s_cbranch_scc0 K1_LOOP1")
    for wc in range(2):
        A.raw(".p2align 6")
        A.label(f"K1_LOOP{wc}")
        for ks in range(4):
            st = ks & 1
            A("s_waitcnt lgkmcnt(0)")
            if ks == 3:
                A("s_mov_b32 s46, 0x8000")
                A("s_cmp_eq_u32 s45, 4")
                A("s_cselect_b32 s46, 0xfffe0000, s46", "5-slot ring: slot 4 -> slot 0")
                for r in range(2, 8):
                    A(f"v_add_u32 v{r}, s46, v{r}")
                A("s_cmp_eq_u32 s45, 7")
                lab = f"K1_NOBAR{wc}"
                A(f"s_cbranch_scc1 {lab}")
                A("s_barrier")
                A.label(lab)
            rd = reads(1 - st, (ks + 1) & 3)
            mf = mfmas(st, wc)
            if opts.get("noreads"): rd = ["s_nop 0"]*6
            if opts.get("nomfma"): mf = ["s_nop 0"]*4
            A(mf[0]); A(rd[0]); A(rd[1]); A(rd[2]); A(mf[1]); A(rd[3]); A(rd[4]); A(rd[5]); A(mf[2]); A(mf[3])
        A("s_add_u32 s45, s45, 1")
        A("s_cmp_lt_u32 s45, 8")
        A(f"s_cbranch_scc1 K1_LOOP{wc}")
        if wc == 0:
            A("s_branch K1_EPI_QK")
    A("s_cmp_eq_u32 s39, 0")
    A("s_cbranch_scc0 K1_EPI_F")

    ST(3)
    STF(5)
    A.c("V epilogue")
    A("s_waitcnt lgkmcnt(0)")
    A("v_and_b32 v8, 15, v0", "d")
    A("v_lshlrev_b32 v8, 4, v8")
    A("v_bfe_u32 v9, v0, 4, 1", "head low bit")
    A("v_lshlrev_b32 v9, 16, v9")
    A("v_lshrrev_b32 v10, 5, v0")
    A("v_lshlrev_b32 v10, 8, v10", "h*256")
    A("v_add3_u32 v8, v8, v9, v10")
    A.c("soffset = WS_V + (4x_)*65536 + tile*1024, tile = 4rb + 2wr + rt")
    A("s_lshl_b32 s46, s37, 18")
    A("s_lshl_b32 s47, s40, 2")
    A("s_lshl_b32 s48, s42, 1")
    A("s_add_u32 s47, s47, s48")
    A("s_lshl_b32 s47, s47, 10")
    A("s_add_u32 s46, s46, s47")
    A(f"s_add_u32 s46, s46, {hex(WS_V)}")
    A("s_nop 7")
    tmp = 16
    for rt in range(2):
        for ct in range(2):
            a = acc(rt, ct)
            for ch in range(2):
                for j in range(4):
                    A(f"v_cvt_pk_bf16_f32 v{tmp+j}, v{a+8*ch+2*j}, v{a+8*ch+2*j+1}")
                A(f"s_add_u32 s47, s46, {rt*1024 + ct*2*65536}")
                A(f"buffer_store_dwordx4 {vr(tmp,4)}, v8, s[16:19], s47 offen offset:{ch*512}{SC}")
                tmp = 16 + (tmp - 16 + 4) % 32
    if F:
        A("s_branch P1_END")
    else:
        ST(4)
        if opts.get("stamps"): A("s_waitcnt vmcnt(0)")
        ST(5)
        ST.dump(6)
        if opts.get("rt"): A("s_waitcnt vmcnt(0)")
        rt_stamp(A, 0, 1, opts.get("rt"))
        A("s_endpgm")

    A.label("K1_EPI_F")
    ST(3)
    STF(5)
    A.c("FNet epilogue: A' = acc(s) + acc(mirror) (re), B' = acc(s) - acc(mirror) (im)")
    A("s_waitcnt lgkmcnt(0)")
    A("s_cmp_lt_u32 s37, 4")
    A("s_cselect_b32 s46, 1.0, -1.0", "sign")
    A(f"s_mov_b32 s48, {hex(WS_BP)}")
    A(f"s_cselect_b32 s47, {hex(WS_AP)}, s48")
    A("s_and_b32 s48, s37, 3")
    A("s_lshl_b32 s48, s48, 17", "eblk*65536, eblk = 2*(x_&3)")
    A("s_add_u32 s47, s47, s48")
    A("s_lshl_b32 s48, s40, 2")
    A("s_lshl_b32 s49, s42, 1")
    A("s_add_u32 s48, s48, s49", "ks0 = 4rb + 2wr")
    A("s_lshl_b32 s49, s48, 10")
    A("s_add_u32 s47, s47, s49")
    A("v_lshlrev_b32 v8, 4, v0")
    A("s_nop 4")
    A.c("s == 0 special: row 0 pairs with row 1024 (only for re columns, rb == 0, wr == 0)")
    A("s_cmp_eq_u32 s48, 0")
    A("s_cbranch_scc0 K1_EPI_F2")
    A("s_cmp_lt_u32 s37, 4")
    A("s_cbranch_scc0 K1_EPI_F2")
    A("s_mov_b32 exec_lo, -1", "lanes 0..31")
    A("s_mov_b32 exec_hi, 0")
    A("v_lshlrev_b32 v9, 2, v0")
    A("s_lshl_b32 s49, s37, 8", "e base = 64 x_ -> *4 bytes")
    A(f"s_add_u32 s49, s49, {hex(WS_A1024)}")
    for ct in range(2):
        A(f"buffer_store_dword v{acc(1,ct)}, v9, s[16:19], s49 offen offset:{ct*128}{SC}")
    A("s_nop 1")
    for ct in range(2):
        A(f"v_mov_b32 v{acc(1,ct)}, 0")
    A("s_mov_b64 exec, -1")
    A.label("K1_EPI_F2")
    tmp = 16
    for ct in range(2):
        a0 = acc(0, ct); a1 = acc(1, ct)
        for r in range(16):
            A(f"v_fma_f32 v{a0+r}, v{a1+r}, s46, v{a0+r}")
        for ch in range(2):
            for j in range(4):
                A(f"v_cvt_pk_bf16_f32 v{tmp+j}, v{a0+8*ch+2*j}, v{a0+8*ch+2*j+1}")
            A(f"s_add_u32 s49, s47, {ct*65536}")
            A(f"buffer_store_dwordx4 {vr(tmp,4)}, v8, s[16:19], s49 offen offset:{ch*1024}{SC}")
            tmp = 16 + (tmp - 16 + 4) % 32
    if F:
        A("s_branch P1_END")
    else:
        ST(4)
        if opts.get("stamps"): A("s_waitcnt vmcnt(0)")
        ST(5)
        ST.dump(6)
        if opts.get("rt"): A("s_waitcnt vmcnt(0)")
        rt_stamp(A, 0, 1, opts.get("rt"))
        A("s_endpgm")

    A.label("K1_EPI_QK")
    ST(3)
    STF(5)
    A.c("Q/K epilogue")
    A("s_waitcnt lgkmcnt(0)")
    c = 0.25*math.log2(math.e)
    A("s_cmp_eq_u32 s39, 0")
    A(f"s_cselect_b32 s46, 1.0, {hex(f2u(c))}", "K: 1.0, Q: 0.25*log2(e)")
    A(f"s_cselect_b32 s47, {hex(WS_K)}, {hex(WS_Q)}" if WS_Q > 64 else f"s_cselect_b32 s47, {hex(WS_K)}, {WS_Q}")
    A("s_lshl_b32 s48, s37, 18", "head base 4x_ * 65536")
    A("s_add_u32 s47, s47, s48")
    A("s_lshl_b32 s48, s40, 2")
    A("s_lshl_b32 s49, s42, 1")
    A("s_add_u32 s48, s48, s49")
    A("s_lshl_b32 s48, s48, 10", "tile*1024")
    A("s_add_u32 s47, s47, s48")
    A("v_lshlrev_b32 v8, 4, v0")
    A("s_nop 7")
    tmp = 16
    for rt in range(2):
        for ct in range(2):
            a = acc(rt, ct)
            for hd in range(2):
                for j in range(8):
                    A(f"v_mul_f32 v{a+8*hd+j}, s46, v{a+8*hd+j}")
                for j in range(4):
                    A(f"v_cvt_pk_bf16_f32 v{tmp+j}, v{a+8*hd+2*j}, v{a+8*hd+2*j+1}")
                A(f"s_add_u32 s49, s47, {rt*1024 + (2*ct+hd)*65536}")
                A(f"buffer_store_dwordx4 {vr(tmp,4)}, v8, s[16:19], s49 offen{SC}")
                tmp = 16 + (tmp - 16 + 4) % 32
    if F:
        A("s_branch P1_END")
    else:
        ST(4)
        if opts.get("stamps"): A("s_waitcnt vmcnt(0)")
        ST(5)
        ST.dump(6)
        if opts.get("rt"): A("s_waitcnt vmcnt(0)")
        rt_stamp(A, 0, 1, opts.get("rt"))
        A("s_endpgm")

    A.label("K1_LOADER")
    srd(A, 4, 24, 0x200000)
    if F:
        A.c("launch epoch: workgroup 0 publishes a nonzero time stamp in d_debug[0] (zero at launch); hand-off flags in d_ws carry it")
        A("s_mov_b32 s92, s86")
        A("s_and_b32 s93, s87, 0xffff")
        A("s_mov_b32 s94, 0x100")
        A("s_mov_b32 s95, 0x20000")
        A("s_sub_u32 s50, s36, 8")
        A("s_or_b32 s50, s50, s2")
        A("s_cmp_eq_u32 s50, 0")
        A("s_cbranch_scc0 K1_NOEPOCH")
        A("s_memrealtime s[50:51]")
        A("s_waitcnt lgkmcnt(0)")
        A("s_or_b32 s50, s50, 1")
        A("v_mov_b32 v2, s50")
        A("v_mov_b32 v3, 0")
        A("s_mov_b64 exec, 1")
        A("buffer_store_dword v2, v3, s[92:95], 0 offen sc1")
        A("s_mov_b64 exec, -1")
        A.label("K1_NOEPOCH")
    A(f"s_sub_u32 s41, s36, {8 if F else 4}", "j")
    A("s_lshr_b32 s42, s41, 1", "wr")
    A("s_and_b32 s43, s41, 1", "rt")
    A("v_lshrrev_b32 v9, 3, v0", "a")
    A("v_lshrrev_b32 v10, 2, v9")
    A("v_lshlrev_b32 v10, 3, v10", "8*(a>>2)")
    A("v_and_b32 v11, 3, v9")
    A("s_lshl_b32 s52, s40, 6")
    A("s_lshl_b32 s53, s42, 5")
    A("s_add_u32 s52, s52, s53", "64rb + 32wr")
    A("v_add3_u32 v10, v10, v11, s52", "sa")
    A("v_and_b32 v11, 7, v0")
    A("v_lshrrev_b32 v12, 1, v9")
    A("v_xor_b32 v12, v11, v12", "p0")
    A("s_cmp_eq_u32 s43, 1")
    A("s_cselect_b64 s[68:69], -1, 0")
    A("v_mov_b32 v14, 0x400")
    A("s_lshl_b32 s53, s41, 12", "j*4096")
    A.c("K-chunk order is rotated per workgroup so that workgroups sharing x rows / W columns first-touch different chunks")
    A("s_lshr_b32 s66, s2, 3", "r")
    A("s_lshr_b32 s67, s66, 2")
    A("s_and_b32 s66, s66, 3")
    A("s_lshl_b32 s66, s66, 1")
    A("s_add_u32 s66, s66, s67")
    A("s_and_b32 s66, s66, 7" if opts.get("rot", 1) else "s_mov_b32 s66, 0", "kappa")
    A("s_lshl_b32 s55, s66, 7", "x soffset = kappa*128")
    for u in range(4):
        A(f"v_add_u32 v13, {16*(u>>1)+4*(u&1)}, v10")
        A(f"v_sub_u32 v15, 0x800, v13")
        A(f"v_cndmask_b32 v13, v13, v15, s[68:69]")
        if u == 0:
            A("v_cmp_eq_u32 vcc, 0x800, v13")
            A("s_nop 1")
            A("v_cndmask_b32 v13, v13, v14, vcc")
        A(f"v_lshlrev_b32 v13, 10, v13")
        if u & 1:
            A(f"v_xor_b32 v15, 4, v12")
            A(f"v_lshl_add_u32 v{2+u}, v15, 4, v13")
        else:
            A(f"v_lshl_add_u32 v{2+u}, v12, 4, v13")
        A(f"s_add_u32 m0, s53, {u*1024}")
        A("s_nop 0")
        A(f"buffer_load_dwordx4 v{2+u}, s[4:7], s55 offen lds", "x, stage 0")
    srd(A, 8, 26, 0x180000)
    srd(A, 20, 32, 0x400)
    A.c("W1 source: type 0 -> wqkv V columns; type 1 -> hid_re (hg<4) / hid_im")
    A("s_cmp_lt_u32 s37, 4")
    A("s_cselect_b32 s44, s28, s30")
    A("s_cselect_b32 s45, s29, s31")
    A("s_lshl_b32 s47, s37, 7", "64 hg * 2")
    A("s_and_b32 s49, s37, 3")
    A("s_lshl_b32 s49, s49, 7", "64 (hg&3) * 2")
    A("s_add_u32 s63, s47, 2048", "(1024 + 64hg)*2")
    A("s_mov_b32 s64, 0x80000")
    A("s_movk_i32 s65, 1024")
    A("s_cmp_eq_u32 s39, 0")
    A("s_cselect_b32 s12, s26, s44")
    A("s_cselect_b32 s13, s27, s45")
    A("s_cselect_b32 s14, 0x180000, s64")
    A("s_mov_b32 s15, 0x20000")
    A("s_cselect_b32 s46, 3072, s65", "stride1")
    A("s_cselect_b32 s48, s65, 0", "type0: K columns start at 512")
    A("s_cselect_b32 s49, s63, s49", "colbase1*2")
    A("s_and_b32 s13, s13, 0xffff")
    A("s_add_u32 s48, s48, s47", "colbase0*2")
    A("v_bfe_u32 v13, v9, 1, 1")
    A("v_lshlrev_b32 v13, 2, v13")
    A("v_xor_b32 v13, v11, v13", "q")
    A("v_lshlrev_b32 v13, 4, v13", "q*16")
    A("s_lshl_b32 s52, s41, 4")
    A("v_add_u32 v15, s52, v9", "k = 16j + a")
    A("s_movk_i32 s63, 3072")
    A("v_mul_lo_u32 v6, v15, s63")
    A("v_add3_u32 v6, v6, v13, s48")
    A("v_mul_lo_u32 v7, v15, s46")
    A("v_add3_u32 v7, v7, v13, s49")
    A("s_lshl_b32 s54, s41, 11")
    A("s_add_u32 s54, s54, 16384", "16384 + j*2048")
    A("s_mov_b32 s52, 0", "slot base")
    A("s_lshl_b32 s58, s46, 3", "8*stride1")
    A("s_lshl_b32 s59, s46, 6", "64*stride1")
    A("s_mul_i32 s56, s66, 196608", "w0 soffset")
    A("s_mul_i32 s57, s66, s59", "w1 soffset")
    A("s_mov_b32 s62, 0", "cnt")
    A("s_branch K1_ISSUE_W")
    A.label("K1_ISSUE")
    A("s_add_u32 s60, s52, s53")
    for u in range(4):
        A(f"s_add_u32 m0, s60, {u*1024}")
        A("s_nop 0")
        if not opts.get("nodma"): A(f"buffer_load_dwordx4 v{2+u}, s[4:7], s55 offen lds")
    A.label("K1_ISSUE_W")
    A("s_add_u32 s60, s52, s54")
    A("s_mov_b32 m0, s60")
    A("s_add_u32 s61, s56, 24576")
    if not opts.get('nodma'): A("buffer_load_dwordx4 v6, s[8:11], s56 offen lds")
    A("s_add_u32 m0, s60, 1024")
    A("s_nop 0")
    if not opts.get('nodma'): A("buffer_load_dwordx4 v6, s[8:11], s61 offen lds")
    A("s_add_u32 m0, s60, 8192")
    A("s_add_u32 s61, s57, s58")
    if not opts.get('nodma'): A("buffer_load_dwordx4 v7, s[12:15], s57 offen lds")
    A("s_add_u32 m0, s60, 9216")
    A("s_nop 0")
    if not opts.get('nodma'): A("buffer_load_dwordx4 v7, s[12:15], s61 offen lds")
    A("s_add_u32 s52, s52, 0x8000")
    A("s_cmp_eq_u32 s52, 0x28000")
    A("s_cselect_b32 s52, 0, s52", "5-slot ring")
    A("s_add_u32 s55, s55, 128")
    A("s_add_u32 s56, s56, 196608")
    A("s_add_u32 s57, s57, s59")
    A("s_cmp_eq_u32 s55, 1024", "kappa wraps")
    A("s_cselect_b32 s55, 0, s55")
    A("s_cselect_b32 s56, 0, s56")
    A("s_cselect_b32 s57, 0, s57")
    A("s_add_u32 s62, s62, 1")
    A.c("st0 st1 | wait st0, bar0 | st2 st3 | wait st1, bar1 | st4 st5 | wait st2, bar2 | st6 | bar3 | st7 | bar4 | bar5 | bar6 | bar7")
    A("s_bitcmp1_b32 0x2a, s62", "after issuing stage 0, 2, 4 (cnt = 1, 3, 5): issue the next one at once")
    A("s_cbranch_scc1 K1_ISSUE")
    A("s_cmp_eq_u32 s62, 2")
    A("s_cbranch_scc0 K1_NOT2")
    ST(1)
    A("s_waitcnt vmcnt(8)")
    A("s_barrier", "#0")
    ST(2)
    A("s_branch K1_ISSUE")
    A.label("K1_NOT2")
    A("s_cmp_eq_u32 s62, 4")
    A("s_cbranch_scc0 K1_NOT4")
    A("s_waitcnt vmcnt(16)")
    A("s_barrier", "#1")
    A("s_branch K1_ISSUE")
    A.label("K1_NOT4")
    A("s_waitcnt vmcnt(24)")
    A("s_barrier", "#2 (cnt 6), #3 (cnt 7), #4 (cnt 8)")
    A("s_cmp_lt_u32 s62, 8")
    A("s_cbranch_scc1 K1_ISSUE")
    A("s_waitcnt vmcnt(16)")
    A("s_barrier", "#5")
    A.c("gate rows (loaded now: the DMA queue is nearly drained): pair pi = (2hg+type)*4 + j ; s = 64rb + pi")
    A("s_lshl_b32 s50, s37, 1")
    A("s_add_u32 s50, s50, s39")
    A("s_lshl_b32 s50, s50, 2")
    A("s_add_u32 s50, s50, s41")
    A("s_lshl_b32 s51, s40, 6")
    A("s_add_u32 s50, s50, s51", "s50 = s")
    A("s_sub_u32 s51, 2048, s50")
    A("s_cmp_eq_u32 s50, 0")
    A("s_cselect_b32 s51, 1024, s51", "s51 = mirror row")
    A("v_lshlrev_b32 v8, 4, v0")
    A("s_lshl_b32 s52, s50, 10")
    A("s_lshl_b32 s53, s51, 10")
    A("buffer_load_dwordx4 v[16:19], v8, s[4:7], s52 offen")
    A("buffer_load_dwordx4 v[20:23], v8, s[4:7], s53 offen")
    A("buffer_load_dwordx4 v[24:27], v8, s[20:23], 0 offen")
    A("s_waitcnt vmcnt(11)")
    A("s_barrier", "#6")
    A("s_waitcnt vmcnt(3)")
    A("s_barrier", "#7")
    ST(3)
    A("s_waitcnt vmcnt(0)")
    A.c("gate z = sum x*w ; alt = sum (-1)^d x   for rows s (v16..19) and mirror (v20..23)")
    for j in range(4):
        A(f"v_lshlrev_b32 v{28+2*j}, 16, v{24+j}", "w lo")
        A(f"v_and_b32 v{29+2*j}, 0xffff0000, v{24+j}", "w hi")
    for row in range(2):
        z = 40 + row; al = 42 + row
        for j in range(4):
            src = 16 + 4*row + j
            A(f"v_lshlrev_b32 v36, 16, v{src}")
            A(f"v_and_b32 v37, 0xffff0000, v{src}")
            if j == 0:
                A(f"v_mul_f32 v{z}, v36, v28")
                A(f"v_sub_f32 v{al}, v36, v37")
            else:
                A(f"v_fmac_f32 v{z}, v36, v{28+2*j}")
                A(f"v_add_f32 v{al}, v{al}, v36")
                A(f"v_sub_f32 v{al}, v{al}, v37")
            A(f"v_fmac_f32 v{z}, v37, v{29+2*j}")
    A("s_nop 1")
    for dpp in ["quad_perm:[1,0,3,2] row_mask:0xf bank_mask:0xf", "quad_perm:[2,3,0,1] row_mask:0xf bank_mask:0xf",
                "row_half_mirror row_mask:0xf bank_mask:0xf", "row_mirror row_mask:0xf bank_mask:0xf",
                "row_bcast:15 row_mask:0xa bank_mask:0xf", "row_bcast:31 row_mask:0xc bank_mask:0xf"]:
        for r in range(40, 44):
            A(f"v_add_f32_dpp v{r}, v{r}, v{r} {dpp}")
    A("s_nop 1")
    A("s_mov_b32 exec_lo, 0")
    A("s_mov_b32 exec_hi, 0x80000000", "lane 63 holds the totals")
    nl2e = f2u(-math.log2(math.e))
    for row in range(2):
        A(f"v_mul_f32 v{40+row}, {hex(nl2e)}, v{40+row}")
        A(f"v_exp_f32 v{40+row}, v{40+row}")
        A("s_nop 0")
        A(f"v_add_f32 v{40+row}, 1.0, v{40+row}")
        A(f"v_rcp_f32 v{40+row}, v{40+row}")
    A("s_lshl_b32 s52, s50, 2")
    A("s_lshl_b32 s53, s51, 2")
    A(f"s_add_u32 s52, s52, {hex(WS_G)}")
    A(f"s_add_u32 s53, s53, {hex(WS_G)}")
    A("v_mov_b32 v8, 0")
    A("buffer_store_dword v40, v8, s[16:19], s52 offen" + SC)
    A("buffer_store_dword v41, v8, s[16:19], s53 offen" + SC)
    A.c("A'256[s] = alt(s) + alt(mirror)  (s >= 1);  s == 0: A'256[0] = alt(0), A1024[256] = alt(1024)")
    A("s_cmp_eq_u32 s50, 0")
    A("s_cbranch_scc0 K1_G2")
    A(f"s_mov_b32 s52, {hex(WS_A1024 + 256*4)}")
    A("buffer_store_dword v43, v8, s[16:19], s52 offen" + SC)
    A("s_nop 1")
    A("v_mov_b32 v43, 0")
    A.label("K1_G2")
    A("v_add_f32 v42, v42, v43")
    A("s_lshr_b32 s52, s50, 4")
    A("s_lshl_b32 s52, s52, 10", "ks*1024")
    A("s_bfe_u32 s53, s50, 0x10003", "(s>>3)&1")
    A("s_lshl_b32 s53, s53, 9")
    A("s_add_u32 s52, s52, s53")
    A("s_and_b32 s53, s50, 7")
    A("s_lshl_b32 s53, s53, 1")
    A("s_add_u32 s52, s52, s53")
    A(f"s_add_u32 s52, s52, {hex(WS_AP + 8*65536)}")
    A("v_cvt_pk_bf16_f32 v42, v42, v42")
    A("buffer_store_short v42, v8, s[16:19], s52 offen" + SC)
    if F:
        A("s_mov_b64 exec, -1")
        A.c("wave 8 fetches the epoch")
        A("s_cmp_eq_u32 s36, 8")
        A("s_cbranch_scc0 P1_END")
        A("v_mov_b32 v5, 0")
        A("s_mov_b32 s51, 0")
        A.label("K1_EPSPIN")
        A("buffer_load_dword v6, v5, s[92:95], 0 offen sc1")
        A("s_waitcnt vmcnt(0)")
        A("v_readfirstlane_b32 s65, v6")
        A("s_add_u32 s51, s51, 1")
        A("s_cmp_lg_u32 s65, 0")
        A("s_cbranch_scc1 P1_END")
        A("s_sleep 8")
        A("s_cmp_lt_u32 s51, 0x40000")
        A("s_cbranch_scc1 K1_EPSPIN")
        A.label("P1_END")
        A("s_waitcnt vmcnt(0)", "this wave's phase-1 stores have reached memory")
        A("s_barrier", "E1: all phase-1 stores of the workgroup are done")
        A.c("phase-1 flag word of this workgroup: F1[hg][2rb + type]")
        A("s_lshl_b32 s66, s37, 7")
        A("s_lshl_b32 s67, s40, 3")
        A("s_add_u32 s66, s66, s67")
        A("s_lshl_b32 s67, s39, 2")
        A("s_add_u32 s66, s66, s67")
        return name, 168, 96
    ST(4)
    ST(5)
    ST.dump(6)
    A.label("K1_END")
    if opts.get("rt"): A("s_waitcnt vmcnt(0)")
    rt_stamp(A, 0, 1, opts.get("rt"))
    A("s_endpgm")
    return name, 128, (96 if (opts.get('stamps') or opts.get('rt')) else 70)
```

```python
from common import *

LDS_V = 65536
LDS_F = 131072
LDS_X = LDS_F + 12288
LDS_ONES = LDS_X + 18432
LDS_CNT = LDS_ONES + 1664
K2_LDS = LDS_CNT + 64
assert LDS_ONES % 256 == 0 and K2_LDS <= 163840

def gen_k2(A, opts=None):
    opts = opts or {}
    F12 = opts.get("fuse12")
    SC1 = " sc1" if F12 else ""
    name = "k2_attn_kernel"
    if not F12:
        kernel_header(A, name)
        A.c("K2: attention (8 waves) + K/V loaders & FNet sequence-DFT stage (4 waves).  256 WGs x 768 threads")
        A("s_cmp_ge_u32 s2, 256")
        A("s_cbranch_scc1 K2_END")
        rt_stamp(A, 1, 0, opts.get("rt"))
    else:
        A.c("phase 2: attention (8 waves) + K/V loaders & FNet sequence-DFT stage (4 waves)")
    A("s_load_dwordx4 s[24:27], s[0:1], 32", "seq_re, seq_im")
    A("s_load_dwordx2 s[34:35], s[0:1], 88", "ws")
    if opts.get("fuse23"):
        A("s_load_dwordx2 s[28:29], s[0:1], 16", "wo")
        A("s_load_dwordx4 s[84:87], s[0:1], 72", "out, debug")
    if not F12:
        A("v_lshrrev_b32 v1, 6, v0")
        A("v_and_b32 v0, 63, v0", "lane")
        A("v_readfirstlane_b32 s36, v1", "wave id")
    A("s_and_b32 s37, s2, 7", "x_")
    A("s_lshr_b32 s38, s2, 3", "r")
    A("s_and_b32 s39, s38, 3")
    A("s_lshl_b32 s40, s37, 2")
    A("s_add_u32 s40, s40, s39", "head = 4x_ + (r&3)   (also FNet t-block i)")
    A("s_lshr_b32 s41, s38, 2", "qb (also FNet e-block)")
    A("s_waitcnt lgkmcnt(0)")
    srd(A, 4, 34, WS_SIZE)
    ST = Stamps(A, opts.get("stamps"), 1, 4, 36)
    ST.dbg = opts.get("dbgst")
    if not F12: ST(0)
    if opts.get("clk"): clk_stamp(A, 12)
    if F12:
        ST(10)
        A("s_cmp_eq_u32 s36, 8")
        A("s_cbranch_scc0 K2_E2")
        A.c("wave 8: publish this workgroup's phase-1 flag, then wait for the 32 producers of this head group's Q/K/V")
        A(f"s_add_u32 s66, s66, {hex(WS_F1)}")
        A("v_mov_b32 v2, s65")
        A("v_mov_b32 v3, 0")
        A("s_mov_b64 exec, 1")
        A("buffer_store_dword v2, v3, s[4:7], s66 offen sc1")
        A("s_mov_b64 exec, -1")
        A("v_and_b32 v4, 31, v0")
        A("v_lshlrev_b32 v4, 2, v4")
        A("s_lshr_b32 s52, s40, 2")
        A("s_lshl_b32 s52, s52, 7")
        A(f"s_add_u32 s52, s52, {hex(WS_F1)}")
        A("s_mov_b32 s51, 0")
        A(f"s_sleep {opts.get('sleep0', 12)}")
        A.label("K2_POLL1")
        A("buffer_load_dword v5, v4, s[4:7], s52 offen sc1")
        A("s_waitcnt vmcnt(0)")
        A("v_cmp_ne_u32 vcc, s65, v5")
        A("s_add_u32 s51, s51, 1")
        A("s_nop 3")
        A("s_cmp_eq_u64 vcc, 0")
        A("s_cbranch_scc1 K2_E2")
        A(f"s_sleep {opts.get('sleep1', 6)}")
        A("s_cmp_lt_u32 s51, 0x40000", "bounded: never hang")
        A("s_cbranch_scc1 K2_POLL1")
        A.label("K2_E2")
        A("s_barrier", "E2: this head group's Q/K/V are published")
        ST(11)
    A("s_cmp_ge_u32 s36, 8")
    A("s_cbranch_scc1 K2_FNET")

    QA, QB, KF, V0, V1, P, SA, SB, OA, OB, CN = 4, 8, 12, 16, 20, 24, 32, 48, 64, 80, 100
    A("s_and_b32 s42, s36, 3", "qp: query-tile pair")
    A("s_lshr_b32 s49, s36, 2", "kh: key half")
    A("s_lshl_b32 s43, s41, 3")
    A("s_lshl_b32 s44, s42, 1")
    A("s_add_u32 s44, s44, s43", "q tile a = 8 qb + 2 qp")
    A("s_lshl_b32 s43, s40, 16")
    A("s_lshl_b32 s44, s44, 10")
    A("s_add_u32 s43, s43, s44", "head*65536 + tile_a*1024")
    A("v_lshlrev_b32 v1, 4, v0", "lane*16")
    A(f"s_add_u32 s45, s43, {hex(WS_Q)}" if WS_Q else "s_mov_b32 s45, s43")
    A(f"buffer_load_dwordx4 {vr(QA,4)}, v1, s[4:7], s45 offen{SC1}")
    A(f"buffer_load_dwordx4 {vr(QB,4)}, v1, s[4:7], s45 offen offset:1024{SC1}")
    A("s_lshl_b32 s50, s49, 15", "kh*32768")
    A("v_add_u32 v2, s50, v1", "K address")
    A.c("V address: lanes with (l&31)<16 read V rows; the others read a strip of bf16 ones (row sums come out of the same MFMA)")
    A("v_lshrrev_b32 v3, 5, v0")
    A("v_lshlrev_b32 v3, 8, v3", "h*256")
    A("v_and_b32 v28, 15, v0")
    A("v_lshl_add_u32 v3, v28, 4, v3")
    A(f"s_add_u32 s51, s50, {LDS_V}")
    A("v_add_u32 v3, s51, v3", "real V address")
    A("v_add_u32 v28, 4, v0")
    A("v_bfe_u32 v28, v28, 3, 1", "1 for lanes 20..27 (mod 32)")
    A("v_lshlrev_b32 v28, 6, v28", "-> strip offset 64 (zeros, other banks)")
    if opts.get("zrows", 1):
        A("v_and_b32 v29, 31, v0")
        A("v_cmp_eq_u32 vcc, 16, v29")
        A("v_max_u32 v29, 16, v28", "other lanes: offset 16 or 64 (zeros)")
        A("v_mov_b32 v30, 0")
        A("v_cndmask_b32 v28, v29, v30, vcc", "lane 16 / 48: offset 0 (ones)")
    A(f"v_add_u32 v28, {LDS_ONES - 512}, v28")
    A("v_bfe_u32 v29, v0, 4, 1")
    A("v_cmp_eq_u32 vcc, 0, v29")
    A("v_mov_b32 v30, 0")
    A("v_mov_b32 v31, 2048")
    A("v_mov_b32 v97, v3", "real address (prologue / fallback)")
    A("v_cndmask_b32 v3, v28, v3, vcc")
    A("v_cndmask_b32 v96, v30, v31, vcc", "per-iteration increment (0 for ones lanes)")
    for r in range(16): A(f"v_mov_b32 v{OA+r}, 0")
    for r in range(16): A(f"v_mov_b32 v{OB+r}, 0")
    for r in range(4, 8): A(f"v_mov_b32 v{P+r}, 0")
    if opts.get("zrows", 1):
        A("v_and_b32 v29, 31, v0")
        A("v_cmp_eq_u32 vcc, 16, v29")
        A("v_mov_b32 v30, 0x3f803f80")
        A("v_mov_b32 v31, 0")
        A("v_cndmask_b32 v98, v31, v30, vcc", "ones in the row-16 lanes, zeros in rows 17..31")
    else:
        A("v_mov_b32 v98, 0x3f803f80")
    for r in range(4): A(f"v_mov_b32 v{V0+r}, v98")
    for r in range(4): A(f"v_mov_b32 v{V1+r}, 0")
    A("s_mov_b32 s46, 0x0000ffff")
    A("s_mov_b32 s47, 0x0000ffff", "exec mask of the real V lanes")
    A("s_mov_b32 s48, 0", "iteration")
    if opts.get("pprio"): A("s_setprio 3")
    A("s_barrier", "#0: chunk 0 of K/V landed")
    ST(1)
    A(f"ds_read_b128 {vr(KF,4)}, v2")
    A("s_mov_b64 exec, s[46:47]")
    A(f"ds_read_b128 {vr(V0,4)}, v97")
    A("s_mov_b64 exec, -1")
    A("s_waitcnt vmcnt(0) lgkmcnt(0)")
    A(f"v_mfma_f32_32x32x16_bf16 {vr(SA,16)}, {vr(KF,4)}, {vr(QA,4)}, 0")
    A("s_nop 15")
    A.raw(".p2align 6")
    A.label("K2_LOOP")
    def substep(S, mid1, mid2, mid3):
        e = lambda j: A(f"v_exp_f32 v{S+j}, v{S+j}")
        cv = lambda j: A(f"v_cvt_pk_bf16_f32 v{P+j}, v{S+2*j}, v{S+2*j+1}")
        mid1()
        e(0); e(1); e(2); e(3); cv(0); cv(1)
        mid2()
        e(4); e(5); e(6); e(7); cv(2); cv(3); e(8); e(9)
        mid3()
        e(10); e(11); cv(4); e(12); e(13); cv(5); e(14); e(15); cv(6); cv(7)
    mf = lambda d, a, b, c: A(f"v_mfma_f32_32x32x16_bf16 {vr(d,16)}, {vr(a,4)}, {vr(b,4)}, {c}")
    for u in range(2):
        if u == 1:
            A("s_and_b32 s52, s48, 13")
            A("s_cmp_eq_u32 s52, 0", "iterations 0 and 2")
            A("s_cbranch_scc0 K2_NOBAR")
            if F12:
                A.c("later K/V chunks: wait for the loaders' LDS counter (iteration 0: chunk 1, iteration 2: chunk 2)")
                A("s_lshl_b32 s52, s48, 1")
                A(f"s_add_u32 s52, s52, {LDS_CNT + 48}")
                A("v_mov_b32 v99, s52")
                A.label("K2_CSPIN")
                A("ds_read_b32 v100, v99")
                A("s_waitcnt lgkmcnt(0)")
                A("v_readfirstlane_b32 s52, v100")
                A("s_cmp_lt_u32 s52, 4")
                A("s_cbranch_scc1 K2_CSPIN")
            else:
                A("s_barrier", "#1 / #2: later K/V chunks landed")
            A.label("K2_NOBAR")
        def a1():
            mf(SB, KF, QB, "0")
            A(f"ds_read_b128 {vr(KF,4)}, v2 offset:{(u+1)*1024}")
        def a2():
            mf(OB, V1, P+4, vr(OB,16))
            A(f"ds_read_b128 {vr(V1,4)}, v3 offset:{u*1024+512}")
        def a3():
            A("s_waitcnt lgkmcnt(2)")
            mf(OA, V0, P, vr(OA,16))
        substep(SA, a1, a2, a3)
        def b1():
            A("s_waitcnt lgkmcnt(0)")
            mf(SA, KF, QA, "0")
        def b2():
            mf(OA, V1, P+4, vr(OA,16))
        def b3():
            mf(OB, V0, P, vr(OB,16))
            A(f"ds_read_b128 {vr(V0,4)}, v3 offset:{(u+1)*1024}")
        substep(SB, b1, b2, b3)
    A("v_add_u32 v2, 0x800, v2")
    A("v_add_u32 v3, v96, v3")
    if opts.get("itst"):
        A("s_memtime s[70:71]")
        A("s_lshl_b32 s72, s2, 4")
        A("s_add_u32 s72, s72, s36")
        A("s_lshl_b32 s72, s72, 6")
        A("s_lshl_b32 s73, s48, 2")
        A("s_add_u32 s72, s72, s73")
        A(f"s_add_u32 s72, s72, {hex(WS_STAMP + 3*0x40000)}")
        A("s_waitcnt lgkmcnt(0)")
        A("v_mov_b32 v99, s70")
        A("v_mov_b32 v100, 0")
        A("s_mov_b64 exec, 1")
        A("buffer_store_dword v99, v100, s[4:7], s72 offen")
        A("s_mov_b64 exec, -1")
    A("s_add_u32 s48, s48, 1")
    if opts.get("pprio"):
        A.c("a wave that is behind gets the higher priority: 3,2,1,0 for iterations 0-3, 4-7, 8-11, 12-15")
        for lv, itn in ((2, 4), (1, 8), (0, 12)):
            lab = A.newlabel("K2_PR")
            A(f"s_cmp_eq_u32 s48, {itn}")
            A(f"s_cbranch_scc0 {lab}")
            A(f"s_setprio {lv}")
            A.label(lab)
    A("s_cmp_lt_u32 s48, 16")
    A("s_cbranch_scc1 K2_LOOP")
    ST(2)
    mf(OB, V1, P+4, vr(OB,16))
    A("s_waitcnt lgkmcnt(0)")
    A("s_nop 15")
    A.c("combine the two key halves: wave kh keeps query tile (a if kh==0 else b) and hands the other one to its partner (wave ^ 4)")
    A("s_cmp_eq_u32 s49, 0")
    A("s_cbranch_scc1 K2_KEEPA")
    for r in range(9):
        A(f"v_mov_b32 v{32+r}, v{OA+r}", "give a")
        A(f"v_mov_b32 v{OA+r}, v{OB+r}", "keep b")
    A("s_add_u32 s43, s43, 1024", "own tile = b")
    A("s_branch K2_XCH")
    A.label("K2_KEEPA")
    for r in range(9): A(f"v_mov_b32 v{32+r}, v{OB+r}", "give b")
    A.label("K2_XCH")
    O = OA
    A("s_mul_i32 s50, s36, 2304")
    A(f"s_add_u32 s50, s50, {LDS_X}")
    A("v_lshlrev_b32 v28, 2, v0")
    A("v_add_u32 v29, s50, v28")
    for r in range(9): A(f"ds_write_b32 v29, v{32+r} offset:{r*256}")
    A("s_lshl_b32 s51, s36, 2")
    A(f"s_add_u32 s51, s51, {LDS_CNT + 16}")
    A("v_mov_b32 v30, s51")
    A("v_mov_b32 v31, 1")
    A("s_waitcnt lgkmcnt(0)")
    A("ds_write_b32 v30, v31", "flag: my hand-over is in LDS")
    A("s_xor_b32 s52, s36, 4", "partner")
    A("s_mul_i32 s50, s52, 2304")
    A(f"s_add_u32 s50, s50, {LDS_X}")
    A("v_add_u32 v29, s50, v28")
    A("s_lshl_b32 s51, s52, 2")
    A(f"s_add_u32 s51, s51, {LDS_CNT + 16}")
    A("v_mov_b32 v30, s51")
    A.label("K2_XSPIN")
    A("ds_read_b32 v31, v30")
    A("s_waitcnt lgkmcnt(0)")
    A("v_readfirstlane_b32 s52, v31")
    A("s_cmp_eq_u32 s52, 1")
    A("s_cbranch_scc1 K2_XGO")
    A("s_sleep 1")
    A("s_branch K2_XSPIN")
    A.label("K2_XGO")
    for r in range(9): A(f"ds_read_b32 v{32+r}, v29 offset:{r*256}")
    A("s_waitcnt lgkmcnt(0)")
    for r in range(9): A(f"v_add_f32 v{O+r}, v{O+r}, v{32+r}")
    A.c("row 16 of O^T holds the row sum l (ones rows of the V operand)")
    def normalize():
        if opts.get("zrows", 1):
            A(f"v_mov_b32 v29, v{O+8}")
            A("s_nop 1")
            A(f"v_permlane32_swap_b32 v29, v{O+8}", "l lives in lanes 0..31 only: copy it to the upper half")
            A("s_nop 1")
            A(f"v_mov_b32 v{O+8}, v29")
        A(f"v_rcp_f32 v28, v{O+8}")
        A("s_nop 0")
        for r in range(8): A(f"v_mul_f32 v{O+r}, v{O+r}, v28")
    normalize()
    A(f"v_mov_b32 v29, v{O+8}", "l")
    A.c("run-time guard: softmax is shift invariant, so the unshifted exponentials give the same result as long as l stays far")
    A.c("from the fp32 range limits and O is finite; otherwise this tile is recomputed below with the true row max subtracted")
    A(f"v_add_f32 v30, abs(v{O}), abs(v{O+1})")
    for r in range(2, 8): A(f"v_add_f32 v30, v30, abs(v{O+r})")
    A(f"v_cmp_nle_f32 vcc, {hex(f2u(2.0**-60))}, v29", "!(2^-60 <= l)")
    A(f"s_mov_b32 s50, {hex(f2u(2.0**60))}")
    A(f"v_cmp_nle_f32 s[52:53], v29, s50", "!(l <= 2^60)")
    A(f"s_mov_b32 s50, {hex(f2u(2.0**126))}")
    A(f"v_cmp_nle_f32 s[54:55], v30, s50", "O not finite")
    A("s_nop 4")
    A("s_or_b64 vcc, vcc, s[52:53]")
    A("s_or_b64 vcc, vcc, s[54:55]")
    if opts.get("force_fallback"):
        A("s_mov_b64 vcc, -1")
    A("s_cmp_lg_u64 vcc, 0")
    A("s_cbranch_scc1 K2_FALLBACK")
    A.label("K2_STORE")
    for j in range(4): A(f"v_cvt_pk_bf16_f32 v{P+j}, v{O+2*j}, v{O+2*j+1}")
    A(f"s_add_u32 s45, s43, {hex(WS_O)}")
    SC = " sc1" if opts.get("fuse23") else ""
    A(f"buffer_store_dwordx4 {vr(P,4)}, v1, s[4:7], s45 offen{SC}")
    ST(3)
    if opts.get("clk"): clk_stamp(A, 14)
    if opts.get("fuse23"):
        A("s_branch K2_PHASE3")
    else:
        ST.dump(4)
        if opts.get("rt"): A("s_waitcnt vmcnt(0)")
        rt_stamp(A, 1, 1, opts.get("rt"))
        A("s_endpgm")

    A.label("K2_FALLBACK")
    Q = QA
    A("s_cmp_eq_u32 s49, 0")
    A("s_cbranch_scc1 K2_FB0")
    for r in range(4): A(f"v_mov_b32 v{QA+r}, v{QB+r}")
    A.label("K2_FB0")
    A("v_mov_b32 v2, v1")
    A("v_mov_b32 v29, 0xff800000", "running max = -inf")
    A("s_mov_b32 s48, 0")
    A.label("K2_FB1")
    A(f"ds_read_b128 {vr(KF,4)}, v2")
    A("s_waitcnt lgkmcnt(0)")
    A(f"v_mfma_f32_32x32x16_bf16 {vr(SA,16)}, {vr(KF,4)}, {vr(Q,4)}, 0")
    A("s_nop 15")
    for r in range(0, 16, 2): A(f"v_max3_f32 v29, v{SA+r}, v{SA+r+1}, v29")
    A("v_add_u32 v2, 1024, v2")
    A("s_add_u32 s48, s48, 1")
    A("s_cmp_lt_u32 s48, 64")
    A("s_cbranch_scc1 K2_FB1")
    A("v_mov_b32 v30, v29")
    A("s_nop 1")
    A("v_permlane32_swap_b32 v30, v29")
    A("s_nop 1")
    A("v_max_f32 v29, v29, v30", "row max over both lane halves")
    for r in range(16): A(f"v_sub_f32 v{CN+r}, 0, v29")
    for r in range(16): A(f"v_mov_b32 v{O+r}, 0")
    for r in range(8): A(f"v_mov_b32 v{V0+r}, v98")
    A("v_mov_b32 v2, v1")
    A("s_lshl_b32 s50, s49, 15")
    A("v_subrev_u32 v3, s50, v97", "V address of tile 0")
    A("s_mov_b32 s48, 0")
    A.label("K2_FB2")
    A(f"ds_read_b128 {vr(KF,4)}, v2")
    A("s_mov_b64 exec, s[46:47]")
    A(f"ds_read_b128 {vr(V0,4)}, v3")
    A(f"ds_read_b128 {vr(V1,4)}, v3 offset:512")
    A("s_mov_b64 exec, -1")
    A("s_waitcnt lgkmcnt(0)")
    A(f"v_mfma_f32_32x32x16_bf16 {vr(SA,16)}, {vr(KF,4)}, {vr(Q,4)}, {vr(CN,16)}")
    A("s_nop 15")
    for r in range(16): A(f"v_exp_f32 v{SA+r}, v{SA+r}")
    A("s_nop 0")
    for j in range(8): A(f"v_cvt_pk_bf16_f32 v{P+j}, v{SA+2*j}, v{SA+2*j+1}")
    A("s_nop 1")
    A(f"v_mfma_f32_32x32x16_bf16 {vr(O,16)}, {vr(V0,4)}, {vr(P,4)}, {vr(O,16)}")
    A(f"v_mfma_f32_32x32x16_bf16 {vr(O,16)}, {vr(V1,4)}, {vr(P+4,4)}, {vr(O,16)}")
    A("v_add_u32 v2, 1024, v2")
    A("v_add_u32 v3, 1024, v3")
    A("s_add_u32 s48, s48, 1")
    A("s_cmp_lt_u32 s48, 64")
    A("s_cbranch_scc1 K2_FB2")
    A("s_nop 15")
    normalize()
    A("s_branch K2_STORE")

    A.label("K2_FNET")
    if opts.get("fprio", 2): A(f"s_setprio {opts.get('fprio', 2)}")
    A("s_sub_u32 s42, s36, 8", "j")
    if opts.get("fuse23") and not F12:
        srd(A, 12, 86, 0x100)
        A.c("launch epoch: workgroup 0 publishes a nonzero time stamp in d_debug[0] (zero at launch); hand-off flags in d_ws carry it")
        A("s_or_b32 s50, s2, s42")
        A("s_cmp_eq_u32 s50, 0")
        A("s_cbranch_scc0 K2_NOEPOCH")
        A("s_memrealtime s[50:51]")
        A("s_waitcnt lgkmcnt(0)")
        A("s_or_b32 s50, s50, 1")
        A("v_mov_b32 v2, s50")
        A("v_mov_b32 v3, 0")
        A("s_mov_b64 exec, 1")
        A("buffer_store_dword v2, v3, s[12:15], 0 offen sc1")
        A("s_mov_b64 exec, -1")
        A("s_waitcnt vmcnt(0)")
        A.label("K2_NOEPOCH")
    A("v_lshlrev_b32 v1, 4, v0", "lane*16")
    A("s_lshl_b32 s43, s40, 16", "head*65536")
    A(f"s_add_u32 s44, s43, {hex(WS_K)}")
    A(f"s_add_u32 s45, s43, {hex(WS_V)}")
    def dma(first_tile_sreg, n, lab):
        A("s_mov_b32 s48, 0")
        A.label(lab)
        A("s_mov_b32 m0, s46")
        A("s_add_u32 s47, s44, s46")
        A("buffer_load_dwordx4 v1, s[4:7], s47 offen lds")
        A(f"s_add_u32 m0, s46, {LDS_V}")
        A("s_add_u32 s47, s45, s46")
        A("buffer_load_dwordx4 v1, s[4:7], s47 offen lds")
        A("s_add_u32 s46, s46, 1024")
        A("s_add_u32 s48, s48, 1")
        A(f"s_cmp_lt_u32 s48, {n}")
        A(f"s_cbranch_scc1 {lab}")
    if F12:
        A.c("K/V through registers (device-scope loads): local tiles chunk 0: {0,1}; chunk 1: {2..5}; chunk 2: {6..31}; wave j: half = j>>1")
        A("s_lshr_b32 s52, s42, 1")
        A("s_lshl_b32 s52, s52, 15", "half*32768")
        A("s_and_b32 s53, s42, 1")
        def kv_load(reg, soff_reg, add):
            A(f"s_add_u32 s47, s44, s{soff_reg}")
            if add: A(f"s_add_u32 s47, s47, {add}")
            A(f"buffer_load_dwordx4 {vr(reg,4)}, v1, s[4:7], s47 offen sc1")
            A(f"s_add_u32 s47, s45, s{soff_reg}")
            if add: A(f"s_add_u32 s47, s47, {add}")
            A(f"buffer_load_dwordx4 {vr(reg+4,4)}, v1, s[4:7], s47 offen sc1")
        def kv_write(reg, areg, off):
            A(f"ds_write_b128 v{areg}, {vr(reg,4)} offset:{off}")
            A(f"ds_write_b128 v{areg+1}, {vr(reg+4,4)} offset:{off}")
        A("s_lshl_b32 s46, s53, 10")
        A("s_add_u32 s46, s46, s52", "chunk 0 tile offset")
        A("s_lshl_b32 s54, s53, 11")
        A("s_add_u32 s54, s54, s52")
        A("s_add_u32 s54, s54, 2048", "chunk 1 tile offset")
        A("s_mul_i32 s55, s53, 13312")
        A("s_add_u32 s55, s55, s52")
        A("s_add_u32 s55, s55, 6144", "chunk 2 tile offset")
        kv_load(8, 46, 0)
        kv_load(16, 54, 0); kv_load(24, 54, 1024)
        A("v_add_u32 v32, s46, v1"); A(f"v_add_u32 v33, {LDS_V}, v32")
        A("v_add_u32 v34, s54, v1"); A(f"v_add_u32 v35, {LDS_V}, v34")
        A("v_add_u32 v36, s55, v1"); A(f"v_add_u32 v37, {LDS_V}, v36")
        A.c("ones strip and flags")
        if opts.get("zrows", 1):
            A("v_and_b32 v5, 15, v0")
            A("v_cmp_eq_u32 vcc, 0, v5")
            A("v_mov_b32 v6, 0x3f803f80")
            A("v_mov_b32 v7, 0")
            A("v_cndmask_b32 v4, v7, v6, vcc")
        else:
            A("v_mov_b32 v4, 0x3f803f80")
        A("v_mov_b32 v5, v4")
        A("v_mov_b32 v6, v4")
        A("v_mov_b32 v7, v4")
        A(f"v_add_u32 v2, {LDS_ONES}, v1")
        A("ds_write_b128 v2, v[4:7]")
        A("s_mov_b32 exec_lo, -1")
        A("s_mov_b32 exec_hi, 0xff", "40 lanes: 640 B")
        A("ds_write_b128 v2, v[4:7] offset:1024")
        A("s_mov_b64 exec, 0xf")
        A("v_mov_b32 v4, 0")
        A("v_mov_b32 v5, 0")
        A("v_mov_b32 v6, 0")
        A("v_mov_b32 v7, 0")
        A(f"v_add_u32 v2, {LDS_CNT}, v1")
        A("ds_write_b128 v2, v[4:7]")
        A("s_mov_b64 exec, -1")

        A("s_waitcnt vmcnt(4)")
        kv_write(8, 32, 0)
        A("s_waitcnt lgkmcnt(0)")
        A("s_barrier", "#0")
        ST(1)
        A("s_waitcnt vmcnt(0)")
        kv_write(16, 34, 0); kv_write(24, 34, 1024)
        A(f"v_mov_b32 v4, {LDS_CNT + 48}")
        A("v_mov_b32 v5, 1")
        A("s_waitcnt lgkmcnt(0)")
        A("s_mov_b64 exec, 1")
        A("ds_add_u32 v4, v5", "chunk 1 in LDS")
        A("s_mov_b64 exec, -1")
        for t in range(13): kv_load(40 + 8*t, 55, t*1024)
        for t in range(13):
            A(f"s_waitcnt vmcnt({24 - 2*t})")
            kv_write(40 + 8*t, 36, t*1024)
        A("s_waitcnt lgkmcnt(0)")
        A("s_mov_b64 exec, 1")
        A("ds_add_u32 v4, v5 offset:4", "chunk 2 in LDS")
        A("s_mov_b64 exec, -1")
        ST(2)
    else:
        A.c("local tiles (per key half): chunk 0: {0,1}; chunk 1: {2..5}; chunk 2: {6..31}.  wave j: half = j>>1")
        A("s_lshr_b32 s52, s42, 1")
        A("s_lshl_b32 s52, s52, 15", "half*32768")
        A("s_and_b32 s53, s42, 1")
        A("s_lshl_b32 s46, s53, 10")
        A("s_add_u32 s46, s46, s52")
        dma(46, 1, "K2_DMA0")
        A("s_lshl_b32 s46, s53, 11")
        A("s_add_u32 s46, s46, s52")
        A("s_add_u32 s46, s46, 2048")
        dma(46, 2, "K2_DMA1")
        A.c("ones strip and flags")
        if opts.get("zrows", 1):
            A("v_and_b32 v5, 15, v0")
            A("v_cmp_eq_u32 vcc, 0, v5")
            A("v_mov_b32 v6, 0x3f803f80")
            A("v_mov_b32 v7, 0")
            A("v_cndmask_b32 v4, v7, v6, vcc")
        else:
            A("v_mov_b32 v4, 0x3f803f80")
        A("v_mov_b32 v5, v4")
        A("v_mov_b32 v6, v4")
        A("v_mov_b32 v7, v4")
        A(f"v_add_u32 v2, {LDS_ONES}, v1")
        A("ds_write_b128 v2, v[4:7]")
        A("s_mov_b32 exec_lo, -1")
        A("s_mov_b32 exec_hi, 0xff", "40 lanes: 640 B")
        A("ds_write_b128 v2, v[4:7] offset:1024")
        A("s_mov_b64 exec, 0xf")
        A("v_mov_b32 v4, 0")
        A("v_mov_b32 v5, 0")
        A("v_mov_b32 v6, 0")
        A("v_mov_b32 v7, 0")
        A(f"v_add_u32 v2, {LDS_CNT}, v1")
        A("ds_write_b128 v2, v[4:7]")
        A("s_mov_b64 exec, -1")
        A("s_waitcnt vmcnt(4) lgkmcnt(0)")
        A("s_barrier", "#0")
        ST(1)
        A("s_mul_i32 s46, s53, 13312")
        A("s_add_u32 s46, s46, s52")
        A("s_add_u32 s46, s46, 6144")
        dma(46, 3, "K2_DMA2a")
        A("s_waitcnt vmcnt(6)")
        A("s_barrier", "#1")
        dma(46, 10, "K2_DMA2")
        ST(2)

    FR = 8
    E = 136
    NS = 16
    def job_setup(ti, ej, first):
        A(f"s_lshl_b32 s56, s{ti}, 5")
        A("v_and_b32 v2, 31, v0")
        A("v_add_u32 v3, s56, v2", "t = 32 i + (l&31)")
        A("v_lshlrev_b32 v2, 12, v3")
        A("v_lshrrev_b32 v4, 5, v0")
        A("v_lshl_add_u32 v2, v4, 4, v2", "t*4096 + h*16")
        if first:
            A.c("wave j: chain = j>>1 (0: E = Cr x A', 1: G = Ci x B'), K half = j&1")
            A("s_and_b32 s57, s42, 1")
            A("s_lshl_b32 s57, s57, 5", "ks0 = 32*(j&1)")
            A(f"s_mov_b32 s58, {hex(WS_BP)}")
            A("s_cmp_lt_u32 s42, 2")
            A("s_cselect_b32 s8, s24, s26")
            A("s_cselect_b32 s9, s25, s27")
            A(f"s_cselect_b32 s58, {hex(WS_AP)}, s58")
        else:
            A("s_lshl_b32 s57, s42, 4", "ks0 = 16 j")
            A("s_mov_b32 s8, s24")
            A("s_mov_b32 s9, s25")
            A(f"s_mov_b32 s58, {hex(WS_AP)}")
        A("s_and_b32 s9, s9, 0xffff")
        A("s_mov_b32 s10, 0x800000")
        A("s_mov_b32 s11, 0x20000")
        A(f"s_lshl_b32 s56, s{ej}, 16", "eblk*65536")
        A("s_add_u32 s60, s56, s58")
        A("s_lshl_b32 s56, s57, 10")
        A("s_add_u32 s60, s60, s56", "fragment base + ks0*1024")
        A("s_lshl_b32 s62, s57, 5", "ks0*32")
    def issue(slot, n):
        b = FR + 8*slot
        A(f"s_add_u32 s58, s60, {n*1024}")
        A(f"s_add_u32 s59, s62, {n*32}")
        A(f"buffer_load_dwordx4 {vr(b,4)}, v1, s[4:7], s58 offen{SC1}")
        A(f"buffer_load_dwordx4 {vr(b+4,4)}, v2, s[8:11], s59 offen")
    def job_run(nsteps, jobidx, ej, tag):
        hasG = nsteps == 32
        for r in range(16): A(f"v_mov_b32 v{E+r}, 0")
        for n in range(nsteps):
            slot = n % NS
            b = FR + 8*slot
            rem_first = nsteps - NS
            cnt = 2*(NS-1) if n < rem_first else 2*(nsteps - 1 - n)
            A(f"s_waitcnt vmcnt({cnt})")
            A(f"v_mfma_f32_32x32x16_bf16 {vr(E,16)}, {vr(b,4)}, {vr(b+4,4)}, {vr(E,16)}")
            if n < rem_first: issue(slot, n + NS)
        A("s_nop 15")
        base = LDS_F
        A("s_cmp_eq_u32 s42, 0")
        A(f"s_cbranch_scc1 K2_COMB{tag}")
        if jobidx == 1:
            A.c("the partial-tile area is shared with job A: wait until wave 0 has read job A's partials")
            A(f"v_mov_b32 v6, {LDS_CNT + 8}")
            A.label("K2_SPINC")
            A("ds_read_b32 v7, v6")
            A("s_waitcnt lgkmcnt(0)")
            A("v_readfirstlane_b32 s57, v7")
            A("s_cmp_eq_u32 s57, 1")
            A("s_cbranch_scc1 K2_GOC")
            A("s_sleep 4")
            A("s_branch K2_SPINC")
            A.label("K2_GOC")
        A.c("waves 1..3: publish the partial tile in LDS")
        A("s_lshl_b32 s56, s42, 12")
        A(f"s_add_u32 s56, s56, {base - 4096}")
        A("v_add_u32 v5, s56, v1")
        for m in range(4): A(f"ds_write_b128 v5, {vr(E+4*m,4)} offset:{m*1024}")
        A(f"v_mov_b32 v6, {LDS_CNT + 4*jobidx}")
        A("v_mov_b32 v7, 1")
        A("s_waitcnt lgkmcnt(0)")
        A("s_mov_b64 exec, 1")
        A("ds_add_u32 v6, v7")
        A("s_waitcnt lgkmcnt(0)")
        A("s_mov_b64 exec, -1")
        A(f"s_branch K2_JOBDONE{tag}")
        A.label(f"K2_COMB{tag}")
        A.c("wave 0: wait for the three partials; E += (-1)^t A1024[e];  Ym = E - G, Yp = E + G")
        A("v_lshrrev_b32 v4, 5, v0")
        A("v_lshlrev_b32 v4, 4, v4", "4h*4 bytes")
        A(f"s_lshl_b32 s56, s{ej}, 7", "e0*4")
        A(f"s_add_u32 s57, s56, {hex(WS_A1024)}")
        for m in range(4):
            A(f"buffer_load_dwordx4 {vr(FR+4*m,4)}, v4, s[4:7], s57 offen offset:{m*32}{SC1}")
        A(f"v_mov_b32 v6, {LDS_CNT + 4*jobidx}")
        A.label(f"K2_SPIN{tag}")
        A("ds_read_b32 v7, v6")
        A("s_waitcnt lgkmcnt(0)")
        A("v_readfirstlane_b32 s57, v7")
        A("s_cmp_eq_u32 s57, 3")
        A(f"s_cbranch_scc1 K2_GO{tag}")
        A("s_sleep 4")
        A(f"s_branch K2_SPIN{tag}")
        A.label(f"K2_GO{tag}")
        A(f"v_add_u32 v5, {base}, v1")
        for p in range(3):
            for m in range(4):
                A(f"ds_read_b128 {vr(FR+16+16*p+4*m,4)}, v5 offset:{p*4096 + m*1024}")
        A("v_and_b32 v6, 1, v0")
        A("v_lshlrev_b32 v6, 31, v6")
        A("v_or_b32 v6, 1.0, v6", "(-1)^t")
        A(f"s_movk_i32 s58, {YSB}")
        A("v_mul_lo_u32 v7, v3, s58")
        A("v_add_u32 v7, v7, v4", "t*YSB + 4h*4")
        A("s_waitcnt vmcnt(0) lgkmcnt(0)")
        if jobidx == 0:
            A(f"v_mov_b32 v5, {LDS_CNT + 8}")
            A("v_mov_b32 v4, 1")
            A("ds_write_b32 v5, v4", "job A partials consumed")
        P1, P2, P3 = FR+16, FR+32, FR+48
        for r in range(16): A(f"v_fmac_f32 v{E+r}, v6, v{FR+r}")
        for r in range(16): A(f"v_add_f32 v{E+r}, v{E+r}, v{P1+r}")
        for r in range(16): A(f"v_add_f32 v{P2+r}, v{P2+r}, v{P3+r}")
        if hasG:
            for r in range(16):
                A(f"v_sub_f32 v{P1+r}, v{E+r}, v{P2+r}")
                A(f"v_add_f32 v{P3+r}, v{E+r}, v{P2+r}")
            ym, yp = P1, P3
        else:
            for r in range(16): A(f"v_add_f32 v{E+r}, v{E+r}, v{P2+r}")
            ym, yp = E, E
        if opts.get("fuse23"):
            A.c("Y tiles: [(i*9 + j)*2 + arr][m][lane][4] : every store instruction writes 1 KB of whole lines")
            ti = 40 if jobidx == 0 else 63
            A(f"s_mul_i32 s57, s{ti}, 9")
            A(f"s_add_u32 s57, s57, s{ej}")
            A("s_lshl_b32 s57, s57, 13")
            A(f"s_add_u32 s57, s57, {hex(WS_Y)}")
            A("s_add_u32 s58, s57, 4096")
            for m in range(4):
                A(f"buffer_store_dwordx4 {vr(ym+4*m,4)}, v1, s[4:7], s57 offen offset:{m*1024} sc1")
                A(f"buffer_store_dwordx4 {vr(yp+4*m,4)}, v1, s[4:7], s58 offen offset:{m*1024} sc1")
        else:
            A(f"s_add_u32 s57, s56, {hex(WS_YM)}")
            A(f"s_add_u32 s58, s56, {hex(WS_YP)}")
            for m in range(4):
                A(f"buffer_store_dwordx4 {vr(ym+4*m,4)}, v7, s[4:7], s57 offen offset:{m*32}")
                A(f"buffer_store_dwordx4 {vr(yp+4*m,4)}, v7, s[4:7], s58 offen offset:{m*32}")
        A.label(f"K2_JOBDONE{tag}")

    if opts.get("nofnet"):
        A("s_waitcnt vmcnt(0) lgkmcnt(0)")
        A("s_barrier")
        A("s_endpgm")
    job_setup(40, 41, True)
    if F12:
        A.c("FNet needs every phase-1 workgroup: wave 8 polls all 8 flag lines, then releases waves 9..11 through LDS")
        A(f"v_mov_b32 v4, {LDS_CNT + 56}")
        A("s_cmp_eq_u32 s36, 8")
        A("s_cbranch_scc0 K2_FWAIT")
        A("v_lshlrev_b32 v5, 2, v0")
        A(f"s_mov_b32 s52, {hex(WS_F1)}")
        A("s_mov_b32 s51, 0")
        A.label("K2_POLLF")
        for q in range(4): A(f"buffer_load_dword v{8+q}, v5, s[4:7], s52 offen offset:{q*256} sc1")
        A("s_waitcnt vmcnt(0)")
        for q in range(4): A(f"v_xor_b32 v{8+q}, s65, v{8+q}")
        A("v_or_b32 v8, v8, v9")
        A("v_or3_b32 v8, v8, v10, v11")
        A("v_cmp_ne_u32 vcc, 0, v8")
        A("s_add_u32 s51, s51, 1")
        A("s_nop 3")
        A("s_cmp_eq_u64 vcc, 0")
        A("s_cbranch_scc1 K2_FGO")
        A("s_sleep 8")
        A("s_cmp_lt_u32 s51, 0x40000")
        A("s_cbranch_scc1 K2_POLLF")
        A.label("K2_FGO")
        A("v_mov_b32 v5, 1")
        A("ds_write_b32 v4, v5")
        A("s_waitcnt lgkmcnt(0)")
        A("s_branch K2_FSTART")
        A.label("K2_FWAIT")
        A("ds_read_b32 v5, v4")
        A("s_waitcnt lgkmcnt(0)")
        A("v_readfirstlane_b32 s52, v5")
        A("s_cmp_eq_u32 s52, 1")
        A("s_cbranch_scc1 K2_FSTART")
        A("s_sleep 4")
        A("s_branch K2_FWAIT")
        A.label("K2_FSTART")
    else:
        A("s_waitcnt vmcnt(0)")
        A("s_barrier", "#2: all of K/V landed")
    ST(3)
    if opts.get("fuse23") and not F12:
        A.c("epoch (wave 8 only): d_debug[0] becomes nonzero once workgroup 0 has started")
        A("s_cmp_eq_u32 s36, 8")
        A("s_cbranch_scc0 K2_EPDONE")
        A("v_mov_b32 v5, 0")
        A("s_mov_b32 s51, 0")
        A.label("K2_EPSPIN")
        A("buffer_load_dword v6, v5, s[12:15], 0 offen sc1")
        A("s_waitcnt vmcnt(0)")
        A("v_readfirstlane_b32 s65, v6")
        A("s_add_u32 s51, s51, 1")
        A("s_cmp_lg_u32 s65, 0")
        A("s_cbranch_scc1 K2_EPDONE")
        A("s_sleep 8")
        A("s_cmp_lt_u32 s51, 0x40000")
        A("s_cbranch_scc1 K2_EPSPIN")
        A.label("K2_EPDONE")
    for n in range(NS): issue(n, n)
    job_run(32, 0, 41, "A")
    ST(4)
    if opts.get("fuse23"):
        A.c("L2 warm-up of this workgroup's Wo columns (512 rows x 128 B): 128 lines per wave")
        srd(A, 16, 28, 0x80000)
        A("s_lshl_b32 s56, s42, 7")
        A("v_add_u32 v5, s56, v0")
        A("v_lshlrev_b32 v5, 10, v5", "row*1024")
        A("s_lshl_b32 s57, s41, 7", "64nb*2")
        A("buffer_load_dword v6, v5, s[16:19], s57 offen")
        A("buffer_load_dword v6, v5, s[16:19], s57 offen offset:64")
        A("s_add_u32 s57, s57, 65536", "+64 rows")
        A("buffer_load_dword v7, v5, s[16:19], s57 offen")
        A("buffer_load_dword v7, v5, s[16:19], s57 offen offset:64")
    A.c("extra E-only jobs: row t=1024 (t-block 32) and column e=256 (e-block 8), on workgroups 0..40")
    A("s_cmp_ge_u32 s2, 41")
    A("s_cbranch_scc1 K2_FEND")
    A("s_sub_u32 s64, s2, 32")
    A("s_cmp_lt_u32 s2, 32")
    A("s_cselect_b32 s63, s2, 32", "t-block")
    A("s_cselect_b32 s64, 8, s64", "e-block")
    A("s_waitcnt vmcnt(0)")
    job_setup(63, 64, False)
    for n in range(NS): issue(n, n)
    job_run(16, 1, 64, "B")
    A.label("K2_FEND")
    ST(5)
    if not opts.get("fuse23"):
        ST.dump(6)
        A.label("K2_END")
        if opts.get("rt"): A("s_waitcnt vmcnt(0)")
        rt_stamp(A, 1, 1, opts.get("rt"))
        A("s_endpgm")
        return name, 168, (96 if (opts.get('stamps') or opts.get('rt') or opts.get('clk') or opts.get('itst')) else 66)
    gen_phase3(A, opts, ST)
    return name, 168, 96


def gen_phase3(A, opts, ST):
    A.label("K2_PHASE3")
    A("s_waitcnt vmcnt(0)", "this wave's phase-2 stores have reached memory")
    A("s_barrier", "all phase-2 stores of the workgroup are done; LDS is free")
    ST(6)
    A("s_cmp_lt_u32 s36, 8")
    A("s_cbranch_scc1 K3_COMPUTE")
    A("s_cmp_eq_u32 s36, 8")
    A("s_cbranch_scc0 K3_WO")
    A.c("flag lines (128 B each): L1[qb] (8): dword = head ; L2[t-block] (32): dword j = job A e-block, 8 = job B column 256, 9.. = row 1024 jobs (in L2[0])")
    A("s_mov_b32 s50, s65", "epoch")
    A("s_lshl_b32 s52, s41, 7")
    A("s_lshl_b32 s53, s40, 2")
    A("s_add_u32 s52, s52, s53", "L1[qb][head]")
    A("s_lshl_b32 s53, s40, 7")
    A("s_lshl_b32 s54, s41, 2")
    A("s_add_u32 s53, s53, s54")
    A("s_add_u32 s53, s53, 1024", "L2[head][qb]")
    A("s_lshl_b32 s54, s2, 7")
    A("s_add_u32 s54, s54, 1056", "b<32: L2[b][8]")
    A("s_lshl_b32 s55, s2, 2")
    A("s_add_u32 s55, s55, 932", "32<=b<41: L2[0][9 + b-32] = 1024 + 36 + 4(b-32)")
    A("s_cmp_lt_u32 s2, 32")
    A("s_cselect_b32 s54, s54, s55")
    A("s_cmp_lt_u32 s2, 41")
    A("s_cselect_b32 s54, s54, s53", "no job B: repeat the job A flag")
    A("v_mov_b32 v3, s52")
    A("v_mov_b32 v4, s53")
    A("v_mov_b32 v5, s54")
    A("v_cmp_eq_u32 vcc, 1, v0")
    A("v_mov_b32 v2, s50")
    A("s_nop 0")
    A("v_cndmask_b32 v3, v3, v4, vcc")
    A("v_cmp_eq_u32 vcc, 2, v0")
    A("s_nop 1")
    A("v_cndmask_b32 v3, v3, v5, vcc")
    A(f"s_mov_b32 s52, {hex(WS_F2)}")
    A("s_mov_b64 exec, 7")
    A("buffer_store_dword v2, v3, s[4:7], s52 offen sc1")
    A("s_mov_b64 exec, -1")
    A.c("poll: lanes 0..31: L1[qp>>2][lane]; lanes 32..40: L2[qp][lane-32]; lanes 41..49 (qp == 0 only): L2[0][9..17]; others: lane 0's word")
    A("s_lshr_b32 s53, s40, 2")
    A("s_lshl_b32 s53, s53, 7", "L1 line")
    A("s_lshl_b32 s54, s40, 7")
    A("s_add_u32 s54, s54, 896", "L2[qp] - 32*4 = 1024 + 128qp - 128")
    A("v_lshlrev_b32 v4, 2, v0")
    A("v_add_u32 v5, s54, v4")
    A("v_add_u32 v4, s53, v4")
    A("v_cmp_le_u32 vcc, 32, v0")
    A("s_cmp_eq_u32 s40, 0")
    A("s_cselect_b32 s55, 50, 41", "number of lanes that matter")
    A("v_cndmask_b32 v4, v4, v5, vcc")
    A("v_cmp_le_u32 vcc, s55, v0")
    A("v_mov_b32 v6, s53")
    A("s_nop 0")
    A("v_cndmask_b32 v4, v4, v6, vcc")
    A("s_mov_b32 s51, 0")
    A(f"s_sleep {opts.get('sleep0', 12)}")
    A.label("K3_POLL")
    A("buffer_load_dword v5, v4, s[4:7], s52 offen sc1")
    A("s_waitcnt vmcnt(0)")
    A("v_cmp_ne_u32 vcc, s50, v5")
    A("s_add_u32 s51, s51, 1")
    A("s_nop 3")
    A("s_cmp_eq_u64 vcc, 0")
    A("s_cbranch_scc1 K3_JOIN")
    A(f"s_sleep {opts.get('sleep1', 6)}")
    A("s_cmp_lt_u32 s51, 0x40000", "bounded: never hang")
    A("s_cbranch_scc1 K3_POLL")
    A.label("K3_JOIN")
    ST(8)
    if opts.get("stamps"): A("s_mov_b32 s81, s51")
    A("s_barrier", "inputs published, Wo staged")
    ST(7)
    ST.dump(12)
    A.label("K2_END")
    if opts.get("rt"): A("s_waitcnt vmcnt(0)")
    rt_stamp(A, 1, 1, opts.get("rt"))
    A("s_endpgm")

    A.label("K3_WO")
    srd(A, 8, 28, 0x80000)
    A("s_sub_u32 s42, s36, 9", "first 8-row group")
    A("v_lshrrev_b32 v9, 3, v0", "a")
    A("v_and_b32 v11, 7, v0")
    A("v_bfe_u32 v13, v9, 1, 1")
    A("v_lshlrev_b32 v13, 2, v13")
    A("v_xor_b32 v13, v11, v13", "logical piece q")
    A("v_lshlrev_b32 v13, 4, v13")
    A("v_lshlrev_b32 v9, 10, v9", "a*1024")
    A("s_lshl_b32 s45, s41, 7", "64nb*2")
    A("v_add3_u32 v2, v9, v13, s45", "Wo voffset")
    A.label("K3_WOL")
    A("s_lshl_b32 m0, s42, 10")
    A("s_lshl_b32 s49, s42, 13")
    A("buffer_load_dwordx4 v2, s[8:11], s49 offen lds")
    A("s_add_u32 s42, s42, 3")
    A("s_cmp_lt_u32 s42, 64")
    A("s_cbranch_scc1 K3_WOL")
    A("s_waitcnt vmcnt(0)")
    A("s_branch K3_JOIN")

    A.label("K3_COMPUTE")
    srd(A, 8, 84, 0x200000)
    A("s_and_b32 s42, s36, 1", "qt (0 rows s, 1 mirrored rows)")
    A("s_bfe_u32 s43, s36, 0x10001", "nt")
    A("s_lshr_b32 s44, s36, 2", "kh")
    A("v_and_b32 v8, 31, v0", "i")
    A("v_and_b32 v9, 19, v8", "bits 4,1,0")
    A("v_bfe_u32 v10, v8, 2, 1")
    A("v_lshl_or_b32 v9, v10, 3, v9")
    A("v_bfe_u32 v10, v8, 3, 1")
    A("v_lshl_or_b32 v9, v10, 2, v9", "pi(i)")
    A("s_lshl_b32 s45, s40, 5")
    A("v_add_u32 v9, s45, v9", "s")
    A("v_sub_u32 v10, 0x800, v9")
    A("v_mov_b32 v11, 0x400")
    A("v_cmp_eq_u32 vcc, 0, v9")
    A("s_cmp_eq_u32 s42, 1")
    A("s_cselect_b64 s[46:47], -1, 0")
    A("v_cndmask_b32 v10, v10, v11, vcc", "mirror(s)")
    A("v_cndmask_b32 v11, v9, v11, vcc", "t' for mirrored rows")
    A("v_cndmask_b32 v12, v9, v10, s[46:47]", "row")
    A("v_cndmask_b32 v13, v9, v11, s[46:47]", "t'")
    A("v_lshrrev_b32 v14, 5, v0", "h")
    A("v_lshlrev_b32 v15, 2, v12")
    A(f"s_mov_b32 s48, {hex(WS_G)}")
    A("buffer_load_dword v55, v15, s[4:7], s48 offen" + (" sc1" if opts.get("fuse12") else ""), "g[row]")
    A.c("this lane finalizes 8 columns: n0 = 64nb + 32nt + 16h + 8kh")
    A("s_lshl_b32 s49, s41, 6")
    A("s_lshl_b32 s50, s43, 5")
    A("s_add_u32 s49, s49, s50")
    A("s_lshl_b32 s50, s44, 3")
    A("s_add_u32 s49, s49, s50")
    A("v_lshlrev_b32 v6, 4, v14")
    A("v_add_u32 v6, s49, v6", "n0")
    A("v_lshlrev_b32 v4, 10, v12")
    A("v_lshl_add_u32 v4, v6, 1, v4", "v4 = output offset")
    A("s_lshr_b32 s50, s41, 2", "nb>=4: mirrored columns")
    A("s_xor_b32 s51, s50, s42", "arr = Yp when exactly one of row / column is mirrored")
    A("v_sub_u32 v7, 505, v6", "512 - n0 - 7")
    A("s_cmp_eq_u32 s50, 1")
    A("s_cselect_b64 s[54:55], -1, 0")
    A("v_cndmask_b32 v7, v6, v7, s[54:55]", "first e'")
    A("v_lshrrev_b32 v7, 2, v7", "q0 = piece of the first e'")
    A.c("tile row base = ((t'>>5)*9*2 + arr)*4096 + (t'&31)*16")
    A("v_lshrrev_b32 v15, 5, v13")
    A("v_mul_u32_u24 v15, 18, v15")
    A("v_add_u32 v15, s51, v15")
    A("v_lshlrev_b32 v15, 12, v15")
    A("v_and_b32 v5, 31, v13")
    A("v_lshl_add_u32 v15, v5, 4, v15")
    for p in range(3):
        A(f"v_add_u32 v5, {p}, v7", "piece q")
        A("v_lshrrev_b32 v10, 3, v5", "e-block")
        A("v_lshlrev_b32 v10, 13, v10")
        A("v_bfe_u32 v11, v5, 1, 2", "m")
        A("v_lshl_add_u32 v10, v11, 10, v10")
        A("v_and_b32 v11, 1, v5", "h of the piece")
        A("v_lshl_add_u32 v10, v11, 9, v10")
        A(f"v_add_u32 v{50+p}, v10, v15")
    A("v_lshlrev_b32 v2, 4, v0", "v2 = lane*16")
    A("v_bfe_u32 v10, v0, 2, 2", "r")
    A("v_lshl_add_u32 v11, v14, 2, v10", "4h + r")
    A("v_lshlrev_b32 v11, 7, v11", "*128")
    A("v_and_b32 v12, 1, v0")
    A("v_lshlrev_b32 v12, 1, v12", "2(c4&1)")
    A("v_bfe_u32 v13, v0, 4, 1", "g'")
    A("v_add_u32 v12, v12, v13")
    A("s_lshl_b32 s45, s43, 2")
    A("v_add_u32 v12, s45, v12", "logical piece")
    A("v_bfe_u32 v13, v0, 3, 1", "(r>>1)&1")
    A("v_lshlrev_b32 v13, 2, v13")
    A("v_xor_b32 v12, v12, v13")
    A("v_lshlrev_b32 v12, 4, v12")
    A("v_bfe_u32 v13, v0, 1, 1", "c4>>1")
    A("v_lshlrev_b32 v13, 3, v13")
    A("v_add3_u32 v3, v11, v12, v13")
    A("s_lshl_b32 s45, s44, 15", "16 heads * 2048")
    A("v_add_u32 v3, s45, v3", "v3 = Wo^T fragment address")
    ACC, WF, Y, OR = 16, [32, 36], 56, 72
    for r in range(16): A(f"v_mov_b32 v{ACC+r}, 0")
    A("s_lshl_b32 s56, s40, 11")
    A("s_lshl_b32 s57, s42, 10")
    A("s_add_u32 s56, s56, s57")
    A("s_lshl_b32 s57, s44, 20", "16 heads * 65536")
    A("s_add_u32 s56, s56, s57")
    A(f"s_add_u32 s56, s56, {hex(WS_O)}", "O' soffset")
    A(f"s_mov_b32 s52, {hex(WS_Y)}")
    A("s_barrier", "inputs published, Wo staged")
    ST(7)
    for n in range(16):
        A(f"s_add_u32 s57, s56, {n*65536}")
        A(f"buffer_load_dwordx4 {vr(OR+4*n,4)}, v2, s[4:7], s57 offen sc1")
    for p in range(3):
        A(f"buffer_load_dwordx4 {vr(Y+4*p,4)}, v{50+p}, s[4:7], s52 offen sc1")
    def wr(st, hd):
        A(f"ds_read_b64_tr_b16 {vr(WF[st],2)}, v3 offset:{hd*2048}")
        A(f"ds_read_b64_tr_b16 {vr(WF[st]+2,2)}, v3 offset:{hd*2048+1024}")
    wr(0, 0)
    for n in range(16):
        st = n & 1
        if n < 15:
            wr(1 - st, n + 1)
            lg = 2
        else:
            lg = 0
        A(f"s_waitcnt vmcnt({18 - n}) lgkmcnt({lg})")
        A(f"v_mfma_f32_32x32x16_bf16 {vr(ACC,16)}, {vr(WF[st],4)}, {vr(OR+4*n,4)}, {vr(ACC,16)}")
    ST(8)
    A.c("exchange: kh=0 keeps regs 0..7 (columns 16h+0..7), kh=1 keeps regs 8..15")
    A("s_lshl_b32 s45, s36, 11")
    A("s_add_u32 s45, s45, 0x10000")
    A("v_add_u32 v10, s45, v2", "own slot")
    A("s_xor_b32 s45, s36, 4")
    A("s_lshl_b32 s45, s45, 11")
    A("s_add_u32 s45, s45, 0x10000")
    A("v_add_u32 v11, s45, v2", "partner slot")
    A("s_nop 9")
    A("s_cmp_eq_u32 s44, 0")
    A("s_cbranch_scc0 K3_X1")
    A(f"ds_write_b128 v10, {vr(ACC+8,4)}")
    A(f"ds_write_b128 v10, {vr(ACC+12,4)} offset:1024")
    A("s_branch K3_X2")
    A.label("K3_X1")
    A(f"ds_write_b128 v10, {vr(ACC,4)}")
    A(f"ds_write_b128 v10, {vr(ACC+4,4)} offset:1024")
    A("s_waitcnt lgkmcnt(0)")
    for r in range(8): A(f"v_mov_b32 v{ACC+r}, v{ACC+8+r}")
    A.label("K3_X2")
    A("s_waitcnt lgkmcnt(0)")
    A("s_barrier")
    A(f"ds_read_b128 {vr(ACC+8,4)}, v11")
    A(f"ds_read_b128 {vr(ACC+12,4)}, v11 offset:1024")
    A("v_sub_f32 v54, 1.0, v55", "1-g")
    A("s_waitcnt vmcnt(0) lgkmcnt(0)")
    for r in range(8): A(f"v_add_f32 v{ACC+r}, v{ACC+r}, v{ACC+8+r}")
    A("s_cmp_eq_u32 s50, 1")
    A("s_cbranch_scc1 K3_EPI_M")
    for r in range(8): A(f"v_mul_f32 v{40+r}, v54, v{Y+r}")
    A("s_branch K3_EPI2")
    A.label("K3_EPI_M")
    A.c("mirrored: first e' = 505 - n0 = 1 mod 4 -> loaded index 1..8 ; column r <-> index 8 - r")
    for r in range(8): A(f"v_mul_f32 v{40+r}, v54, v{Y+8-r}")
    A.label("K3_EPI2")
    for r in range(8): A(f"v_fmac_f32 v{40+r}, v55, v{ACC+r}")
    for j in range(4): A(f"v_cvt_pk_bf16_f32 v{48+j}, v{40+2*j}, v{40+2*j+1}")
    A("buffer_store_dwordx4 v[48:51], v4, s[8:11], 0 offen")
    ST(9)
    ST.dump(12)
    if opts.get("rt"): A("s_waitcnt vmcnt(0)")
    rt_stamp(A, 1, 1, opts.get("rt"))
    A("s_endpgm")
```

```python
import sys
from common import *
from k1 import gen_k1
from k2 import gen_k2, K2_LDS
from k3 import gen_k3, K3_LDS

HEADER = """; Kernarg layout for this problem (96 bytes, ptrs only, base s[0:1]):
"""
def build(opts=None):
    opts = opts or {}
    A = Asm()
    ks = []
    gens = [lambda a: gen_k1(a, opts), lambda a: gen_k2(a, opts)]
    if not opts.get("fuse23"): gens.append(lambda a: gen_k3(a, opts))
    for g in gens:
        ks.append(g(A))
        A.raw("")
    if opts.get("empty"):
        kernel_header(A, "noop_kernel")
        A("s_endpgm")
        ks.append(("noop_kernel", 8, 16))
    if opts.get("fuse12"):
        out = HEADER + "; @launch grid=(256,1,1) block=(768,1,1) lds=163840\n"
        out += '.amdgcn_target "amdgcn-amd-amdhsa--gfx950"\n.text\n' + A.text()
        out += kernel_desc(ks[0][0], 168, 96)
        return out
    out = HEADER
    noop = "; @launch kernel=noop_kernel grid=(1,1,1) block=(64,1,1) lds=0\n"
    em = opts.get("empty", 0)
    if em == 3: out += noop + noop
    out += f"; @launch kernel={ks[0][0]} grid=(256,1,1) block=(512,1,1) lds=163840\n"
    if opts.get("k1twice"): out += f"; @launch kernel={ks[0][0]} grid=(256,1,1) block=(512,1,1) lds=163840\n"
    if em == 1: out += noop
    out += f"; @launch kernel={ks[1][0]} grid=(256,1,1) block=(768,1,1) lds={K2_LDS}\n"
    if opts.get("k2twice"): out += f"; @launch kernel={ks[1][0]} grid=(256,1,1) block=(768,1,1) lds={K2_LDS}\n"
    if opts.get("k3twice"): out += f"; @launch kernel={ks[2][0]} grid=(256,1,1) block=(512,1,1) lds={K3_LDS}\n"
    if not opts.get("fuse23"): out += f"; @launch kernel={ks[2][0]} grid=(256,1,1) block=(512,1,1) lds={K3_LDS}\n"
    if em == 2: out += noop
    if em == 4: out += noop*4
    out += '.amdgcn_target "amdgcn-amd-amdhsa--gfx950"\n.text\n'
    out += A.text()
    for n, v, s in ks:
        out += kernel_desc(n, v, s)
    return out
if __name__ == "__main__":
    path = sys.argv[1] if len(sys.argv) > 1 else f"cdna_kernels/{NAME}.s"
    opts = {}
    for a in sys.argv[2:]:
        k, _, v = a.partition("=")
        opts[k] = int(v) if v else 1
    if opts.get("fuse12"): opts["fuse23"] = 1
    open(path, "w").write(build(opts))
    print("wrote", path)
```

```python
import math

WS_Q     = 0x000000
WS_K     = 0x200000
WS_V     = 0x400000
WS_AP    = 0x600000
WS_BP    = 0x6A0000
WS_A1024 = 0x720000
WS_G     = 0x721000
WS_F1    = 0x728000
WS_F2    = 0x730000
WS_F2O   = 0x740000
WS_O     = 0x800000
WS_Y     = 0xA00000
WS_YM    = 0xA00000
WS_YP    = 0xC00000
WS_SIZE  = 0x1000000
YS       = 288
YSB      = YS*4

NAME = "gated_mix__softmax_full_mha__spectral_fnet__prompt"

class Asm:
    def __init__(self):
        self.lines = []
        self.nlab = 0
    def __call__(self, s, comment=None):
        if comment: s = f"{s:<72}; {comment}"
        self.lines.append("    " + s)
    def label(self, name):
        self.lines.append(f"{name}:")
    def c(self, s):
        self.lines.append(f"    ; {s}")
    def raw(self, s):
        self.lines.append(s)
    def newlabel(self, base):
        self.nlab += 1
        return f"{base}_{self.nlab}"
    def text(self):
        return "\n".join(self.lines) + "\n"

def vr(a, n=1):
    return f"v{a}" if n == 1 else f"v[{a}:{a+n-1}]"
def sr(a, n=1):
    return f"s{a}" if n == 1 else f"s[{a}:{a+n-1}]"

def srd(A, dst, ptr, size):
    A(f"s_mov_b32 s{dst}, s{ptr}")
    A(f"s_and_b32 s{dst+1}, s{ptr+1}, 0xffff")
    A(f"s_mov_b32 s{dst+2}, {hex(size)}")
    A(f"s_mov_b32 s{dst+3}, 0x20000")

def kernel_header(A, name):
    A.raw(f".globl {name}")
    A.raw(".p2align 8")
    A.raw(f".type {name},@function")
    A.raw(f"{name}:")

def kernel_desc(name, vgpr, sgpr):
    acc = (vgpr + 3)//4*4
    return f""".section .rodata,"a"
.p2align 6
.amdhsa_kernel {name}
  .amdhsa_next_free_vgpr {vgpr}
  .amdhsa_next_free_sgpr {sgpr}
  .amdhsa_accum_offset {acc}
  .amdhsa_group_segment_fixed_size 0
  .amdhsa_kernarg_size 96
  .amdhsa_user_sgpr_count 2
  .amdhsa_user_sgpr_kernarg_segment_ptr 1
  .amdhsa_system_sgpr_workgroup_id_x 1
.end_amdhsa_kernel
.text
"""
def f2u(x):
    import struct
    return struct.unpack("<I", struct.pack("<f", x))[0]

WS_STAMP = 0xE00000
class Stamps:
    def __init__(self, A, on, kidx, srd_ws, swave):
        self.A, self.on, self.k, self.srd, self.sw = A, on, kidx, srd_ws, swave
    def __call__(self, i):
        if not self.on: return
        A = self.A
        A("s_memrealtime s[70:71]" if self.on == 2 else "s_memtime s[70:71]")
        A("s_waitcnt lgkmcnt(0)")
        A(f"s_mov_b32 s{72+i}, s70")
    def dump(self, n):
        if not self.on: return
        A = self.A
        if getattr(self, "dbg", None):
            lab = A.newlabel("DD")
            A("s_cmp_eq_u32 s2, 100")
            A(f"s_cbranch_scc0 {lab}")
            A(f"s_cmp_eq_u32 s{self.sw}, 4")
            A(f"s_cbranch_scc0 {lab}")
            A("s_load_dwordx2 s[88:89], s[0:1], 80")
            A("s_waitcnt lgkmcnt(0)")
            A("s_mov_b64 exec, 1")
            for i in range(n):
                A(f"v_mov_b32 v9, s{72+i}")
                A(f"v_mov_b32 v8, {8+4*i}")
                A("global_store_dword v8, v9, s[88:89]")
                A("s_nop 1")
            A("s_waitcnt vmcnt(0)")
            A.label(lab)
            return
        A("s_mov_b64 exec, 1")
        A("s_lshl_b32 s70, s2, 4")
        A(f"s_add_u32 s70, s70, s{self.sw}")
        A("s_lshl_b32 s70, s70, 6")
        A(f"s_add_u32 s70, s70, {hex(WS_STAMP + self.k*0x40000)}")
        A("v_mov_b32 v8, 0")
        for i in range(n):
            A(f"v_mov_b32 v9, s{72+i}")
            A(f"buffer_store_dword v9, v8, s[{self.srd}:{self.srd+3}], s70 offen offset:{i*4}")
            A("s_nop 1")
        A("s_waitcnt vmcnt(0)")

def rt_stamp(A, kidx, which, on):
    if not on: return
    lab = A.newlabel("RT")
    A("s_and_b32 s94, s2, 255")
    A("s_cmp_eq_u32 s94, 0")
    A("s_cselect_b32 s95, 1, 0")
    A("s_cmp_eq_u32 s2, 255")
    A("s_cselect_b32 s94, 1, 0")
    A("s_or_b32 s95, s95, s94")
    A("s_cmp_eq_u32 s95, 0")
    A(f"s_cbranch_scc1 {lab}")
    A("s_cmp_ge_u32 s2, 256")
    A(f"s_cbranch_scc1 {lab}")
    A("s_load_dwordx2 s[88:89], s[0:1], 80")
    A("s_memrealtime s[90:91]")
    A("s_waitcnt lgkmcnt(0)")
    if on == 3:
        A(f"s_add_u32 s88, s88, {512*(2-kidx)}")
        A("s_addc_u32 s89, s89, 0")
    if which == 0: A("s_not_b32 s90, s90")
    A("s_lshl_b32 s94, s94, 2")
    A(f"s_add_u32 s94, s94, {(kidx*4 + which*2)*4}")
    A("s_mov_b64 s[92:93], exec")
    A("s_mov_b64 exec, 1")
    A("v_mov_b32 v62, s90")
    A(f"v_mov_b32 v63, s94")
    A("global_atomic_umax v63, v62, s[88:89]")
    A("s_mov_b64 exec, s[92:93]")
    A.label(lab)

def clk_stamp(A, slot):
    lab = A.newlabel("CK")
    A("s_cmp_eq_u32 s2, 0")
    A(f"s_cbranch_scc0 {lab}")
    A("s_cmp_eq_u32 s36, 4")
    A(f"s_cbranch_scc0 {lab}")
    A("s_load_dwordx2 s[88:89], s[0:1], 80")
    A("s_memrealtime s[90:91]")
    A("s_memtime s[92:93]")
    A("s_waitcnt lgkmcnt(0)")
    A("s_add_u32 s88, s88, 512")
    A("s_addc_u32 s89, s89, 0")
    A("s_mov_b64 s[94:95], exec")
    A("s_mov_b64 exec, 1")
    A("v_mov_b32 v62, s90")
    A("v_mov_b32 v63, s92")
    A(f"v_mov_b32 v61, {slot*4}")
    A("global_store_dwordx2 v61, v[62:63], s[88:89]")
    A("s_waitcnt vmcnt(0)")
    A("s_mov_b64 exec, s[94:95]")
    A.label(lab)
```

```python
from common import *

def gen_k1(A, opts=None):
    opts = opts or {}
    F = opts.get("fuse12")
    SC = " sc1" if F else ""
    name = NAME + "_kernel" if F else "k1_proj_kernel"
    kernel_header(A, name)
    A.c("phase 1: QKV projection + FNet hidden-DFT stage (folded over s) + gate")
    A("s_cmp_ge_u32 s2, 256")
    A("s_cbranch_scc1 " + ("K2_END" if F else "K1_END"))
    rt_stamp(A, 0, 0, opts.get("rt"))
    if F: A("s_load_dwordx2 s[86:87], s[0:1], 80", "debug")
    A("s_load_dwordx4 s[24:27], s[0:1], 0", "x, wqkv")
    A("s_load_dwordx4 s[28:31], s[0:1], 48", "hid_re, hid_im")
    A("s_load_dwordx2 s[32:33], s[0:1], 64", "gate_w")
    A("s_load_dwordx2 s[34:35], s[0:1], 88", "ws")
    A("v_lshrrev_b32 v1, 6, v0")
    A("v_and_b32 v0, 63, v0", "lane")
    A("v_readfirstlane_b32 s36, v1", "wave id")
    if opts.get("map1"):
        A("s_and_b32 s37, s2, 7", "hg = head group")
        A("s_lshr_b32 s38, s2, 3")
        A("s_and_b32 s39, s38, 1", "type: 0 = K|V tile, 1 = Q|FNet tile")
        A("s_lshr_b32 s40, s38, 1", "rb")
    else:
        A.c("workgroups with equal id&7 usually share an XCD (speed only): give them an 8 row-block x 4 column-pair patch")
        A("s_and_b32 s38, s2, 7")
        A("s_lshr_b32 s40, s2, 3", "r")
        A("s_and_b32 s39, s40, 1", "type: 0 = K|V tile, 1 = Q|FNet tile")
        A("s_and_b32 s37, s38, 6")
        A("s_bfe_u32 s41, s40, 0x10001")
        A("s_add_u32 s37, s37, s41", "hg = head group (0..7) = 2*(x>>1) + ((r>>1)&1)")
        A("s_lshr_b32 s40, s40, 2")
        A("s_and_b32 s38, s38, 1")
        A("s_lshl_b32 s38, s38, 3")
        A("s_add_u32 s40, s40, s38", "rb = 8*(x&1) + (r>>2)")
    A("s_waitcnt lgkmcnt(0)")
    srd(A, 16, 34, WS_SIZE)
    ST = opts.get("_ST") or Stamps(A, opts.get("stamps"), 0, 16, 36)
    STF = Stamps(A, opts.get("stamps") if (F and opts.get("p1st")) else False, 0, 16, 36)
    if F: ST = Stamps(A, False, 0, 16, 36)
    if F and opts.get("stamps"):
        A("s_memrealtime s[70:71]" if opts.get("stamps") == 2 else "s_memtime s[70:71]")
        A("s_waitcnt lgkmcnt(0)")
        A("s_mov_b32 s72, s70")
    ST(0)
    if F:
        A("s_cmp_ge_u32 s36, 8")
        A("s_cbranch_scc1 K1_LOADER")
        A("s_cmp_ge_u32 s36, 4")
        A("s_cbranch_scc0 K1_COMPUTE")
        A.c("waves 4..7 have no phase-1 GEMM work: they warm L2 (speed only) and take part in the stage barriers")
        if opts.get("pre", 0):
            A.c("the 32 workgroups that usually share an XCD each touch a distinct 1/32 of the lines that XCD needs, 4 K-chunks per round")
            srd(A, 4, 24, 0x200000)
            A("s_lshr_b32 s50, s2, 3", "r")
            A("s_and_b32 s51, s50, 3", "c")
            A("s_lshr_b32 s50, s50, 2", "i")
            A("s_sub_u32 s42, s36, 4", "k = chunk within the round")
            A.c("x: 32 rows: c<2 ? 64rb + 32c + l : 2048 - (64rb + 32(c-2) + l), l = lane>>1; both 64-B halves")
            A("s_and_b32 s52, s51, 1")
            A("s_lshl_b32 s52, s52, 5")
            A("s_lshl_b32 s53, s40, 6")
            A("s_add_u32 s52, s52, s53")
            A("v_lshrrev_b32 v8, 1, v0")
            A("v_add_u32 v8, s52, v8")
            A("v_sub_u32 v9, 0x800, v8")
            A("s_cmp_ge_u32 s51, 2")
            A("s_cselect_b64 s[54:55], -1, 0")
            A("v_cndmask_b32 v8, v8, v9, s[54:55]")
            A("v_lshlrev_b32 v8, 10, v8")
            A("v_and_b32 v9, 1, v0")
            A("v_lshl_add_u32 v8, v9, 6, v8", "x voffset")
            A("s_lshl_b32 s56, s42, 7", "chunk*128")
            A("buffer_load_dword v14, v8, s[4:7], s56 offen")
            A.c("W: 16 k-rows (16(i&3) + (lane>>1 & 15)) of group g = i>>2; lanes 0..31 only")
            A("s_cmp_lt_u32 s37, 4")
            A("s_cselect_b32 s44, s28, s30")
            A("s_cselect_b32 s45, s29, s31")
            A("s_lshl_b32 s47, s37, 7")
            A("s_and_b32 s49, s37, 3")
            A("s_lshl_b32 s49, s49, 7")
            A("s_add_u32 s53, s47, 2048")
            A("s_movk_i32 s57, 1024")
            A("s_cmp_eq_u32 s39, 0")
            A("s_cselect_b32 s8, s26, s44")
            A("s_cselect_b32 s9, s27, s45")
            A("s_cselect_b32 s46, 3072, s57", "stride1")
            A("s_cselect_b32 s48, s57, 0")
            A("s_cselect_b32 s49, s53, s49", "colbase1*2")
            A("s_add_u32 s48, s48, s47", "colbase0*2")
            A("s_cmp_lt_u32 s50, 4", "group 0 -> wqkv / colbase0 / stride 3072")
            A("s_cselect_b32 s8, s26, s8")
            A("s_cselect_b32 s9, s27, s9")
            A("s_cselect_b32 s46, 3072, s46")
            A("s_cselect_b32 s48, s48, s49")
            A("s_and_b32 s9, s9, 0xffff")
            A("s_cmp_eq_u32 s46, 1024")
            A("s_mov_b32 s10, 0x180000")
            A("s_cselect_b32 s10, 0x80000, s10")
            A("s_mov_b32 s11, 0x20000")
            A("s_and_b32 s52, s50, 3")
            A("s_lshl_b32 s52, s52, 4")
            A("s_lshl_b32 s53, s42, 6", "chunk*64")
            A("s_add_u32 s52, s52, s53")
            A("v_bfe_u32 v9, v0, 1, 4")
            A("v_add_u32 v9, s52, v9", "k row")
            A("v_mul_lo_u32 v9, v9, s46")
            A("v_and_b32 v10, 1, v0")
            A("v_lshl_add_u32 v9, v10, 6, v9")
            A("s_mov_b32 exec_hi, 0")
            A("buffer_load_dword v15, v9, s[8:11], s48 offen")
            A("s_mov_b64 exec, -1")
            A("s_waitcnt vmcnt(0)")
            A("s_barrier", "T: round 1 (chunks 0..3) has arrived")
            A("s_add_u32 s56, s56, 512")
            A("buffer_load_dword v14, v8, s[4:7], s56 offen")
            A("s_lshl_b32 s53, s46, 8", "256 rows * stride")
            A("s_add_u32 s48, s48, s53")
            A("s_mov_b32 exec_hi, 0")
            A("buffer_load_dword v15, v9, s[8:11], s48 offen")
            A("s_mov_b64 exec, -1")
        for b in range(8): A("s_barrier")
        A("s_branch P1_END")
        A.label("K1_COMPUTE")
    else:
        A("s_cmp_ge_u32 s36, 4")
        A("s_cbranch_scc1 K1_LOADER")

    A.c("compute waves: wr = w>>1, wc = w&1")
    A("s_lshr_b32 s42, s36, 1", "wr")
    A("s_and_b32 s43, s36, 1", "wc")
    if opts.get("touch", 1):
        A.c("L2 warm-up (speed only): the 32 workgroups that usually share an XCD each touch a distinct 1/32 of the lines that XCD needs")
        srd(A, 4, 24, 0x200000)
        A("s_lshr_b32 s50, s2, 3", "r")
        A("s_and_b32 s51, s50, 3", "c")
        A("s_lshr_b32 s50, s50, 2", "i")
        A.c("x: row = c<2 ? 64rb + 32c + l : 2048 - (64rb + 32(c-2) + l) ; chunk = 2w + (lane>>5)")
        A("s_and_b32 s52, s51, 1")
        A("s_lshl_b32 s52, s52, 5")
        A("s_lshl_b32 s53, s40, 6")
        A("s_add_u32 s52, s52, s53")
        A("v_and_b32 v8, 31, v0")
        A("v_add_u32 v8, s52, v8")
        A("v_sub_u32 v9, 0x800, v8")
        A("s_cmp_ge_u32 s51, 2")
        A("s_cselect_b64 s[54:55], -1, 0")
        A("v_cndmask_b32 v8, v8, v9, s[54:55]")
        A("v_lshlrev_b32 v8, 10, v8")
        A("v_lshrrev_b32 v9, 5, v0")
        A("v_lshl_add_u32 v8, v9, 7, v8")
        A("s_lshl_b32 s52, s36, 8", "2w*128")
        A("buffer_load_dword v14, v8, s[4:7], s52 offen")
        A.c("W: waves 0 and 2: chunks 2w + (lane>>4), k row = 64 chunk + 16 (i&3) + (lane&15), group g = i>>2")
        A("s_bitcmp1_b32 s36, 0")
        A("s_cbranch_scc1 K1_NOWT")
        A("s_cmp_lt_u32 s37, 4")
        A("s_cselect_b32 s44, s28, s30")
        A("s_cselect_b32 s45, s29, s31")
        A("s_lshl_b32 s47, s37, 7")
        A("s_and_b32 s49, s37, 3")
        A("s_lshl_b32 s49, s49, 7")
        A("s_add_u32 s53, s47, 2048")
        A("s_movk_i32 s56, 1024")
        A("s_cmp_eq_u32 s39, 0")
        A("s_cselect_b32 s8, s26, s44")
        A("s_cselect_b32 s9, s27, s45")
        A("s_cselect_b32 s46, 3072, s56", "stride1")
        A("s_cselect_b32 s48, s56, 0")
        A("s_cselect_b32 s49, s53, s49", "colbase1*2")
        A("s_add_u32 s48, s48, s47", "colbase0*2")
        A("s_cmp_lt_u32 s50, 4", "group 0 -> wqkv / colbase0 / stride 3072")
        A("s_cselect_b32 s8, s26, s8")
        A("s_cselect_b32 s9, s27, s9")
        A("s_cselect_b32 s46, 3072, s46")
        A("s_cselect_b32 s48, s48, s49")
        A("s_and_b32 s9, s9, 0xffff")
        A("s_cmp_eq_u32 s46, 1024")
        A("s_mov_b32 s10, 0x180000")
        A("s_cselect_b32 s10, 0x80000, s10")
        A("s_mov_b32 s11, 0x20000")
        A("s_and_b32 s52, s50, 3")
        A("s_lshl_b32 s52, s52, 4")
        A("s_lshl_b32 s53, s36, 7", "2w*64")
        A("s_add_u32 s52, s52, s53")
        A("v_lshrrev_b32 v9, 4, v0")
        A("v_lshlrev_b32 v9, 6, v9")
        A("v_and_b32 v10, 15, v0")
        A("v_add3_u32 v9, v9, v10, s52", "k row")
        A("v_mul_lo_u32 v9, v9, s46")
        A("buffer_load_dword v15, v9, s[8:11], s48 offen")
        A.label("K1_NOWT")
    A("v_and_b32 v8, 31, v0", "i")
    A("v_lshrrev_b32 v9, 5, v0", "h")
    A("v_bfe_u32 v10, v0, 1, 3", "sw = (i>>1)&7")
    A("v_xor_b32 v10, v10, v9")
    A("v_lshlrev_b32 v10, 4, v10", "(h^sw)*16")
    A("s_lshl_b32 s44, s42, 13", "wr*64*128")
    A("v_lshlrev_b32 v11, 7, v8")
    A("v_add3_u32 v2, v11, v10, s44", "ax[0]")
    A("v_xor_b32 v3, 32, v2")
    A("v_xor_b32 v4, 64, v2")
    A("v_xor_b32 v5, 0x60, v2")
    A("v_bfe_u32 v10, v0, 2, 2", "r")
    A("v_lshl_add_u32 v11, v9, 3, v10", "8h + r")
    A("v_lshlrev_b32 v11, 7, v11", "*128")
    A("v_bfe_u32 v12, v0, 4, 1", "g'")
    A("v_bfe_u32 v13, v0, 1, 1", "c4>>1")
    A("v_lshl_add_u32 v12, v12, 1, v13", "2g' + (c4>>1)")
    A("v_bfe_u32 v13, v0, 3, 1", "(r>>1)&1")
    A("v_lshlrev_b32 v13, 2, v13")
    A("v_xor_b32 v12, v12, v13", "phys piece (ct=0)")
    A("v_lshlrev_b32 v12, 4, v12")
    A("v_and_b32 v13, 1, v0")
    A("v_lshlrev_b32 v13, 3, v13", "8*(c4&1)")
    A("v_add3_u32 v11, v11, v12, v13")
    A("s_lshl_b32 s44, s43, 13")
    A("s_add_u32 s44, s44, 16384")
    A("v_add_u32 v6, s44, v11", "aw[0]")
    A("v_xor_b32 v7, 64, v6", "aw[1]")
    for r in range(64, 128):
        A(f"v_mov_b32 v{r}, 0")
    DEEP = opts.get("deep", 1) and F
    if DEEP:
        XF = [[16, 20], [32, 36], [48, 52], [128, 132]]
        WF = [[24, 28], [40, 44], [56, 60], [136, 140]]
    else:
        XF = [[16, 20], [32, 36]]
        WF = [[24, 28], [40, 44]]
    def acc(rt, ct): return 64 + 16*(2*rt + ct)
    def reads(st, ks):
        L = []
        L.append(f"ds_read_b128 {vr(XF[st][0],4)}, v{2+ks}")
        L.append(f"ds_read_b128 {vr(XF[st][1],4)}, v{2+ks} offset:4096")
        for ct in range(2):
            L.append(f"ds_read_b64_tr_b16 {vr(WF[st][ct],2)}, v{6+ct} offset:{ks*2048}")
            L.append(f"ds_read_b64_tr_b16 {vr(WF[st][ct]+2,2)}, v{6+ct} offset:{ks*2048+512}")
        return L
    def mfmas(st, wc):
        L = []
        for rt in range(2):
            for ct in range(2):
                a = acc(rt, ct)
                if wc == 0:
                    L.append(f"v_mfma_f32_32x32x16_bf16 {vr(a,16)}, {vr(WF[st][ct],4)}, {vr(XF[st][rt],4)}, {vr(a,16)}")
                else:
                    L.append(f"v_mfma_f32_32x32x16_bf16 {vr(a,16)}, {vr(XF[st][rt],4)}, {vr(WF[st][ct],4)}, {vr(a,16)}")
        return L
    ST(1)
    if F and opts.get("pre", 0): A("s_barrier", "T")
    A("s_barrier", "#0: stage 0 landed")
    STF(4)
    ST(2)
    for s in reads(0, 0): A(s)
    if DEEP:
        for s in reads(1, 1): A(s)
    A("s_mov_b32 s45, 0", "stage counter")
    A("s_cmp_eq_u32 s43, 0")
    A("s_cbranch_scc0 K1_LOOP1")
    for wc in range(2):
        A.raw(".p2align 6")
        A.label(f"K1_LOOP{wc}")
        for ks in range(4):
            bar_ks = 2 if DEEP else 3
            st = ks if DEEP else (ks & 1)
            if DEEP:
                if ks < 2: A("s_waitcnt lgkmcnt(6)")
                elif ks == 2: A("s_waitcnt lgkmcnt(0)")
            else:
                A("s_waitcnt lgkmcnt(0)")
            if ks == bar_ks:
                A("s_mov_b32 s46, 0x8000")
                A("s_cmp_eq_u32 s45, 4")
                A("s_cselect_b32 s46, 0xfffe0000, s46", "5-slot ring: slot 4 -> slot 0")
                for r in range(2, 8):
                    A(f"v_add_u32 v{r}, s46, v{r}")
                A("s_cmp_eq_u32 s45, 7")
                lab = f"K1_NOBAR{wc}"
                A(f"s_cbranch_scc1 {lab}")
                A("s_barrier")
                A.label(lab)
            if DEEP: rd = reads((ks + 2) & 3, (ks + 2) & 3)
            else: rd = reads(1 - st, (ks + 1) & 3)
            mf = mfmas(st, wc)
            if opts.get("noreads"): rd = ["s_nop 0"]*6
            if opts.get("nomfma"): mf = ["s_nop 0"]*4
            if DEEP:
                A(mf[0]); A(rd[0]); A(rd[1]); A(mf[1]); A(rd[2]); A(rd[3]); A(mf[2]); A(rd[4]); A(rd[5]); A(mf[3])
            else:
                A(mf[0]); A(rd[0]); A(rd[1]); A(rd[2]); A(mf[1]); A(rd[3]); A(rd[4]); A(rd[5]); A(mf[2]); A(mf[3])
        A("s_add_u32 s45, s45, 1")
        A("s_cmp_lt_u32 s45, 8")
        A(f"s_cbranch_scc1 K1_LOOP{wc}")
        if wc == 0:
            A("s_branch K1_EPI_QK")
    A("s_cmp_eq_u32 s39, 0")
    A("s_cbranch_scc0 K1_EPI_F")

    ST(3)
    STF(5)
    A.c("V epilogue")
    A("s_waitcnt lgkmcnt(0)")
    A("v_and_b32 v8, 15, v0", "d")
    A("v_lshlrev_b32 v8, 4, v8")
    A("v_bfe_u32 v9, v0, 4, 1", "head low bit")
    A("v_lshlrev_b32 v9, 16, v9")
    A("v_lshrrev_b32 v10, 5, v0")
    A("v_lshlrev_b32 v10, 8, v10", "h*256")
    A("v_add3_u32 v8, v8, v9, v10")
    A.c("soffset = WS_V + (4x_)*65536 + tile*1024, tile = 4rb + 2wr + rt")
    A("s_lshl_b32 s46, s37, 18")
    A("s_lshl_b32 s47, s40, 2")
    A("s_lshl_b32 s48, s42, 1")
    A("s_add_u32 s47, s47, s48")
    A("s_lshl_b32 s47, s47, 10")
    A("s_add_u32 s46, s46, s47")
    A(f"s_add_u32 s46, s46, {hex(WS_V)}")
    A("s_nop 7")
    tmp = 16
    for rt in range(2):
        for ct in range(2):
            a = acc(rt, ct)
            for ch in range(2):
                for j in range(4):
                    A(f"v_cvt_pk_bf16_f32 v{tmp+j}, v{a+8*ch+2*j}, v{a+8*ch+2*j+1}")
                A(f"s_add_u32 s47, s46, {rt*1024 + ct*2*65536}")
                A(f"buffer_store_dwordx4 {vr(tmp,4)}, v8, s[16:19], s47 offen offset:{ch*512}{SC}")
                tmp = 16 + (tmp - 16 + 4) % 32
    if F:
        A("s_branch P1_END")
    else:
        ST(4)
        if opts.get("stamps"): A("s_waitcnt vmcnt(0)")
        ST(5)
        ST.dump(6)
        if opts.get("rt"): A("s_waitcnt vmcnt(0)")
        rt_stamp(A, 0, 1, opts.get("rt"))
        A("s_endpgm")

    A.label("K1_EPI_F")
    ST(3)
    STF(5)
    A.c("FNet epilogue: A' = acc(s) + acc(mirror) (re), B' = acc(s) - acc(mirror) (im)")
    A("s_waitcnt lgkmcnt(0)")
    A("s_cmp_lt_u32 s37, 4")
    A("s_cselect_b32 s46, 1.0, -1.0", "sign")
    A(f"s_mov_b32 s48, {hex(WS_BP)}")
    A(f"s_cselect_b32 s47, {hex(WS_AP)}, s48")
    A("s_and_b32 s48, s37, 3")
    A("s_lshl_b32 s48, s48, 17", "eblk*65536, eblk = 2*(x_&3)")
    A("s_add_u32 s47, s47, s48")
    A("s_lshl_b32 s48, s40, 2")
    A("s_lshl_b32 s49, s42, 1")
    A("s_add_u32 s48, s48, s49", "ks0 = 4rb + 2wr")
    A("s_lshl_b32 s49, s48, 10")
    A("s_add_u32 s47, s47, s49")
    A("v_lshlrev_b32 v8, 4, v0")
    A("s_nop 4")
    A.c("s == 0 special: row 0 pairs with row 1024 (only for re columns, rb == 0, wr == 0)")
    A("s_cmp_eq_u32 s48, 0")
    A("s_cbranch_scc0 K1_EPI_F2")
    A("s_cmp_lt_u32 s37, 4")
    A("s_cbranch_scc0 K1_EPI_F2")
    A("s_mov_b32 exec_lo, -1", "lanes 0..31")
    A("s_mov_b32 exec_hi, 0")
    A("v_lshlrev_b32 v9, 2, v0")
    A("s_lshl_b32 s49, s37, 8", "e base = 64 x_ -> *4 bytes")
    A(f"s_add_u32 s49, s49, {hex(WS_A1024)}")
    for ct in range(2):
        A(f"buffer_store_dword v{acc(1,ct)}, v9, s[16:19], s49 offen offset:{ct*128}{SC}")
    A("s_nop 1")
    for ct in range(2):
        A(f"v_mov_b32 v{acc(1,ct)}, 0")
    A("s_mov_b64 exec, -1")
    A.label("K1_EPI_F2")
    tmp = 16
    for ct in range(2):
        a0 = acc(0, ct); a1 = acc(1, ct)
        for r in range(16):
            A(f"v_fma_f32 v{a0+r}, v{a1+r}, s46, v{a0+r}")
        for ch in range(2):
            for j in range(4):
                A(f"v_cvt_pk_bf16_f32 v{tmp+j}, v{a0+8*ch+2*j}, v{a0+8*ch+2*j+1}")
            A(f"s_add_u32 s49, s47, {ct*65536}")
            A(f"buffer_store_dwordx4 {vr(tmp,4)}, v8, s[16:19], s49 offen offset:{ch*1024}{SC}")
            tmp = 16 + (tmp - 16 + 4) % 32
    if F:
        A("s_branch P1_END")
    else:
        ST(4)
        if opts.get("stamps"): A("s_waitcnt vmcnt(0)")
        ST(5)
        ST.dump(6)
        if opts.get("rt"): A("s_waitcnt vmcnt(0)")
        rt_stamp(A, 0, 1, opts.get("rt"))
        A("s_endpgm")

    A.label("K1_EPI_QK")
    ST(3)
    STF(5)
    A.c("Q/K epilogue")
    A("s_waitcnt lgkmcnt(0)")
    c = 0.25*math.log2(math.e)
    A("s_cmp_eq_u32 s39, 0")
    A(f"s_cselect_b32 s46, 1.0, {hex(f2u(c))}", "K: 1.0, Q: 0.25*log2(e)")
    A(f"s_cselect_b32 s47, {hex(WS_K)}, {hex(WS_Q)}" if WS_Q > 64 else f"s_cselect_b32 s47, {hex(WS_K)}, {WS_Q}")
    A("s_lshl_b32 s48, s37, 18", "head base 4x_ * 65536")
    A("s_add_u32 s47, s47, s48")
    A("s_lshl_b32 s48, s40, 2")
    A("s_lshl_b32 s49, s42, 1")
    A("s_add_u32 s48, s48, s49")
    A("s_lshl_b32 s48, s48, 10", "tile*1024")
    A("s_add_u32 s47, s47, s48")
    A("v_lshlrev_b32 v8, 4, v0")
    A("s_nop 7")
    tmp = 16
    for rt in range(2):
        for ct in range(2):
            a = acc(rt, ct)
            for hd in range(2):
                for j in range(8):
                    A(f"v_mul_f32 v{a+8*hd+j}, s46, v{a+8*hd+j}")
                for j in range(4):
                    A(f"v_cvt_pk_bf16_f32 v{tmp+j}, v{a+8*hd+2*j}, v{a+8*hd+2*j+1}")
                A(f"s_add_u32 s49, s47, {rt*1024 + (2*ct+hd)*65536}")
                A(f"buffer_store_dwordx4 {vr(tmp,4)}, v8, s[16:19], s49 offen{SC}")
                tmp = 16 + (tmp - 16 + 4) % 32
    if F:
        A("s_branch P1_END")
    else:
        ST(4)
        if opts.get("stamps"): A("s_waitcnt vmcnt(0)")
        ST(5)
        ST.dump(6)
        if opts.get("rt"): A("s_waitcnt vmcnt(0)")
        rt_stamp(A, 0, 1, opts.get("rt"))
        A("s_endpgm")

    A.label("K1_LOADER")
    srd(A, 4, 24, 0x200000)
    if F:
        A.c("launch epoch: workgroup 0 publishes a nonzero time stamp in d_debug[0] (zero at launch); hand-off flags in d_ws carry it")
        A("s_mov_b32 s92, s86")
        A("s_and_b32 s93, s87, 0xffff")
        A("s_mov_b32 s94, 0x100")
        A("s_mov_b32 s95, 0x20000")
        A("s_sub_u32 s50, s36, 8")
        A("s_or_b32 s50, s50, s2")
        A("s_cmp_eq_u32 s50, 0")
        A("s_cbranch_scc0 K1_NOEPOCH")
        A("s_memrealtime s[50:51]")
        A("s_waitcnt lgkmcnt(0)")
        A("s_or_b32 s50, s50, 1")
        A("v_mov_b32 v2, s50")
        A("v_mov_b32 v3, 0")
        A("s_mov_b64 exec, 1")
        A("buffer_store_dword v2, v3, s[92:95], 0 offen sc1")
        A("s_mov_b64 exec, -1")
        A.label("K1_NOEPOCH")
        PRE_BAR = opts.get("pre", 0)
    A(f"s_sub_u32 s41, s36, {8 if F else 4}", "j")
    A("s_lshr_b32 s42, s41, 1", "wr")
    A("s_and_b32 s43, s41, 1", "rt")
    A("v_lshrrev_b32 v9, 3, v0", "a")
    A("v_lshrrev_b32 v10, 2, v9")
    A("v_lshlrev_b32 v10, 3, v10", "8*(a>>2)")
    A("v_and_b32 v11, 3, v9")
    A("s_lshl_b32 s52, s40, 6")
    A("s_lshl_b32 s53, s42, 5")
    A("s_add_u32 s52, s52, s53", "64rb + 32wr")
    A("v_add3_u32 v10, v10, v11, s52", "sa")
    A("v_and_b32 v11, 7, v0")
    A("v_lshrrev_b32 v12, 1, v9")
    A("v_xor_b32 v12, v11, v12", "p0")
    A("s_cmp_eq_u32 s43, 1")
    A("s_cselect_b64 s[68:69], -1, 0")
    A("v_mov_b32 v14, 0x400")
    A("s_lshl_b32 s53, s41, 12", "j*4096")
    A.c("K-chunk order is rotated per workgroup so that workgroups sharing x rows / W columns first-touch different chunks")
    A("s_lshr_b32 s66, s2, 3", "r")
    A("s_lshr_b32 s67, s66, 2", "i")
    A("s_and_b32 s66, s66, 3", "c")
    rot = opts.get("rot", 1)
    if rot == 0: A("s_mov_b32 s66, 0")
    elif rot == 1:
        A("s_lshl_b32 s66, s66, 1"); A("s_add_u32 s66, s66, s67"); A("s_and_b32 s66, s66, 7")
    elif rot == 2: A("s_lshl_b32 s66, s66, 1")
    elif rot == 3: A("s_mov_b32 s66, s67")
    elif rot == 4:
        A("s_add_u32 s66, s66, s67"); A("s_and_b32 s66, s66, 3")
    elif rot == 5:
        A("s_add_u32 s66, s66, s67"); A("s_and_b32 s66, s66, 1")
    elif rot == 6:
        A("s_add_u32 s66, s66, s67"); A("s_and_b32 s66, s66, 3"); A("s_lshl_b32 s66, s66, 1")
    A("s_lshl_b32 s55, s66, 7", "x soffset = kappa*128")
    for u in range(4):
        A(f"v_add_u32 v13, {16*(u>>1)+4*(u&1)}, v10")
        A(f"v_sub_u32 v15, 0x800, v13")
        A(f"v_cndmask_b32 v13, v13, v15, s[68:69]")
        if u == 0:
            A("v_cmp_eq_u32 vcc, 0x800, v13")
            A("s_nop 1")
            A("v_cndmask_b32 v13, v13, v14, vcc")
        A(f"v_lshlrev_b32 v13, 10, v13")
        if u & 1:
            A(f"v_xor_b32 v15, 4, v12")
            A(f"v_lshl_add_u32 v{2+u}, v15, 4, v13")
        else:
            A(f"v_lshl_add_u32 v{2+u}, v12, 4, v13")
        if u == 0 and F and opts.get("pre", 0): A("s_barrier", "T")
        A(f"s_add_u32 m0, s53, {u*1024}")
        A("s_nop 0")
        A(f"buffer_load_dwordx4 v{2+u}, s[4:7], s55 offen lds", "x, stage 0")
    srd(A, 8, 26, 0x180000)
    srd(A, 20, 32, 0x400)
    A.c("W1 source: type 0 -> wqkv V columns; type 1 -> hid_re (hg<4) / hid_im")
    A("s_cmp_lt_u32 s37, 4")
    A("s_cselect_b32 s44, s28, s30")
    A("s_cselect_b32 s45, s29, s31")
    A("s_lshl_b32 s47, s37, 7", "64 hg * 2")
    A("s_and_b32 s49, s37, 3")
    A("s_lshl_b32 s49, s49, 7", "64 (hg&3) * 2")
    A("s_add_u32 s63, s47, 2048", "(1024 + 64hg)*2")
    A("s_mov_b32 s64, 0x80000")
    A("s_movk_i32 s65, 1024")
    A("s_cmp_eq_u32 s39, 0")
    A("s_cselect_b32 s12, s26, s44")
    A("s_cselect_b32 s13, s27, s45")
    A("s_cselect_b32 s14, 0x180000, s64")
    A("s_mov_b32 s15, 0x20000")
    A("s_cselect_b32 s46, 3072, s65", "stride1")
    A("s_cselect_b32 s48, s65, 0", "type0: K columns start at 512")
    A("s_cselect_b32 s49, s63, s49", "colbase1*2")
    A("s_and_b32 s13, s13, 0xffff")
    A("s_add_u32 s48, s48, s47", "colbase0*2")
    A("v_bfe_u32 v13, v9, 1, 1")
    A("v_lshlrev_b32 v13, 2, v13")
    A("v_xor_b32 v13, v11, v13", "q")
    A("v_lshlrev_b32 v13, 4, v13", "q*16")
    A("s_lshl_b32 s52, s41, 4")
    A("v_add_u32 v15, s52, v9", "k = 16j + a")
    A("s_movk_i32 s63, 3072")
    A("v_mul_lo_u32 v6, v15, s63")
    A("v_add3_u32 v6, v6, v13, s48")
    A("v_mul_lo_u32 v7, v15, s46")
    A("v_add3_u32 v7, v7, v13, s49")
    A("s_lshl_b32 s54, s41, 11")
    A("s_add_u32 s54, s54, 16384", "16384 + j*2048")
    A("s_mov_b32 s52, 0", "slot base")
    A("s_lshl_b32 s58, s46, 3", "8*stride1")
    A("s_lshl_b32 s59, s46, 6", "64*stride1")
    A("s_mul_i32 s56, s66, 196608", "w0 soffset")
    A("s_mul_i32 s57, s66, s59", "w1 soffset")
    A("s_mov_b32 s62, 0", "cnt")
    A("s_branch K1_ISSUE_W")
    A.label("K1_ISSUE")
    A("s_add_u32 s60, s52, s53")
    for u in range(4):
        A(f"s_add_u32 m0, s60, {u*1024}")
        A("s_nop 0")
        if not opts.get("nodma"): A(f"buffer_load_dwordx4 v{2+u}, s[4:7], s55 offen lds")
    A.label("K1_ISSUE_W")
    A("s_add_u32 s60, s52, s54")
    A("s_mov_b32 m0, s60")
    A("s_add_u32 s61, s56, 24576")
    if not opts.get('nodma'): A("buffer_load_dwordx4 v6, s[8:11], s56 offen lds")
    A("s_add_u32 m0, s60, 1024")
    A("s_nop 0")
    if not opts.get('nodma'): A("buffer_load_dwordx4 v6, s[8:11], s61 offen lds")
    A("s_add_u32 m0, s60, 8192")
    A("s_add_u32 s61, s57, s58")
    if not opts.get('nodma'): A("buffer_load_dwordx4 v7, s[12:15], s57 offen lds")
    A("s_add_u32 m0, s60, 9216")
    A("s_nop 0")
    if not opts.get('nodma'): A("buffer_load_dwordx4 v7, s[12:15], s61 offen lds")
    A("s_add_u32 s52, s52, 0x8000")
    A("s_cmp_eq_u32 s52, 0x28000")
    A("s_cselect_b32 s52, 0, s52", "5-slot ring")
    A("s_add_u32 s55, s55, 128")
    A("s_add_u32 s56, s56, 196608")
    A("s_add_u32 s57, s57, s59")
    A("s_cmp_eq_u32 s55, 1024", "kappa wraps")
    A("s_cselect_b32 s55, 0, s55")
    A("s_cselect_b32 s56, 0, s56")
    A("s_cselect_b32 s57, 0, s57")
    A("s_add_u32 s62, s62, 1")
    A.c("st0 st1 | wait st0, bar0 | st2 st3 | wait st1, bar1 | st4 st5 | wait st2, bar2 | st6 | bar3 | st7 | bar4 | bar5 | bar6 | bar7")
    A("s_bitcmp1_b32 0x2a, s62", "after issuing stage 0, 2, 4 (cnt = 1, 3, 5): issue the next one at once")
    A("s_cbranch_scc1 K1_ISSUE")
    A("s_cmp_eq_u32 s62, 2")
    A("s_cbranch_scc0 K1_NOT2")
    ST(1)
    A("s_waitcnt vmcnt(8)")
    A("s_barrier", "#0")
    ST(2)
    A("s_branch K1_ISSUE")
    A.label("K1_NOT2")
    A("s_cmp_eq_u32 s62, 4")
    A("s_cbranch_scc0 K1_NOT4")
    A("s_waitcnt vmcnt(16)")
    A("s_barrier", "#1")
    A("s_branch K1_ISSUE")
    A.label("K1_NOT4")
    A("s_waitcnt vmcnt(24)")
    A("s_barrier", "#2 (cnt 6), #3 (cnt 7), #4 (cnt 8)")
    A("s_cmp_lt_u32 s62, 8")
    A("s_cbranch_scc1 K1_ISSUE")
    A("s_waitcnt vmcnt(16)")
    A("s_barrier", "#5")
    A.c("gate rows (loaded now: the DMA queue is nearly drained): pair pi = (2hg+type)*4 + j ; s = 64rb + pi")
    A("s_lshl_b32 s50, s37, 1")
    A("s_add_u32 s50, s50, s39")
    A("s_lshl_b32 s50, s50, 2")
    A("s_add_u32 s50, s50, s41")
    A("s_lshl_b32 s51, s40, 6")
    A("s_add_u32 s50, s50, s51", "s50 = s")
    A("s_sub_u32 s51, 2048, s50")
    A("s_cmp_eq_u32 s50, 0")
    A("s_cselect_b32 s51, 1024, s51", "s51 = mirror row")
    A("v_lshlrev_b32 v8, 4, v0")
    A("s_lshl_b32 s52, s50, 10")
    A("s_lshl_b32 s53, s51, 10")
    A("buffer_load_dwordx4 v[16:19], v8, s[4:7], s52 offen")
    A("buffer_load_dwordx4 v[20:23], v8, s[4:7], s53 offen")
    A("buffer_load_dwordx4 v[24:27], v8, s[20:23], 0 offen")
    A("s_waitcnt vmcnt(11)")
    A("s_barrier", "#6")
    A("s_waitcnt vmcnt(3)")
    A("s_barrier", "#7")
    ST(3)
    A("s_waitcnt vmcnt(0)")
    A.c("gate z = sum x*w ; alt = sum (-1)^d x   for rows s (v16..19) and mirror (v20..23)")
    for j in range(4):
        A(f"v_lshlrev_b32 v{28+2*j}, 16, v{24+j}", "w lo")
        A(f"v_and_b32 v{29+2*j}, 0xffff0000, v{24+j}", "w hi")
    for row in range(2):
        z = 40 + row; al = 42 + row
        for j in range(4):
            src = 16 + 4*row + j
            A(f"v_lshlrev_b32 v36, 16, v{src}")
            A(f"v_and_b32 v37, 0xffff0000, v{src}")
            if j == 0:
                A(f"v_mul_f32 v{z}, v36, v28")
                A(f"v_sub_f32 v{al}, v36, v37")
            else:
                A(f"v_fmac_f32 v{z}, v36, v{28+2*j}")
                A(f"v_add_f32 v{al}, v{al}, v36")
                A(f"v_sub_f32 v{al}, v{al}, v37")
            A(f"v_fmac_f32 v{z}, v37, v{29+2*j}")
    A("s_nop 1")
    for dpp in ["quad_perm:[1,0,3,2] row_mask:0xf bank_mask:0xf", "quad_perm:[2,3,0,1] row_mask:0xf bank_mask:0xf",
                "row_half_mirror row_mask:0xf bank_mask:0xf", "row_mirror row_mask:0xf bank_mask:0xf",
                "row_bcast:15 row_mask:0xa bank_mask:0xf", "row_bcast:31 row_mask:0xc bank_mask:0xf"]:
        for r in range(40, 44):
            A(f"v_add_f32_dpp v{r}, v{r}, v{r} {dpp}")
    A("s_nop 1")
    A("s_mov_b32 exec_lo, 0")
    A("s_mov_b32 exec_hi, 0x80000000", "lane 63 holds the totals")
    nl2e = f2u(-math.log2(math.e))
    for row in range(2):
        A(f"v_mul_f32 v{40+row}, {hex(nl2e)}, v{40+row}")
        A(f"v_exp_f32 v{40+row}, v{40+row}")
        A("s_nop 0")
        A(f"v_add_f32 v{40+row}, 1.0, v{40+row}")
        A(f"v_rcp_f32 v{40+row}, v{40+row}")
    A("s_lshl_b32 s52, s50, 2")
    A("s_lshl_b32 s53, s51, 2")
    A(f"s_add_u32 s52, s52, {hex(WS_G)}")
    A(f"s_add_u32 s53, s53, {hex(WS_G)}")
    A("v_mov_b32 v8, 0")
    A("buffer_store_dword v40, v8, s[16:19], s52 offen" + SC)
    A("buffer_store_dword v41, v8, s[16:19], s53 offen" + SC)
    A.c("A'256[s] = alt(s) + alt(mirror)  (s >= 1);  s == 0: A'256[0] = alt(0), A1024[256] = alt(1024)")
    A("s_cmp_eq_u32 s50, 0")
    A("s_cbranch_scc0 K1_G2")
    A(f"s_mov_b32 s52, {hex(WS_A1024 + 256*4)}")
    A("buffer_store_dword v43, v8, s[16:19], s52 offen" + SC)
    A("s_nop 1")
    A("v_mov_b32 v43, 0")
    A.label("K1_G2")
    A("v_add_f32 v42, v42, v43")
    A("s_lshr_b32 s52, s50, 4")
    A("s_lshl_b32 s52, s52, 10", "ks*1024")
    A("s_bfe_u32 s53, s50, 0x10003", "(s>>3)&1")
    A("s_lshl_b32 s53, s53, 9")
    A("s_add_u32 s52, s52, s53")
    A("s_and_b32 s53, s50, 7")
    A("s_lshl_b32 s53, s53, 1")
    A("s_add_u32 s52, s52, s53")
    A(f"s_add_u32 s52, s52, {hex(WS_AP + 8*65536)}")
    A("v_cvt_pk_bf16_f32 v42, v42, v42")
    A("buffer_store_short v42, v8, s[16:19], s52 offen" + SC)
    if F:
        A("s_mov_b64 exec, -1")
        A.c("wave 8 fetches the epoch")
        A("s_cmp_eq_u32 s36, 8")
        A("s_cbranch_scc0 P1_END")
        A("v_mov_b32 v5, 0")
        A("s_mov_b32 s51, 0")
        A.label("K1_EPSPIN")
        A("buffer_load_dword v6, v5, s[92:95], 0 offen sc1")
        A("s_waitcnt vmcnt(0)")
        A("v_readfirstlane_b32 s65, v6")
        A("s_add_u32 s51, s51, 1")
        A("s_cmp_lg_u32 s65, 0")
        A("s_cbranch_scc1 P1_END")
        A("s_sleep 8")
        A("s_cmp_lt_u32 s51, 0x40000")
        A("s_cbranch_scc1 K1_EPSPIN")
        A.label("P1_END")
        A("s_waitcnt vmcnt(0)", "this wave's phase-1 stores have reached memory")
        A("s_barrier", "E1: all phase-1 stores of the workgroup are done")
        A("s_lshl_b32 s66, s2, 7", "phase-1 flag: one 128-B line per workgroup")
        return name, 168, 96
    ST(4)
    ST(5)
    ST.dump(6)
    A.label("K1_END")
    if opts.get("rt"): A("s_waitcnt vmcnt(0)")
    rt_stamp(A, 0, 1, opts.get("rt"))
    A("s_endpgm")
    return name, 128, (96 if (opts.get('stamps') or opts.get('rt')) else 70)
```

```python
from common import *

LDS_V = 65536
LDS_F = 131072
LDS_X = LDS_F + 12288
LDS_ONES = LDS_X + 18432
LDS_CNT = LDS_ONES + 1664
K2_LDS = LDS_CNT + 64
assert LDS_ONES % 256 == 0 and K2_LDS <= 163840

def gen_k2(A, opts=None):
    opts = opts or {}
    F12 = opts.get("fuse12")
    SC1 = " sc1" if F12 else ""
    name = "k2_attn_kernel"
    if not F12:
        kernel_header(A, name)
        A.c("K2: attention (8 waves) + K/V loaders & FNet sequence-DFT stage (4 waves).  256 WGs x 768 threads")
        A("s_cmp_ge_u32 s2, 256")
        A("s_cbranch_scc1 K2_END")
        rt_stamp(A, 1, 0, opts.get("rt"))
    else:
        A.c("phase 2: attention (8 waves) + K/V loaders & FNet sequence-DFT stage (4 waves)")
    A("s_load_dwordx4 s[24:27], s[0:1], 32", "seq_re, seq_im")
    A("s_load_dwordx2 s[34:35], s[0:1], 88", "ws")
    if opts.get("fuse23"):
        A("s_load_dwordx2 s[28:29], s[0:1], 16", "wo")
        A("s_load_dwordx4 s[84:87], s[0:1], 72", "out, debug")
    if not F12:
        A("v_lshrrev_b32 v1, 6, v0")
        A("v_and_b32 v0, 63, v0", "lane")
        A("v_readfirstlane_b32 s36, v1", "wave id")
    A("s_and_b32 s37, s2, 7", "x_")
    A("s_lshr_b32 s38, s2, 3", "r")
    A("s_and_b32 s39, s38, 3")
    A("s_lshl_b32 s40, s37, 2")
    A("s_add_u32 s40, s40, s39", "head = 4x_ + (r&3)   (also FNet t-block i)")
    A("s_lshr_b32 s41, s38, 2", "qb (also FNet e-block)")
    A("s_waitcnt lgkmcnt(0)")
    srd(A, 4, 34, WS_SIZE)
    ST = Stamps(A, opts.get("stamps"), 1, 4, 36)
    ST.dbg = opts.get("dbgst")
    if not F12: ST(0)
    if opts.get("clk"): clk_stamp(A, 12)
    if F12:
        ST(10)
        A("s_cmp_eq_u32 s36, 8")
        A("s_cbranch_scc0 K2_E2")
        A.c("wave 8: publish this workgroup's phase-1 flag, then wait for the 32 producers of this head group's Q/K/V")
        A(f"s_add_u32 s66, s66, {hex(WS_F1)}")
        A("v_mov_b32 v2, s65")
        A("v_mov_b32 v3, 0")
        A("s_mov_b64 exec, 1")
        A("buffer_store_dword v2, v3, s[4:7], s66 offen sc1")
        A("s_mov_b64 exec, -1")
        A.c("producers of head group hg = x_: b = 2(hg>>1) + (l&1) + 8*(((l>>1)&1) + 2(hg&1) + 4(l>>2)), l = lane&31")
        A("v_and_b32 v4, 1, v0")
        A("v_bfe_u32 v5, v0, 1, 1")
        A("v_bfe_u32 v6, v0, 2, 3")
        A("v_lshl_add_u32 v5, v6, 2, v5")
        A("s_and_b32 s52, s37, 1")
        A("s_lshl_b32 s52, s52, 1")
        A("v_add_u32 v5, s52, v5")
        A("v_lshl_add_u32 v4, v5, 3, v4")
        A("s_and_b32 s52, s37, 6")
        A("v_add_u32 v4, s52, v4")
        A("v_lshlrev_b32 v4, 7, v4")
        A(f"s_mov_b32 s52, {hex(WS_F1)}")
        A("s_mov_b32 s51, 0")
        ST(4)
        A(f"s_sleep {opts.get('sleep0', 12)}")
        A.label("K2_POLL1")
        A("buffer_load_dword v5, v4, s[4:7], s52 offen sc1")
        A("s_waitcnt vmcnt(0)")
        A("v_cmp_ne_u32 vcc, s65, v5")
        A("s_add_u32 s51, s51, 1")
        A("s_nop 3")
        A("s_cmp_eq_u64 vcc, 0")
        A("s_cbranch_scc1 K2_E2P")
        A(f"s_sleep {opts.get('sleep1', 6)}")
        A("s_cmp_lt_u32 s51, 0x40000", "bounded: never hang")
        A("s_cbranch_scc1 K2_POLL1")
        A.label("K2_E2P")
        if opts.get("stamps"):
            ST(5)
            A("s_mov_b32 s80, s51")
        A.label("K2_E2")
        A("s_barrier", "E2: this head group's Q/K/V are published")
        ST(11)
    A("s_cmp_ge_u32 s36, 8")
    A("s_cbranch_scc1 K2_FNET")

    QA, QB, KF, V0, V1, P, SA, SB, OA, OB, CN = 4, 8, 12, 16, 20, 24, 32, 48, 64, 80, 100
    A("s_and_b32 s42, s36, 3", "qp: query-tile pair")
    A("s_lshr_b32 s49, s36, 2", "kh: key half")
    A("s_lshl_b32 s43, s41, 3")
    A("s_lshl_b32 s44, s42, 1")
    A("s_add_u32 s44, s44, s43", "q tile a = 8 qb + 2 qp")
    A("s_lshl_b32 s43, s40, 16")
    A("s_lshl_b32 s44, s44, 10")
    A("s_add_u32 s43, s43, s44", "head*65536 + tile_a*1024")
    A("v_lshlrev_b32 v1, 4, v0", "lane*16")
    A(f"s_add_u32 s45, s43, {hex(WS_Q)}" if WS_Q else "s_mov_b32 s45, s43")
    A(f"buffer_load_dwordx4 {vr(QA,4)}, v1, s[4:7], s45 offen{SC1}")
    A(f"buffer_load_dwordx4 {vr(QB,4)}, v1, s[4:7], s45 offen offset:1024{SC1}")
    A("s_lshl_b32 s50, s49, 15", "kh*32768")
    A("v_add_u32 v2, s50, v1", "K address")
    A.c("V address: lanes with (l&31)<16 read V rows; the others read a strip of bf16 ones (row sums come out of the same MFMA)")
    A("v_lshrrev_b32 v3, 5, v0")
    A("v_lshlrev_b32 v3, 8, v3", "h*256")
    A("v_and_b32 v28, 15, v0")
    A("v_lshl_add_u32 v3, v28, 4, v3")
    A(f"s_add_u32 s51, s50, {LDS_V}")
    A("v_add_u32 v3, s51, v3", "real V address")
    A("v_add_u32 v28, 4, v0")
    A("v_bfe_u32 v28, v28, 3, 1", "1 for lanes 20..27 (mod 32)")
    A("v_lshlrev_b32 v28, 6, v28", "-> strip offset 64 (zeros, other banks)")
    if opts.get("zrows", 1):
        A("v_and_b32 v29, 31, v0")
        A("v_cmp_eq_u32 vcc, 16, v29")
        A("v_max_u32 v29, 16, v28", "other lanes: offset 16 or 64 (zeros)")
        A("v_mov_b32 v30, 0")
        A("v_cndmask_b32 v28, v29, v30, vcc", "lane 16 / 48: offset 0 (ones)")
    A(f"v_add_u32 v28, {LDS_ONES - 512}, v28")
    A("v_bfe_u32 v29, v0, 4, 1")
    A("v_cmp_eq_u32 vcc, 0, v29")
    A("v_mov_b32 v30, 0")
    A("v_mov_b32 v31, 2048")
    A("v_mov_b32 v97, v3", "real address (prologue / fallback)")
    A("v_cndmask_b32 v3, v28, v3, vcc")
    A("v_cndmask_b32 v96, v30, v31, vcc", "per-iteration increment (0 for ones lanes)")
    for r in range(16): A(f"v_mov_b32 v{OA+r}, 0")
    for r in range(16): A(f"v_mov_b32 v{OB+r}, 0")
    for r in range(4, 8): A(f"v_mov_b32 v{P+r}, 0")
    if opts.get("zrows", 1):
        A("v_and_b32 v29, 31, v0")
        A("v_cmp_eq_u32 vcc, 16, v29")
        A("v_mov_b32 v30, 0x3f803f80")
        A("v_mov_b32 v31, 0")
        A("v_cndmask_b32 v98, v31, v30, vcc", "ones in the row-16 lanes, zeros in rows 17..31")
    else:
        A("v_mov_b32 v98, 0x3f803f80")
    for r in range(4): A(f"v_mov_b32 v{V0+r}, v98")
    for r in range(4): A(f"v_mov_b32 v{V1+r}, 0")
    A("s_mov_b32 s46, 0x0000ffff")
    A("s_mov_b32 s47, 0x0000ffff", "exec mask of the real V lanes")
    A("s_mov_b32 s48, 0", "iteration")
    if opts.get("pprio"): A("s_setprio 3")
    A("s_barrier", "#0: chunk 0 of K/V landed")
    ST(1)
    A(f"ds_read_b128 {vr(KF,4)}, v2")
    A("s_mov_b64 exec, s[46:47]")
    A(f"ds_read_b128 {vr(V0,4)}, v97")
    A("s_mov_b64 exec, -1")
    if F12:
        A(f"v_mov_b32 v99, {LDS_CNT + 60}")
        A("ds_read_b32 v100, v99")
    A("s_waitcnt vmcnt(0) lgkmcnt(0)")
    if F12: A("v_readfirstlane_b32 s66, v100", "epoch")
    A(f"v_mfma_f32_32x32x16_bf16 {vr(SA,16)}, {vr(KF,4)}, {vr(QA,4)}, 0")
    A("s_nop 15")
    A.raw(".p2align 6")
    A.label("K2_LOOP")
    def substep(S, mid1, mid2, mid3):
        e = lambda j: A(f"v_exp_f32 v{S+j}, v{S+j}")
        cv = lambda j: A(f"v_cvt_pk_bf16_f32 v{P+j}, v{S+2*j}, v{S+2*j+1}")
        mid1()
        e(0); e(1); e(2); e(3); cv(0); cv(1)
        mid2()
        e(4); e(5); e(6); e(7); cv(2); cv(3); e(8); e(9)
        mid3()
        e(10); e(11); cv(4); e(12); e(13); cv(5); e(14); e(15); cv(6); cv(7)
    mf = lambda d, a, b, c: A(f"v_mfma_f32_32x32x16_bf16 {vr(d,16)}, {vr(a,4)}, {vr(b,4)}, {c}")
    for u in range(2):
        if u == 1:
            A("s_and_b32 s52, s48, 13")
            A("s_cmp_eq_u32 s52, 0", "iterations 0 and 2")
            A("s_cbranch_scc0 K2_NOBAR")
            if F12:
                A.c("later K/V chunks: wait for the loaders' LDS counter (iteration 0: chunk 1, iteration 2: chunk 2)")
                A("s_lshl_b32 s52, s48, 1")
                A(f"s_add_u32 s52, s52, {LDS_CNT + 48}")
                A("v_mov_b32 v99, s52")
                A.label("K2_CSPIN")
                A("ds_read_b32 v100, v99")
                A("s_waitcnt lgkmcnt(0)")
                A("v_readfirstlane_b32 s52, v100")
                A("s_cmp_lt_u32 s52, 4")
                A("s_cbranch_scc1 K2_CSPIN")
            else:
                A("s_barrier", "#1 / #2: later K/V chunks landed")
            A.label("K2_NOBAR")
        def a1():
            mf(SB, KF, QB, "0")
            A(f"ds_read_b128 {vr(KF,4)}, v2 offset:{(u+1)*1024}")
        def a2():
            mf(OB, V1, P+4, vr(OB,16))
            A(f"ds_read_b128 {vr(V1,4)}, v3 offset:{u*1024+512}")
        def a3():
            A("s_waitcnt lgkmcnt(2)")
            mf(OA, V0, P, vr(OA,16))
        substep(SA, a1, a2, a3)
        def b1():
            A("s_waitcnt lgkmcnt(0)")
            mf(SA, KF, QA, "0")
        def b2():
            mf(OA, V1, P+4, vr(OA,16))
        def b3():
            mf(OB, V0, P, vr(OB,16))
            A(f"ds_read_b128 {vr(V0,4)}, v3 offset:{(u+1)*1024}")
        substep(SB, b1, b2, b3)
    A("v_add_u32 v2, 0x800, v2")
    A("v_add_u32 v3, v96, v3")
    if opts.get("itst"):
        A("s_memtime s[70:71]")
        A("s_lshl_b32 s72, s2, 4")
        A("s_add_u32 s72, s72, s36")
        A("s_lshl_b32 s72, s72, 6")
        A("s_lshl_b32 s73, s48, 2")
        A("s_add_u32 s72, s72, s73")
        A(f"s_add_u32 s72, s72, {hex(WS_STAMP + 3*0x40000)}")
        A("s_waitcnt lgkmcnt(0)")
        A("v_mov_b32 v99, s70")
        A("v_mov_b32 v100, 0")
        A("s_mov_b64 exec, 1")
        A("buffer_store_dword v99, v100, s[4:7], s72 offen")
        A("s_mov_b64 exec, -1")
    A("s_add_u32 s48, s48, 1")
    if opts.get("pprio"):
        A.c("a wave that is behind gets the higher priority: 3,2,1,0 for iterations 0-3, 4-7, 8-11, 12-15")
        for lv, itn in ((2, 4), (1, 8), (0, 12)):
            lab = A.newlabel("K2_PR")
            A(f"s_cmp_eq_u32 s48, {itn}")
            A(f"s_cbranch_scc0 {lab}")
            A(f"s_setprio {lv}")
            A.label(lab)
    A("s_cmp_lt_u32 s48, 16")
    A("s_cbranch_scc1 K2_LOOP")
    ST(2)
    mf(OB, V1, P+4, vr(OB,16))
    A("s_waitcnt lgkmcnt(0)")
    A("s_nop 15")
    A.c("combine the two key halves: wave kh keeps query tile (a if kh==0 else b) and hands the other one to its partner (wave ^ 4)")
    A("s_cmp_eq_u32 s49, 0")
    A("s_cbranch_scc1 K2_KEEPA")
    for r in range(9):
        A(f"v_mov_b32 v{32+r}, v{OA+r}", "give a")
        A(f"v_mov_b32 v{OA+r}, v{OB+r}", "keep b")
    A("s_add_u32 s43, s43, 1024", "own tile = b")
    A("s_branch K2_XCH")
    A.label("K2_KEEPA")
    for r in range(9): A(f"v_mov_b32 v{32+r}, v{OB+r}", "give b")
    A.label("K2_XCH")
    O = OA
    A("s_mul_i32 s50, s36, 2304")
    A(f"s_add_u32 s50, s50, {LDS_X}")
    A("v_lshlrev_b32 v28, 2, v0")
    A("v_add_u32 v29, s50, v28")
    for r in range(9): A(f"ds_write_b32 v29, v{32+r} offset:{r*256}")
    A("s_lshl_b32 s51, s36, 2")
    A(f"s_add_u32 s51, s51, {LDS_CNT + 16}")
    A("v_mov_b32 v30, s51")
    A("v_mov_b32 v31, 1")
    A("s_waitcnt lgkmcnt(0)")
    A("ds_write_b32 v30, v31", "flag: my hand-over is in LDS")
    A("s_xor_b32 s52, s36, 4", "partner")
    A("s_mul_i32 s50, s52, 2304")
    A(f"s_add_u32 s50, s50, {LDS_X}")
    A("v_add_u32 v29, s50, v28")
    A("s_lshl_b32 s51, s52, 2")
    A(f"s_add_u32 s51, s51, {LDS_CNT + 16}")
    A("v_mov_b32 v30, s51")
    A.label("K2_XSPIN")
    A("ds_read_b32 v31, v30")
    A("s_waitcnt lgkmcnt(0)")
    A("v_readfirstlane_b32 s52, v31")
    A("s_cmp_eq_u32 s52, 1")
    A("s_cbranch_scc1 K2_XGO")
    A("s_sleep 1")
    A("s_branch K2_XSPIN")
    A.label("K2_XGO")
    for r in range(9): A(f"ds_read_b32 v{32+r}, v29 offset:{r*256}")
    A("s_waitcnt lgkmcnt(0)")
    for r in range(9): A(f"v_add_f32 v{O+r}, v{O+r}, v{32+r}")
    A.c("row 16 of O^T holds the row sum l (ones rows of the V operand)")
    def normalize():
        if opts.get("zrows", 1):
            A(f"v_mov_b32 v29, v{O+8}")
            A("s_nop 1")
            A(f"v_permlane32_swap_b32 v29, v{O+8}", "l lives in lanes 0..31 only: copy it to the upper half")
            A("s_nop 1")
            A(f"v_mov_b32 v{O+8}, v29")
        A(f"v_rcp_f32 v28, v{O+8}")
        A("s_nop 0")
        for r in range(8): A(f"v_mul_f32 v{O+r}, v{O+r}, v28")
    normalize()
    A(f"v_mov_b32 v29, v{O+8}", "l")
    A.c("run-time guard: softmax is shift invariant, so the unshifted exponentials give the same result as long as l stays far")
    A.c("from the fp32 range limits and O is finite; otherwise this tile is recomputed below with the true row max subtracted")
    A(f"v_add_f32 v30, abs(v{O}), abs(v{O+1})")
    for r in range(2, 8): A(f"v_add_f32 v30, v30, abs(v{O+r})")
    A(f"v_cmp_nle_f32 vcc, {hex(f2u(2.0**-60))}, v29", "!(2^-60 <= l)")
    A(f"s_mov_b32 s50, {hex(f2u(2.0**60))}")
    A(f"v_cmp_nle_f32 s[52:53], v29, s50", "!(l <= 2^60)")
    A(f"s_mov_b32 s50, {hex(f2u(2.0**126))}")
    A(f"v_cmp_nle_f32 s[54:55], v30, s50", "O not finite")
    A("s_nop 4")
    A("s_or_b64 vcc, vcc, s[52:53]")
    A("s_or_b64 vcc, vcc, s[54:55]")
    if opts.get("force_fallback"):
        A("s_mov_b64 vcc, -1")
    A("s_cmp_lg_u64 vcc, 0")
    A("s_cbranch_scc1 K2_FALLBACK")
    A.label("K2_STORE")
    for j in range(4): A(f"v_cvt_pk_bf16_f32 v{P+j}, v{O+2*j}, v{O+2*j+1}")
    A(f"s_add_u32 s45, s43, {hex(WS_O)}")
    SC = " sc1" if opts.get("fuse23") else ""
    A(f"buffer_store_dwordx4 {vr(P,4)}, v1, s[4:7], s45 offen{SC}")
    ST(3)
    if opts.get("clk"): clk_stamp(A, 14)
    if F12:
        A.c("publish this wave's O' tile: flag word [head][tile>>1][tile&1]")
        A("s_lshl_b32 s50, s40, 5")
        A("s_lshl_b32 s51, s41, 2")
        A("s_add_u32 s50, s50, s51")
        A("s_and_b32 s51, s36, 3")
        A("s_add_u32 s50, s50, s51", "head*32 + 4qb + qp")
        A("s_lshl_b32 s50, s50, 7")
        A("s_lshl_b32 s51, s49, 2")
        A("s_add_u32 s50, s50, s51")
        A(f"s_add_u32 s50, s50, {hex(WS_F2O)}")
        A("v_mov_b32 v28, s66")
        A("v_mov_b32 v29, 0")
        A("s_waitcnt vmcnt(0)", "the tile has reached memory")
        A("s_mov_b64 exec, 1")
        A("buffer_store_dword v28, v29, s[4:7], s50 offen sc1")
        A("s_mov_b64 exec, -1")
        A("s_branch K2_PHASE3B")
    elif opts.get("fuse23"):
        A("s_branch K2_PHASE3")
    else:
        ST.dump(4)
        if opts.get("rt"): A("s_waitcnt vmcnt(0)")
        rt_stamp(A, 1, 1, opts.get("rt"))
        A("s_endpgm")

    A.label("K2_FALLBACK")
    Q = QA
    A("s_cmp_eq_u32 s49, 0")
    A("s_cbranch_scc1 K2_FB0")
    for r in range(4): A(f"v_mov_b32 v{QA+r}, v{QB+r}")
    A.label("K2_FB0")
    A("v_mov_b32 v2, v1")
    A("v_mov_b32 v29, 0xff800000", "running max = -inf")
    A("s_mov_b32 s48, 0")
    A.label("K2_FB1")
    A(f"ds_read_b128 {vr(KF,4)}, v2")
    A("s_waitcnt lgkmcnt(0)")
    A(f"v_mfma_f32_32x32x16_bf16 {vr(SA,16)}, {vr(KF,4)}, {vr(Q,4)}, 0")
    A("s_nop 15")
    for r in range(0, 16, 2): A(f"v_max3_f32 v29, v{SA+r}, v{SA+r+1}, v29")
    A("v_add_u32 v2, 1024, v2")
    A("s_add_u32 s48, s48, 1")
    A("s_cmp_lt_u32 s48, 64")
    A("s_cbranch_scc1 K2_FB1")
    A("v_mov_b32 v30, v29")
    A("s_nop 1")
    A("v_permlane32_swap_b32 v30, v29")
    A("s_nop 1")
    A("v_max_f32 v29, v29, v30", "row max over both lane halves")
    for r in range(16): A(f"v_sub_f32 v{CN+r}, 0, v29")
    for r in range(16): A(f"v_mov_b32 v{O+r}, 0")
    for r in range(8): A(f"v_mov_b32 v{V0+r}, v98")
    A("v_mov_b32 v2, v1")
    A("s_lshl_b32 s50, s49, 15")
    A("v_subrev_u32 v3, s50, v97", "V address of tile 0")
    A("s_mov_b32 s48, 0")
    A.label("K2_FB2")
    A(f"ds_read_b128 {vr(KF,4)}, v2")
    A("s_mov_b64 exec, s[46:47]")
    A(f"ds_read_b128 {vr(V0,4)}, v3")
    A(f"ds_read_b128 {vr(V1,4)}, v3 offset:512")
    A("s_mov_b64 exec, -1")
    A("s_waitcnt lgkmcnt(0)")
    A(f"v_mfma_f32_32x32x16_bf16 {vr(SA,16)}, {vr(KF,4)}, {vr(Q,4)}, {vr(CN,16)}")
    A("s_nop 15")
    for r in range(16): A(f"v_exp_f32 v{SA+r}, v{SA+r}")
    A("s_nop 0")
    for j in range(8): A(f"v_cvt_pk_bf16_f32 v{P+j}, v{SA+2*j}, v{SA+2*j+1}")
    A("s_nop 1")
    A(f"v_mfma_f32_32x32x16_bf16 {vr(O,16)}, {vr(V0,4)}, {vr(P,4)}, {vr(O,16)}")
    A(f"v_mfma_f32_32x32x16_bf16 {vr(O,16)}, {vr(V1,4)}, {vr(P+4,4)}, {vr(O,16)}")
    A("v_add_u32 v2, 1024, v2")
    A("v_add_u32 v3, 1024, v3")
    A("s_add_u32 s48, s48, 1")
    A("s_cmp_lt_u32 s48, 64")
    A("s_cbranch_scc1 K2_FB2")
    A("s_nop 15")
    normalize()
    A("s_branch K2_STORE")

    A.label("K2_FNET")
    if opts.get("fprio", 2): A(f"s_setprio {opts.get('fprio', 2)}")
    A("s_sub_u32 s42, s36, 8", "j")
    if opts.get("fuse23") and not F12:
        srd(A, 12, 86, 0x100)
        A.c("launch epoch: workgroup 0 publishes a nonzero time stamp in d_debug[0] (zero at launch); hand-off flags in d_ws carry it")
        A("s_or_b32 s50, s2, s42")
        A("s_cmp_eq_u32 s50, 0")
        A("s_cbranch_scc0 K2_NOEPOCH")
        A("s_memrealtime s[50:51]")
        A("s_waitcnt lgkmcnt(0)")
        A("s_or_b32 s50, s50, 1")
        A("v_mov_b32 v2, s50")
        A("v_mov_b32 v3, 0")
        A("s_mov_b64 exec, 1")
        A("buffer_store_dword v2, v3, s[12:15], 0 offen sc1")
        A("s_mov_b64 exec, -1")
        A("s_waitcnt vmcnt(0)")
        A.label("K2_NOEPOCH")
    A("v_lshlrev_b32 v1, 4, v0", "lane*16")
    A("s_lshl_b32 s43, s40, 16", "head*65536")
    A(f"s_add_u32 s44, s43, {hex(WS_K)}")
    A(f"s_add_u32 s45, s43, {hex(WS_V)}")
    def dma(first_tile_sreg, n, lab):
        A("s_mov_b32 s48, 0")
        A.label(lab)
        A("s_mov_b32 m0, s46")
        A("s_add_u32 s47, s44, s46")
        A("buffer_load_dwordx4 v1, s[4:7], s47 offen lds")
        A(f"s_add_u32 m0, s46, {LDS_V}")
        A("s_add_u32 s47, s45, s46")
        A("buffer_load_dwordx4 v1, s[4:7], s47 offen lds")
        A("s_add_u32 s46, s46, 1024")
        A("s_add_u32 s48, s48, 1")
        A(f"s_cmp_lt_u32 s48, {n}")
        A(f"s_cbranch_scc1 {lab}")
    if F12:
        A.c("K/V through registers (device-scope loads): local tiles chunk 0: {0,1}; chunk 1: {2..5}; chunk 2: {6..31}; wave j: half = j>>1")
        A("s_lshr_b32 s52, s42, 1")
        A("s_lshl_b32 s52, s52, 15", "half*32768")
        A("s_and_b32 s53, s42, 1")
        def kv_load(reg, soff_reg, add):
            A(f"s_add_u32 s47, s44, s{soff_reg}")
            if add: A(f"s_add_u32 s47, s47, {add}")
            A(f"buffer_load_dwordx4 {vr(reg,4)}, v1, s[4:7], s47 offen sc1")
            A(f"s_add_u32 s47, s45, s{soff_reg}")
            if add: A(f"s_add_u32 s47, s47, {add}")
            A(f"buffer_load_dwordx4 {vr(reg+4,4)}, v1, s[4:7], s47 offen sc1")
        def kv_write(reg, areg, off):
            A(f"ds_write_b128 v{areg}, {vr(reg,4)} offset:{off}")
            A(f"ds_write_b128 v{areg+1}, {vr(reg+4,4)} offset:{off}")
        A("s_lshl_b32 s46, s53, 10")
        A("s_add_u32 s46, s46, s52", "chunk 0 tile offset")
        A("s_lshl_b32 s54, s53, 11")
        A("s_add_u32 s54, s54, s52")
        A("s_add_u32 s54, s54, 2048", "chunk 1 tile offset")
        A("s_mul_i32 s55, s53, 13312")
        A("s_add_u32 s55, s55, s52")
        A("s_add_u32 s55, s55, 6144", "chunk 2 tile offset")
        kv_load(8, 46, 0)
        kv_load(16, 54, 0); kv_load(24, 54, 1024)
        A("v_add_u32 v32, s46, v1"); A(f"v_add_u32 v33, {LDS_V}, v32")
        A("v_add_u32 v34, s54, v1"); A(f"v_add_u32 v35, {LDS_V}, v34")
        A("v_add_u32 v36, s55, v1"); A(f"v_add_u32 v37, {LDS_V}, v36")
        A.c("ones strip and flags")
        if opts.get("zrows", 1):
            A("v_and_b32 v5, 15, v0")
            A("v_cmp_eq_u32 vcc, 0, v5")
            A("v_mov_b32 v6, 0x3f803f80")
            A("v_mov_b32 v7, 0")
            A("v_cndmask_b32 v4, v7, v6, vcc")
        else:
            A("v_mov_b32 v4, 0x3f803f80")
        A("v_mov_b32 v5, v4")
        A("v_mov_b32 v6, v4")
        A("v_mov_b32 v7, v4")
        A(f"v_add_u32 v2, {LDS_ONES}, v1")
        A("ds_write_b128 v2, v[4:7]")
        A("s_mov_b32 exec_lo, -1")
        A("s_mov_b32 exec_hi, 0xff", "40 lanes: 640 B")
        A("ds_write_b128 v2, v[4:7] offset:1024")
        A("s_mov_b64 exec, -1")
        A("s_cmp_eq_u32 s36, 8")
        A("s_cbranch_scc0 K2_NOEPL")
        A("s_mov_b64 exec, 0xf")
        A("v_mov_b32 v4, 0")
        A("v_mov_b32 v5, 0")
        A("v_mov_b32 v6, 0")
        A("v_mov_b32 v7, 0")
        A(f"v_add_u32 v2, {LDS_CNT}, v1")
        A("ds_write_b128 v2, v[4:7]")
        A("s_mov_b64 exec, -1")
        A("s_waitcnt lgkmcnt(0)")
        A(f"v_mov_b32 v2, {LDS_CNT + 60}")
        A("v_mov_b32 v4, s65")
        A("ds_write_b32 v2, v4", "epoch for the attention waves")
        A.label("K2_NOEPL")
        A("s_waitcnt vmcnt(4)")
        kv_write(8, 32, 0)
        A("s_waitcnt lgkmcnt(0)")
        A("s_barrier", "#0")
        ST(1)
        A("s_waitcnt vmcnt(0)")
        kv_write(16, 34, 0); kv_write(24, 34, 1024)
        A(f"v_mov_b32 v4, {LDS_CNT + 48}")
        A("v_mov_b32 v5, 1")
        A("s_waitcnt lgkmcnt(0)")
        A("s_mov_b64 exec, 1")
        A("ds_add_u32 v4, v5", "chunk 1 in LDS")
        A("s_mov_b64 exec, -1")
        for t in range(13): kv_load(40 + 8*t, 55, t*1024)
        for t in range(13):
            A(f"s_waitcnt vmcnt({24 - 2*t})")
            kv_write(40 + 8*t, 36, t*1024)
        A("s_waitcnt lgkmcnt(0)")
        A("s_mov_b64 exec, 1")
        A("ds_add_u32 v4, v5 offset:4", "chunk 2 in LDS")
        A("s_mov_b64 exec, -1")
        ST(2)
    else:
        A.c("local tiles (per key half): chunk 0: {0,1}; chunk 1: {2..5}; chunk 2: {6..31}.  wave j: half = j>>1")
        A("s_lshr_b32 s52, s42, 1")
        A("s_lshl_b32 s52, s52, 15", "half*32768")
        A("s_and_b32 s53, s42, 1")
        A("s_lshl_b32 s46, s53, 10")
        A("s_add_u32 s46, s46, s52")
        dma(46, 1, "K2_DMA0")
        A("s_lshl_b32 s46, s53, 11")
        A("s_add_u32 s46, s46, s52")
        A("s_add_u32 s46, s46, 2048")
        dma(46, 2, "K2_DMA1")
        A.c("ones strip and flags")
        if opts.get("zrows", 1):
            A("v_and_b32 v5, 15, v0")
            A("v_cmp_eq_u32 vcc, 0, v5")
            A("v_mov_b32 v6, 0x3f803f80")
            A("v_mov_b32 v7, 0")
            A("v_cndmask_b32 v4, v7, v6, vcc")
        else:
            A("v_mov_b32 v4, 0x3f803f80")
        A("v_mov_b32 v5, v4")
        A("v_mov_b32 v6, v4")
        A("v_mov_b32 v7, v4")
        A(f"v_add_u32 v2, {LDS_ONES}, v1")
        A("ds_write_b128 v2, v[4:7]")
        A("s_mov_b32 exec_lo, -1")
        A("s_mov_b32 exec_hi, 0xff", "40 lanes: 640 B")
        A("ds_write_b128 v2, v[4:7] offset:1024")
        A("s_mov_b64 exec, 0xf")
        A("v_mov_b32 v4, 0")
        A("v_mov_b32 v5, 0")
        A("v_mov_b32 v6, 0")
        A("v_mov_b32 v7, 0")
        A(f"v_add_u32 v2, {LDS_CNT}, v1")
        A("ds_write_b128 v2, v[4:7]")
        A("s_mov_b64 exec, -1")
        A("s_waitcnt vmcnt(4) lgkmcnt(0)")
        A("s_barrier", "#0")
        ST(1)
        A("s_mul_i32 s46, s53, 13312")
        A("s_add_u32 s46, s46, s52")
        A("s_add_u32 s46, s46, 6144")
        dma(46, 3, "K2_DMA2a")
        A("s_waitcnt vmcnt(6)")
        A("s_barrier", "#1")
        dma(46, 10, "K2_DMA2")
        ST(2)

    FR = 8
    E = 136
    NS = 16
    def job_setup(ti, ej, first):
        A(f"s_lshl_b32 s56, s{ti}, 5")
        A("v_and_b32 v2, 31, v0")
        A("v_add_u32 v3, s56, v2", "t = 32 i + (l&31)")
        A("v_lshlrev_b32 v2, 12, v3")
        A("v_lshrrev_b32 v4, 5, v0")
        A("v_lshl_add_u32 v2, v4, 4, v2", "t*4096 + h*16")
        if first:
            A.c("wave j: chain = j>>1 (0: E = Cr x A', 1: G = Ci x B'), K half = j&1")
            A("s_and_b32 s57, s42, 1")
            A("s_lshl_b32 s57, s57, 5", "ks0 = 32*(j&1)")
            A(f"s_mov_b32 s58, {hex(WS_BP)}")
            A("s_cmp_lt_u32 s42, 2")
            A("s_cselect_b32 s8, s24, s26")
            A("s_cselect_b32 s9, s25, s27")
            A(f"s_cselect_b32 s58, {hex(WS_AP)}, s58")
        else:
            A("s_lshl_b32 s57, s42, 4", "ks0 = 16 j")
            A("s_mov_b32 s8, s24")
            A("s_mov_b32 s9, s25")
            A(f"s_mov_b32 s58, {hex(WS_AP)}")
        A("s_and_b32 s9, s9, 0xffff")
        A("s_mov_b32 s10, 0x800000")
        A("s_mov_b32 s11, 0x20000")
        A(f"s_lshl_b32 s56, s{ej}, 16", "eblk*65536")
        A("s_add_u32 s60, s56, s58")
        A("s_lshl_b32 s56, s57, 10")
        A("s_add_u32 s60, s60, s56", "fragment base + ks0*1024")
        A("s_lshl_b32 s62, s57, 5", "ks0*32")
    def issue(slot, n):
        b = FR + 8*slot
        A(f"s_add_u32 s58, s60, {n*1024}")
        A(f"s_add_u32 s59, s62, {n*32}")
        A(f"buffer_load_dwordx4 {vr(b,4)}, v1, s[4:7], s58 offen{SC1}")
        A(f"buffer_load_dwordx4 {vr(b+4,4)}, v2, s[8:11], s59 offen")
    def job_run(nsteps, jobidx, ej, tag):
        hasG = nsteps == 32
        for r in range(16): A(f"v_mov_b32 v{E+r}, 0")
        for n in range(nsteps):
            slot = n % NS
            b = FR + 8*slot
            rem_first = nsteps - NS
            cnt = 2*(NS-1) if n < rem_first else 2*(nsteps - 1 - n)
            A(f"s_waitcnt vmcnt({cnt})")
            A(f"v_mfma_f32_32x32x16_bf16 {vr(E,16)}, {vr(b,4)}, {vr(b+4,4)}, {vr(E,16)}")
            if n < rem_first: issue(slot, n + NS)
        A("s_nop 15")
        base = LDS_F
        A("s_cmp_eq_u32 s42, 0")
        A(f"s_cbranch_scc1 K2_COMB{tag}")
        if jobidx == 1:
            A.c("the partial-tile area is shared with job A: wait until wave 0 has read job A's partials")
            A(f"v_mov_b32 v6, {LDS_CNT + 8}")
            A.label("K2_SPINC")
            A("ds_read_b32 v7, v6")
            A("s_waitcnt lgkmcnt(0)")
            A("v_readfirstlane_b32 s57, v7")
            A("s_cmp_eq_u32 s57, 1")
            A("s_cbranch_scc1 K2_GOC")
            A("s_sleep 4")
            A("s_branch K2_SPINC")
            A.label("K2_GOC")
        A.c("waves 1..3: publish the partial tile in LDS")
        A("s_lshl_b32 s56, s42, 12")
        A(f"s_add_u32 s56, s56, {base - 4096}")
        A("v_add_u32 v5, s56, v1")
        for m in range(4): A(f"ds_write_b128 v5, {vr(E+4*m,4)} offset:{m*1024}")
        A(f"v_mov_b32 v6, {LDS_CNT + 4*jobidx}")
        A("v_mov_b32 v7, 1")
        A("s_waitcnt lgkmcnt(0)")
        A("s_mov_b64 exec, 1")
        A("ds_add_u32 v6, v7")
        A("s_waitcnt lgkmcnt(0)")
        A("s_mov_b64 exec, -1")
        A(f"s_branch K2_JOBDONE{tag}")
        A.label(f"K2_COMB{tag}")
        A.c("wave 0: wait for the three partials; E += (-1)^t A1024[e];  Ym = E - G, Yp = E + G")
        A("v_lshrrev_b32 v4, 5, v0")
        A("v_lshlrev_b32 v4, 4, v4", "4h*4 bytes")
        A(f"s_lshl_b32 s56, s{ej}, 7", "e0*4")
        A(f"s_add_u32 s57, s56, {hex(WS_A1024)}")
        for m in range(4):
            A(f"buffer_load_dwordx4 {vr(FR+4*m,4)}, v4, s[4:7], s57 offen offset:{m*32}{SC1}")
        A(f"v_mov_b32 v6, {LDS_CNT + 4*jobidx}")
        A.label(f"K2_SPIN{tag}")
        A("ds_read_b32 v7, v6")
        A("s_waitcnt lgkmcnt(0)")
        A("v_readfirstlane_b32 s57, v7")
        A("s_cmp_eq_u32 s57, 3")
        A(f"s_cbranch_scc1 K2_GO{tag}")
        A("s_sleep 4")
        A(f"s_branch K2_SPIN{tag}")
        A.label(f"K2_GO{tag}")
        A(f"v_add_u32 v5, {base}, v1")
        for p in range(3):
            for m in range(4):
                A(f"ds_read_b128 {vr(FR+16+16*p+4*m,4)}, v5 offset:{p*4096 + m*1024}")
        A("v_and_b32 v6, 1, v0")
        A("v_lshlrev_b32 v6, 31, v6")
        A("v_or_b32 v6, 1.0, v6", "(-1)^t")
        A(f"s_movk_i32 s58, {YSB}")
        A("v_mul_lo_u32 v7, v3, s58")
        A("v_add_u32 v7, v7, v4", "t*YSB + 4h*4")
        A("s_waitcnt vmcnt(0) lgkmcnt(0)")
        if jobidx == 0:
            A(f"v_mov_b32 v5, {LDS_CNT + 8}")
            A("v_mov_b32 v4, 1")
            A("ds_write_b32 v5, v4", "job A partials consumed")
        P1, P2, P3 = FR+16, FR+32, FR+48
        for r in range(16): A(f"v_fmac_f32 v{E+r}, v6, v{FR+r}")
        for r in range(16): A(f"v_add_f32 v{E+r}, v{E+r}, v{P1+r}")
        for r in range(16): A(f"v_add_f32 v{P2+r}, v{P2+r}, v{P3+r}")
        if hasG:
            for r in range(16):
                A(f"v_sub_f32 v{P1+r}, v{E+r}, v{P2+r}")
                A(f"v_add_f32 v{P3+r}, v{E+r}, v{P2+r}")
            ym, yp = P1, P3
        else:
            for r in range(16): A(f"v_add_f32 v{E+r}, v{E+r}, v{P2+r}")
            ym, yp = E, E
        if opts.get("fuse23"):
            A.c("Y tiles: [(i*9 + j)*2 + arr][m][lane][4] : every store instruction writes 1 KB of whole lines")
            ti = 40 if jobidx == 0 else 63
            A(f"s_mul_i32 s57, s{ti}, 9")
            A(f"s_add_u32 s57, s57, s{ej}")
            A("s_lshl_b32 s57, s57, 13")
            A(f"s_add_u32 s57, s57, {hex(WS_Y)}")
            A("s_add_u32 s58, s57, 4096")
            for m in range(4):
                A(f"buffer_store_dwordx4 {vr(ym+4*m,4)}, v1, s[4:7], s57 offen offset:{m*1024} sc1")
                A(f"buffer_store_dwordx4 {vr(yp+4*m,4)}, v1, s[4:7], s58 offen offset:{m*1024} sc1")
        else:
            A(f"s_add_u32 s57, s56, {hex(WS_YM)}")
            A(f"s_add_u32 s58, s56, {hex(WS_YP)}")
            for m in range(4):
                A(f"buffer_store_dwordx4 {vr(ym+4*m,4)}, v7, s[4:7], s57 offen offset:{m*32}")
                A(f"buffer_store_dwordx4 {vr(yp+4*m,4)}, v7, s[4:7], s58 offen offset:{m*32}")
        A.label(f"K2_JOBDONE{tag}")

    if opts.get("nofnet"):
        A("s_waitcnt vmcnt(0) lgkmcnt(0)")
        A("s_barrier")
        A("s_endpgm")
    job_setup(40, 41, True)
    if F12:
        A.c("FNet needs every phase-1 workgroup: wave 8 polls all 8 flag lines, then releases waves 9..11 through LDS")
        A(f"v_mov_b32 v4, {LDS_CNT + 56}")
        A("s_cmp_eq_u32 s36, 8")
        A("s_cbranch_scc0 K2_FWAIT")
        A("v_lshlrev_b32 v5, 7, v0")
        A(f"s_mov_b32 s52, {hex(WS_F1)}")
        A("s_mov_b32 s51, 0")
        A.label("K2_POLLF")
        for q in range(4):
            A(f"s_add_u32 s53, s52, {q*8192}")
            A(f"buffer_load_dword v{8+q}, v5, s[4:7], s53 offen sc1")
        A("s_waitcnt vmcnt(0)")
        for q in range(4): A(f"v_xor_b32 v{8+q}, s65, v{8+q}")
        A("v_or_b32 v8, v8, v9")
        A("v_or3_b32 v8, v8, v10, v11")
        A("v_cmp_ne_u32 vcc, 0, v8")
        A("s_add_u32 s51, s51, 1")
        A("s_nop 3")
        A("s_cmp_eq_u64 vcc, 0")
        A("s_cbranch_scc1 K2_FGO")
        A("s_sleep 8")
        A("s_cmp_lt_u32 s51, 0x40000")
        A("s_cbranch_scc1 K2_POLLF")
        A.label("K2_FGO")
        A("v_mov_b32 v5, 1")
        A("ds_write_b32 v4, v5")
        A("s_waitcnt lgkmcnt(0)")
        A("s_branch K2_FSTART")
        A.label("K2_FWAIT")
        A("ds_read_b32 v5, v4")
        A("s_waitcnt lgkmcnt(0)")
        A("v_readfirstlane_b32 s52, v5")
        A("s_cmp_eq_u32 s52, 1")
        A("s_cbranch_scc1 K2_FSTART")
        A("s_sleep 4")
        A("s_branch K2_FWAIT")
        A.label("K2_FSTART")
    else:
        A("s_waitcnt vmcnt(0)")
        A("s_barrier", "#2: all of K/V landed")
    ST(3)
    if opts.get("fuse23") and not F12:
        A.c("epoch (wave 8 only): d_debug[0] becomes nonzero once workgroup 0 has started")
        A("s_cmp_eq_u32 s36, 8")
        A("s_cbranch_scc0 K2_EPDONE")
        A("v_mov_b32 v5, 0")
        A("s_mov_b32 s51, 0")
        A.label("K2_EPSPIN")
        A("buffer_load_dword v6, v5, s[12:15], 0 offen sc1")
        A("s_waitcnt vmcnt(0)")
        A("v_readfirstlane_b32 s65, v6")
        A("s_add_u32 s51, s51, 1")
        A("s_cmp_lg_u32 s65, 0")
        A("s_cbranch_scc1 K2_EPDONE")
        A("s_sleep 8")
        A("s_cmp_lt_u32 s51, 0x40000")
        A("s_cbranch_scc1 K2_EPSPIN")
        A.label("K2_EPDONE")
    if opts.get("skipjobs"): A("s_branch K2_FEND")
    for n in range(NS): issue(n, n)
    job_run(32, 0, 41, "A")
    if not opts.get("pollst"): ST(4)
    if opts.get("fuse23"):
        A.c("L2 warm-up of this workgroup's Wo columns (512 rows x 128 B): 128 lines per wave")
        srd(A, 16, 28, 0x80000)
        A("s_lshl_b32 s56, s42, 7")
        A("v_add_u32 v5, s56, v0")
        A("v_lshlrev_b32 v5, 10, v5", "row*1024")
        A("s_lshl_b32 s57, s41, 7", "64nb*2")
        A("buffer_load_dword v6, v5, s[16:19], s57 offen")
        A("buffer_load_dword v6, v5, s[16:19], s57 offen offset:64")
        A("s_add_u32 s57, s57, 65536", "+64 rows")
        A("buffer_load_dword v7, v5, s[16:19], s57 offen")
        A("buffer_load_dword v7, v5, s[16:19], s57 offen offset:64")
    A.c("extra E-only jobs: row t=1024 (t-block 32) and column e=256 (e-block 8), on workgroups 0..40")
    A("s_cmp_ge_u32 s2, 41")
    A("s_cbranch_scc1 K2_FEND")
    A("s_sub_u32 s64, s2, 32")
    A("s_cmp_lt_u32 s2, 32")
    A("s_cselect_b32 s63, s2, 32", "t-block")
    A("s_cselect_b32 s64, 8, s64", "e-block")
    A("s_waitcnt vmcnt(0)")
    job_setup(63, 64, False)
    for n in range(NS): issue(n, n)
    job_run(16, 1, 64, "B")
    A.label("K2_FEND")
    if not opts.get("pollst"): ST(5)
    if not opts.get("fuse23"):
        ST.dump(6)
        A.label("K2_END")
        if opts.get("rt"): A("s_waitcnt vmcnt(0)")
        rt_stamp(A, 1, 1, opts.get("rt"))
        A("s_endpgm")
        return name, 168, (96 if (opts.get('stamps') or opts.get('rt') or opts.get('clk') or opts.get('itst')) else 66)
    gen_phase3(A, opts, ST)
    return name, 168, 96


def gen_phase3(A, opts, ST):
    A.label("K2_PHASE3")
    A("s_waitcnt vmcnt(0)", "this wave's phase-2 stores have reached memory")
    A("s_cmp_eq_u32 s36, 8")
    A("s_cbranch_scc0 K2_PHASE3B")
    A.c("wave 8 stored this workgroup's Y tiles: publish them (one 128-B line per workgroup)")
    A("s_lshl_b32 s52, s2, 7")
    A(f"s_add_u32 s52, s52, {hex(WS_F2)}")
    A("v_mov_b32 v2, s65")
    A("v_mov_b32 v3, 0")
    A("s_mov_b64 exec, 1")
    A("buffer_store_dword v2, v3, s[4:7], s52 offen sc1")
    A("s_mov_b64 exec, -1")
    A.label("K2_PHASE3B")
    A("s_barrier", "LDS is free")
    ST(6)
    A("s_cmp_lt_u32 s36, 8")
    A("s_cbranch_scc1 K3_COMPUTE")
    A("s_cmp_eq_u32 s36, 8")
    A("s_cbranch_scc0 K3_WO")
    A("s_mov_b32 s50, s65", "epoch")
    A.c("O' flags: lane = 2*head + parity, line (head*32 + qp)")
    A("v_lshrrev_b32 v4, 1, v0")
    A("v_lshlrev_b32 v4, 5, v4")
    A("v_add_u32 v4, s40, v4")
    A("v_lshlrev_b32 v4, 7, v4")
    A("v_and_b32 v5, 1, v0")
    A("v_lshl_add_u32 v4, v5, 2, v4")
    A.c("Y flags: lanes 0..7: job A producers (head = qp, qb = lane); 8: WG qp; 9..17 (qp==0): WGs 32..40; rest: as lane 8")
    A("s_and_b32 s54, s40, 3")
    A("s_lshr_b32 s55, s40, 2")
    A("v_lshlrev_b32 v6, 2, v0")
    A("v_add_u32 v6, s54, v6")
    A("v_lshlrev_b32 v6, 3, v6")
    A("v_add_u32 v6, s55, v6", "b = (qp>>2) + 8*((qp&3) + 4*lane)")
    A("v_add_u32 v7, 23, v0", "lane+23: 9..17 -> 32..40")
    A("v_cmp_lt_u32 vcc, 8, v0")
    A("s_cmp_eq_u32 s40, 0")
    A("s_cselect_b32 s55, 17, 8", "last lane that matters")
    A("v_cndmask_b32 v6, v6, v7, vcc")
    A("v_mov_b32 v8, s40")
    A("v_cmp_eq_u32 vcc, 8, v0")
    A("s_nop 1")
    A("v_cndmask_b32 v6, v6, v8, vcc")
    A("v_cmp_lt_u32 vcc, s55, v0")
    A("s_nop 1")
    A("v_cndmask_b32 v6, v6, v8, vcc")
    A("v_lshlrev_b32 v6, 7, v6")
    A(f"s_mov_b32 s52, {hex(WS_F2O)}")
    A(f"s_mov_b32 s53, {hex(WS_F2)}")
    A("s_mov_b32 s51, 0")
    A(f"s_sleep {opts.get('sleep2', opts.get('sleep0', 12))}")
    A.label("K3_POLL")
    A("buffer_load_dword v5, v4, s[4:7], s52 offen sc1")
    A("buffer_load_dword v7, v6, s[4:7], s53 offen sc1")
    A("s_waitcnt vmcnt(0)")
    A("v_xor_b32 v5, s50, v5")
    A("v_xor_b32 v7, s50, v7")
    A("v_or_b32 v5, v5, v7")
    A("v_cmp_ne_u32 vcc, 0, v5")
    A("s_add_u32 s51, s51, 1")
    A("s_nop 3")
    A("s_cmp_eq_u64 vcc, 0")
    A("s_cbranch_scc1 K3_JOIN")
    A(f"s_sleep {opts.get('sleep1', 6)}")
    A("s_cmp_lt_u32 s51, 0x40000", "bounded: never hang")
    A("s_cbranch_scc1 K3_POLL")
    A.label("K3_JOIN")
    if not opts.get("pollst"): ST(8)
    if opts.get("stamps"): A("s_mov_b32 s81, s51")
    A("s_barrier", "inputs published, Wo staged")
    ST(7)
    ST.dump(12)
    A.label("K2_END")
    if opts.get("rt"): A("s_waitcnt vmcnt(0)")
    rt_stamp(A, 1, 1, opts.get("rt"))
    A("s_endpgm")

    A.label("K3_WO")
    srd(A, 8, 28, 0x80000)
    A("s_sub_u32 s42, s36, 9", "first 8-row group")
    A("v_lshrrev_b32 v9, 3, v0", "a")
    A("v_and_b32 v11, 7, v0")
    A("v_bfe_u32 v13, v9, 1, 1")
    A("v_lshlrev_b32 v13, 2, v13")
    A("v_xor_b32 v13, v11, v13", "logical piece q")
    A("v_lshlrev_b32 v13, 4, v13")
    A("v_lshlrev_b32 v9, 10, v9", "a*1024")
    A("s_lshl_b32 s45, s41, 7", "64nb*2")
    A("v_add3_u32 v2, v9, v13, s45", "Wo voffset")
    A.label("K3_WOL")
    A("s_lshl_b32 m0, s42, 10")
    A("s_lshl_b32 s49, s42, 13")
    A("buffer_load_dwordx4 v2, s[8:11], s49 offen lds")
    A("s_add_u32 s42, s42, 3")
    A("s_cmp_lt_u32 s42, 64")
    A("s_cbranch_scc1 K3_WOL")
    A("s_waitcnt vmcnt(0)")
    A("s_branch K3_JOIN")

    A.label("K3_COMPUTE")
    srd(A, 8, 84, 0x200000)
    A("s_and_b32 s42, s36, 1", "qt (0 rows s, 1 mirrored rows)")
    A("s_lshr_b32 s44, s36, 1", "kq: heads 8kq..8kq+7; finalizes column tile nt = kq>>1, half = kq&1")
    A("s_lshr_b32 s43, s44, 1", "nt")
    A("s_and_b32 s45, s44, 1", "half")
    A("v_and_b32 v8, 31, v0", "i")
    A("v_and_b32 v9, 19, v8", "bits 4,1,0")
    A("v_bfe_u32 v10, v8, 2, 1")
    A("v_lshl_or_b32 v9, v10, 3, v9")
    A("v_bfe_u32 v10, v8, 3, 1")
    A("v_lshl_or_b32 v9, v10, 2, v9", "pi(i)")
    A("s_lshl_b32 s46, s40, 5")
    A("v_add_u32 v9, s46, v9", "s")
    A("v_sub_u32 v10, 0x800, v9")
    A("v_mov_b32 v11, 0x400")
    A("v_cmp_eq_u32 vcc, 0, v9")
    A("s_cmp_eq_u32 s42, 1")
    A("s_cselect_b64 s[46:47], -1, 0")
    A("v_cndmask_b32 v10, v10, v11, vcc", "mirror(s)")
    A("v_cndmask_b32 v11, v9, v11, vcc", "t' for mirrored rows")
    A("v_cndmask_b32 v12, v9, v10, s[46:47]", "row")
    A("v_cndmask_b32 v13, v9, v11, s[46:47]", "t'")
    A("v_lshrrev_b32 v14, 5, v0", "h")
    A("v_lshlrev_b32 v15, 2, v12")
    A(f"s_mov_b32 s48, {hex(WS_G)}")
    A("buffer_load_dword v55, v15, s[4:7], s48 offen" + (" sc1" if opts.get("fuse12") else ""), "g[row]")
    A.c("this lane finalizes 8 columns: n0 = 64nb + 32nt + 16h + 8half")
    A("s_lshl_b32 s49, s41, 6")
    A("s_lshl_b32 s50, s43, 5")
    A("s_add_u32 s49, s49, s50")
    A("s_lshl_b32 s50, s45, 3")
    A("s_add_u32 s49, s49, s50")
    A("v_lshlrev_b32 v6, 4, v14")
    A("v_add_u32 v6, s49, v6", "n0")
    A("v_lshlrev_b32 v4, 10, v12")
    A("v_lshl_add_u32 v4, v6, 1, v4", "v4 = output offset")
    A("s_lshr_b32 s50, s41, 2", "nb>=4: mirrored columns")
    A("s_xor_b32 s51, s50, s42", "arr = Yp when exactly one of row / column is mirrored")
    A("v_sub_u32 v7, 505, v6", "512 - n0 - 7")
    A("s_cmp_eq_u32 s50, 1")
    A("s_cselect_b64 s[54:55], -1, 0")
    A("v_cndmask_b32 v7, v6, v7, s[54:55]", "first e'")
    A("v_lshrrev_b32 v7, 2, v7", "q0 = piece of the first e'")
    A("v_lshrrev_b32 v15, 5, v13")
    A("v_mul_u32_u24 v15, 18, v15")
    A("v_add_u32 v15, s51, v15")
    A("v_lshlrev_b32 v15, 12, v15")
    A("v_and_b32 v5, 31, v13")
    A("v_lshl_add_u32 v15, v5, 4, v15")
    for p in range(3):
        A(f"v_add_u32 v5, {p}, v7", "piece q")
        A("v_lshrrev_b32 v10, 3, v5", "e-block")
        A("v_lshlrev_b32 v10, 13, v10")
        A("v_bfe_u32 v11, v5, 1, 2", "m")
        A("v_lshl_add_u32 v10, v11, 10, v10")
        A("v_and_b32 v11, 1, v5", "h of the piece")
        A("v_lshl_add_u32 v10, v11, 9, v10")
        A(f"v_add_u32 v{50+p}, v10, v15")
    A("v_lshlrev_b32 v2, 4, v0", "v2 = lane*16")
    A("v_bfe_u32 v10, v0, 2, 2", "r")
    A("v_lshl_add_u32 v11, v14, 2, v10", "4h + r")
    A("v_lshlrev_b32 v11, 7, v11", "*128")
    A("v_and_b32 v12, 1, v0")
    A("v_lshlrev_b32 v12, 1, v12", "2(c4&1)")
    A("v_bfe_u32 v13, v0, 4, 1", "g'")
    A("v_add_u32 v12, v12, v13", "logical piece (nt = 0)")
    A("v_bfe_u32 v13, v0, 3, 1", "(r>>1)&1")
    A("v_lshlrev_b32 v13, 2, v13")
    A("v_xor_b32 v12, v12, v13")
    A("v_lshlrev_b32 v12, 4, v12")
    A("v_bfe_u32 v13, v0, 1, 1", "c4>>1")
    A("v_lshlrev_b32 v13, 3, v13")
    A("v_add3_u32 v3, v11, v12, v13")
    A("s_lshl_b32 s48, s44, 14", "8 heads * 2048")
    A("v_add_u32 v3, s48, v3", "v3 = Wo^T fragment address, nt = 0")
    A("v_xor_b32 v1, 64, v3", "v1: nt = 1")
    ACC, Y, OR = 16, 56, 72
    WF = [[104, 108], [112, 116]]
    for r in range(32): A(f"v_mov_b32 v{ACC+r}, 0")
    A("s_lshl_b32 s56, s40, 11")
    A("s_lshl_b32 s57, s42, 10")
    A("s_add_u32 s56, s56, s57")
    A("s_lshl_b32 s57, s44, 19", "8 heads * 65536")
    A("s_add_u32 s56, s56, s57")
    A(f"s_add_u32 s56, s56, {hex(WS_O)}", "O' soffset")
    A(f"s_mov_b32 s52, {hex(WS_Y)}")
    A("s_barrier", "inputs published, Wo staged")
    ST(7)
    for n in range(8):
        A(f"s_add_u32 s57, s56, {n*65536}")
        A(f"buffer_load_dwordx4 {vr(OR+4*n,4)}, v2, s[4:7], s57 offen sc1")
    for p in range(3):
        A(f"buffer_load_dwordx4 {vr(Y+4*p,4)}, v{50+p}, s[4:7], s52 offen sc1")
    def wr(st, hd):
        for nt in range(2):
            a = "v3" if nt == 0 else "v1"
            A(f"ds_read_b64_tr_b16 {vr(WF[st][nt],2)}, {a} offset:{hd*2048}")
            A(f"ds_read_b64_tr_b16 {vr(WF[st][nt]+2,2)}, {a} offset:{hd*2048+1024}")
    wr(0, 0)
    for n in range(8):
        st = n & 1
        if n < 7:
            wr(1 - st, n + 1)
            lg = 4
        else:
            lg = 0
        A(f"s_waitcnt vmcnt({10 - n}) lgkmcnt({lg})")
        for nt in range(2):
            A(f"v_mfma_f32_32x32x16_bf16 {vr(ACC+16*nt,16)}, {vr(WF[st][nt],4)}, {vr(OR+4*n,4)}, {vr(ACC+16*nt,16)}")
    ST(8)
    A.c("exchange: slot [wave][part p = 2nt + half] = 2 KB; this wave owns part kq and reads it from the 3 other waves of its qt")
    A("s_lshl_b32 s48, s36, 13")
    A("s_add_u32 s48, s48, 0x10000")
    A("v_add_u32 v10, s48, v2", "own slots")
    A("s_nop 12")
    for p in range(4):
        A(f"ds_write_b128 v10, {vr(ACC+8*p,4)} offset:{p*2048}")
        A(f"ds_write_b128 v10, {vr(ACC+8*p+4,4)} offset:{p*2048+1024}")
    A.c("partners: waves qt + 2k (k = 0..3): address = 0x10000 + (qt + 2k)*8192 + kq*2048")
    A("s_lshl_b32 s48, s42, 13")
    A("s_lshl_b32 s49, s44, 11")
    A("s_add_u32 s48, s48, s49")
    A("s_add_u32 s48, s48, 0x10000")
    A("v_add_u32 v11, s48, v2")
    A("s_waitcnt lgkmcnt(0)")
    A("s_barrier")
    for k in range(4):
        A(f"ds_read_b128 {vr(72+8*k,4)}, v11 offset:{k*16384}")
        A(f"ds_read_b128 {vr(72+8*k+4,4)}, v11 offset:{k*16384+1024}")
    A("v_sub_f32 v54, 1.0, v55", "1-g")
    A("s_waitcnt vmcnt(0) lgkmcnt(0)")
    for r in range(8):
        A(f"v_add_f32 v{72+r}, v{72+r}, v{80+r}")
        A(f"v_add_f32 v{88+r}, v{88+r}, v{96+r}")
    for r in range(8): A(f"v_add_f32 v{72+r}, v{72+r}, v{88+r}")
    A("s_cmp_eq_u32 s50, 1")
    A("s_cbranch_scc1 K3_EPI_M")
    for r in range(8): A(f"v_mul_f32 v{40+r}, v54, v{Y+r}")
    A("s_branch K3_EPI2")
    A.label("K3_EPI_M")
    A.c("mirrored: first e' = 505 - n0 = 1 mod 4 -> loaded index 1..8 ; column r <-> index 8 - r")
    for r in range(8): A(f"v_mul_f32 v{40+r}, v54, v{Y+8-r}")
    A.label("K3_EPI2")
    for r in range(8): A(f"v_fmac_f32 v{40+r}, v55, v{72+r}")
    for j in range(4): A(f"v_cvt_pk_bf16_f32 v{48+j}, v{40+2*j}, v{40+2*j+1}")
    A("buffer_store_dwordx4 v[48:51], v4, s[8:11], 0 offen")
    ST(9)
    ST.dump(12)
    if opts.get("rt"): A("s_waitcnt vmcnt(0)")
    rt_stamp(A, 1, 1, opts.get("rt"))
    A("s_endpgm")
```

```python
from common import *

def gen_k1(A, opts=None):
    opts = opts or {}
    F = opts.get("fuse12")
    SC = " sc1" if F else ""
    name = NAME + "_kernel" if F else "k1_proj_kernel"
    kernel_header(A, name)
    A.c("phase 1: QKV projection + FNet hidden-DFT stage (folded over s) + gate")
    A("s_cmp_ge_u32 s2, 256")
    A("s_cbranch_scc1 " + ("K2_END" if F else "K1_END"))
    rt_stamp(A, 0, 0, opts.get("rt"))
    if F: A("s_load_dwordx2 s[86:87], s[0:1], 80", "debug")
    A("s_load_dwordx4 s[24:27], s[0:1], 0", "x, wqkv")
    A("s_load_dwordx4 s[28:31], s[0:1], 48", "hid_re, hid_im")
    A("s_load_dwordx2 s[32:33], s[0:1], 64", "gate_w")
    A("s_load_dwordx2 s[34:35], s[0:1], 88", "ws")
    A("v_lshrrev_b32 v1, 6, v0")
    A("v_and_b32 v0, 63, v0", "lane")
    A("v_readfirstlane_b32 s36, v1", "wave id")
    if opts.get("map1"):
        A("s_and_b32 s37, s2, 7", "hg = head group")
        A("s_lshr_b32 s38, s2, 3")
        A("s_and_b32 s39, s38, 1", "type: 0 = K|V tile, 1 = Q|FNet tile")
        A("s_lshr_b32 s40, s38, 1", "rb")
    else:
        A.c("workgroups with equal id&7 usually share an XCD (speed only): give them an 8 row-block x 4 column-pair patch")
        A("s_and_b32 s38, s2, 7")
        A("s_lshr_b32 s40, s2, 3", "r")
        A("s_and_b32 s39, s40, 1", "type: 0 = K|V tile, 1 = Q|FNet tile")
        A("s_and_b32 s37, s38, 6")
        A("s_bfe_u32 s41, s40, 0x10001")
        A("s_add_u32 s37, s37, s41", "hg = head group (0..7) = 2*(x>>1) + ((r>>1)&1)")
        A("s_lshr_b32 s40, s40, 2")
        A("s_and_b32 s38, s38, 1")
        A("s_lshl_b32 s38, s38, 3")
        A("s_add_u32 s40, s40, s38", "rb = 8*(x&1) + (r>>2)")
    A("s_waitcnt lgkmcnt(0)")
    srd(A, 16, 34, WS_SIZE)
    ST = opts.get("_ST") or Stamps(A, opts.get("stamps"), 0, 16, 36)
    STF = Stamps(A, opts.get("stamps") if (F and opts.get("p1st")) else False, 0, 16, 36)
    if F: ST = Stamps(A, False, 0, 16, 36)
    if F and opts.get("stamps"):
        A("s_memrealtime s[70:71]" if opts.get("stamps") == 2 else "s_memtime s[70:71]")
        A("s_waitcnt lgkmcnt(0)")
        A("s_mov_b32 s72, s70")
    ST(0)
    if F:
        A("s_cmp_ge_u32 s36, 8")
        A("s_cbranch_scc1 K1_LOADER")
        A("s_cmp_ge_u32 s36, 4")
        A("s_cbranch_scc0 K1_COMPUTE")
        A.c("waves 4..7 have no phase-1 GEMM work: they warm L2 (speed only) and take part in the stage barriers")
        if opts.get("pre", 0):
            A.c("the 32 workgroups that usually share an XCD each touch a distinct 1/32 of the lines that XCD needs, 4 K-chunks per round")
            srd(A, 4, 24, 0x200000)
            A("s_lshr_b32 s50, s2, 3", "r")
            A("s_and_b32 s51, s50, 3", "c")
            A("s_lshr_b32 s50, s50, 2", "i")
            A("s_sub_u32 s42, s36, 4", "k = chunk within the round")
            A.c("x: 32 rows: c<2 ? 64rb + 32c + l : 2048 - (64rb + 32(c-2) + l), l = lane>>1; both 64-B halves")
            A("s_and_b32 s52, s51, 1")
            A("s_lshl_b32 s52, s52, 5")
            A("s_lshl_b32 s53, s40, 6")
            A("s_add_u32 s52, s52, s53")
            A("v_lshrrev_b32 v8, 1, v0")
            A("v_add_u32 v8, s52, v8")
            A("v_sub_u32 v9, 0x800, v8")
            A("s_cmp_ge_u32 s51, 2")
            A("s_cselect_b64 s[54:55], -1, 0")
            A("v_cndmask_b32 v8, v8, v9, s[54:55]")
            A("v_lshlrev_b32 v8, 10, v8")
            A("v_and_b32 v9, 1, v0")
            A("v_lshl_add_u32 v8, v9, 6, v8", "x voffset")
            A("s_lshl_b32 s56, s42, 7", "chunk*128")
            A("buffer_load_dword v14, v8, s[4:7], s56 offen")
            A.c("W: 16 k-rows (16(i&3) + (lane>>1 & 15)) of group g = i>>2; lanes 0..31 only")
            A("s_cmp_lt_u32 s37, 4")
            A("s_cselect_b32 s44, s28, s30")
            A("s_cselect_b32 s45, s29, s31")
            A("s_lshl_b32 s47, s37, 7")
            A("s_and_b32 s49, s37, 3")
            A("s_lshl_b32 s49, s49, 7")
            A("s_add_u32 s53, s47, 2048")
            A("s_movk_i32 s57, 1024")
            A("s_cmp_eq_u32 s39, 0")
            A("s_cselect_b32 s8, s26, s44")
            A("s_cselect_b32 s9, s27, s45")
            A("s_cselect_b32 s46, 3072, s57", "stride1")
            A("s_cselect_b32 s48, s57, 0")
            A("s_cselect_b32 s49, s53, s49", "colbase1*2")
            A("s_add_u32 s48, s48, s47", "colbase0*2")
            A("s_cmp_lt_u32 s50, 4", "group 0 -> wqkv / colbase0 / stride 3072")
            A("s_cselect_b32 s8, s26, s8")
            A("s_cselect_b32 s9, s27, s9")
            A("s_cselect_b32 s46, 3072, s46")
            A("s_cselect_b32 s48, s48, s49")
            A("s_and_b32 s9, s9, 0xffff")
            A("s_cmp_eq_u32 s46, 1024")
            A("s_mov_b32 s10, 0x180000")
            A("s_cselect_b32 s10, 0x80000, s10")
            A("s_mov_b32 s11, 0x20000")
            A("s_and_b32 s52, s50, 3")
            A("s_lshl_b32 s52, s52, 4")
            A("s_lshl_b32 s53, s42, 6", "chunk*64")
            A("s_add_u32 s52, s52, s53")
            A("v_bfe_u32 v9, v0, 1, 4")
            A("v_add_u32 v9, s52, v9", "k row")
            A("v_mul_lo_u32 v9, v9, s46")
            A("v_and_b32 v10, 1, v0")
            A("v_lshl_add_u32 v9, v10, 6, v9")
            A("s_mov_b32 exec_hi, 0")
            A("buffer_load_dword v15, v9, s[8:11], s48 offen")
            A("s_mov_b64 exec, -1")
            A("s_waitcnt vmcnt(0)")
            A("s_barrier", "T: round 1 (chunks 0..3) has arrived")
            A("s_add_u32 s56, s56, 512")
            A("buffer_load_dword v14, v8, s[4:7], s56 offen")
            A("s_lshl_b32 s53, s46, 8", "256 rows * stride")
            A("s_add_u32 s48, s48, s53")
            A("s_mov_b32 exec_hi, 0")
            A("buffer_load_dword v15, v9, s[8:11], s48 offen")
            A("s_mov_b64 exec, -1")
        nb_pre = opts.get("ctouch", 0)
        if nb_pre:
            for b in range(nb_pre): A("s_barrier")
            A.c("L2 warm-up (speed only) of the sequence-DFT rows this workgroup's FNet jobs will read: rows t, columns 0..1023")
            A("s_load_dwordx4 s[44:47], s[0:1], 32", "seq_re, seq_im")
            A("s_and_b32 s50, s2, 7")
            A("s_lshr_b32 s51, s2, 3", "r")
            A("s_and_b32 s52, s51, 3")
            A("s_lshl_b32 s50, s50, 2")
            A("s_add_u32 s50, s50, s52", "i = t-block of job A")
            A("s_lshr_b32 s51, s51, 2", "j: 8 workgroups share the t-block, each touches 4 rows")
            A("s_lshl_b32 s50, s50, 5")
            A("s_lshl_b32 s51, s51, 2")
            A("s_add_u32 s50, s50, s51")
            A("s_sub_u32 s52, s36, 4")
            A("s_add_u32 s50, s50, s52", "row = 32i + 4j + k")
            A("s_lshl_b32 s50, s50, 12")
            A("v_and_b32 v8, 31, v0")
            A("v_lshlrev_b32 v8, 6, v8", "32 x 64 B = 2 KB")
            A("s_waitcnt lgkmcnt(0)")
            A("s_mov_b32 s8, s44"); A("s_and_b32 s9, s45, 0xffff"); A("s_mov_b32 s10, 0x800000"); A("s_mov_b32 s11, 0x20000")
            A("s_mov_b32 s12, s46"); A("s_and_b32 s13, s47, 0xffff"); A("s_mov_b32 s14, 0x800000"); A("s_mov_b32 s15, 0x20000")
            A("s_mov_b32 exec_hi, 0")
            A("buffer_load_dword v14, v8, s[8:11], s50 offen")
            A("buffer_load_dword v15, v8, s[12:15], s50 offen")
            A("s_mov_b64 exec, -1")
            A.c("job B rows (workgroups 0..40): t-block b or 32, Cr only: wave k touches rows 8k..8k+7")
            A("s_cmp_ge_u32 s2, 41")
            A("s_cbranch_scc1 K1_NOTB")
            A("s_min_u32 s50, s2, 32")
            A("s_lshl_b32 s50, s50, 5")
            A("s_lshl_b32 s51, s52, 3")
            A("s_add_u32 s50, s50, s51")
            A("s_lshl_b32 s50, s50, 12")
            A("v_lshrrev_b32 v9, 5, v0")
            A("v_lshl_add_u32 v9, v9, 12, v8", "2 rows per instruction")
            for u in range(4):
                A(f"s_add_u32 s51, s50, {u*8192}")
                A("buffer_load_dword v14, v9, s[8:11], s51 offen")
            A.label("K1_NOTB")
        for b in range(8 - nb_pre): A("s_barrier")
        A("s_branch P1_END")
        A.label("K1_COMPUTE")
    else:
        A("s_cmp_ge_u32 s36, 4")
        A("s_cbranch_scc1 K1_LOADER")

    A.c("compute waves: wr = w>>1, wc = w&1")
    A("s_lshr_b32 s42, s36, 1", "wr")
    A("s_and_b32 s43, s36, 1", "wc")
    if opts.get("touch", 1):
        A.c("L2 warm-up (speed only): the 32 workgroups that usually share an XCD each touch a distinct 1/32 of the lines that XCD needs")
        srd(A, 4, 24, 0x200000)
        A("s_lshr_b32 s50, s2, 3", "r")
        A("s_and_b32 s51, s50, 3", "c")
        A("s_lshr_b32 s50, s50, 2", "i")
        A.c("x: row = c<2 ? 64rb + 32c + l : 2048 - (64rb + 32(c-2) + l) ; chunk = 2w + (lane>>5)")
        A("s_and_b32 s52, s51, 1")
        A("s_lshl_b32 s52, s52, 5")
        A("s_lshl_b32 s53, s40, 6")
        A("s_add_u32 s52, s52, s53")
        A("v_and_b32 v8, 31, v0")
        A("v_add_u32 v8, s52, v8")
        A("v_sub_u32 v9, 0x800, v8")
        A("s_cmp_ge_u32 s51, 2")
        A("s_cselect_b64 s[54:55], -1, 0")
        A("v_cndmask_b32 v8, v8, v9, s[54:55]")
        A("v_lshlrev_b32 v8, 10, v8")
        A("v_lshrrev_b32 v9, 5, v0")
        A("v_lshl_add_u32 v8, v9, 7, v8")
        A("s_lshl_b32 s52, s36, 8", "2w*128")
        A("buffer_load_dword v14, v8, s[4:7], s52 offen")
        A.c("W: waves 0 and 2: chunks 2w + (lane>>4), k row = 64 chunk + 16 (i&3) + (lane&15), group g = i>>2")
        A("s_bitcmp1_b32 s36, 0")
        A("s_cbranch_scc1 K1_NOWT")
        A("s_cmp_lt_u32 s37, 4")
        A("s_cselect_b32 s44, s28, s30")
        A("s_cselect_b32 s45, s29, s31")
        A("s_lshl_b32 s47, s37, 7")
        A("s_and_b32 s49, s37, 3")
        A("s_lshl_b32 s49, s49, 7")
        A("s_add_u32 s53, s47, 2048")
        A("s_movk_i32 s56, 1024")
        A("s_cmp_eq_u32 s39, 0")
        A("s_cselect_b32 s8, s26, s44")
        A("s_cselect_b32 s9, s27, s45")
        A("s_cselect_b32 s46, 3072, s56", "stride1")
        A("s_cselect_b32 s48, s56, 0")
        A("s_cselect_b32 s49, s53, s49", "colbase1*2")
        A("s_add_u32 s48, s48, s47", "colbase0*2")
        A("s_cmp_lt_u32 s50, 4", "group 0 -> wqkv / colbase0 / stride 3072")
        A("s_cselect_b32 s8, s26, s8")
        A("s_cselect_b32 s9, s27, s9")
        A("s_cselect_b32 s46, 3072, s46")
        A("s_cselect_b32 s48, s48, s49")
        A("s_and_b32 s9, s9, 0xffff")
        A("s_cmp_eq_u32 s46, 1024")
        A("s_mov_b32 s10, 0x180000")
        A("s_cselect_b32 s10, 0x80000, s10")
        A("s_mov_b32 s11, 0x20000")
        A("s_and_b32 s52, s50, 3")
        A("s_lshl_b32 s52, s52, 4")
        A("s_lshl_b32 s53, s36, 7", "2w*64")
        A("s_add_u32 s52, s52, s53")
        A("v_lshrrev_b32 v9, 4, v0")
        A("v_lshlrev_b32 v9, 6, v9")
        A("v_and_b32 v10, 15, v0")
        A("v_add3_u32 v9, v9, v10, s52", "k row")
        A("v_mul_lo_u32 v9, v9, s46")
        A("buffer_load_dword v15, v9, s[8:11], s48 offen")
        A.label("K1_NOWT")
    A("v_and_b32 v8, 31, v0", "i")
    A("v_lshrrev_b32 v9, 5, v0", "h")
    A("v_bfe_u32 v10, v0, 1, 3", "sw = (i>>1)&7")
    A("v_xor_b32 v10, v10, v9")
    A("v_lshlrev_b32 v10, 4, v10", "(h^sw)*16")
    A("s_lshl_b32 s44, s42, 13", "wr*64*128")
    A("v_lshlrev_b32 v11, 7, v8")
    A("v_add3_u32 v2, v11, v10, s44", "ax[0]")
    A("v_xor_b32 v3, 32, v2")
    A("v_xor_b32 v4, 64, v2")
    A("v_xor_b32 v5, 0x60, v2")
    A("v_bfe_u32 v10, v0, 2, 2", "r")
    A("v_lshl_add_u32 v11, v9, 3, v10", "8h + r")
    A("v_lshlrev_b32 v11, 7, v11", "*128")
    A("v_bfe_u32 v12, v0, 4, 1", "g'")
    A("v_bfe_u32 v13, v0, 1, 1", "c4>>1")
    A("v_lshl_add_u32 v12, v12, 1, v13", "2g' + (c4>>1)")
    A("v_bfe_u32 v13, v0, 3, 1", "(r>>1)&1")
    A("v_lshlrev_b32 v13, 2, v13")
    A("v_xor_b32 v12, v12, v13", "phys piece (ct=0)")
    A("v_lshlrev_b32 v12, 4, v12")
    A("v_and_b32 v13, 1, v0")
    A("v_lshlrev_b32 v13, 3, v13", "8*(c4&1)")
    A("v_add3_u32 v11, v11, v12, v13")
    A("s_lshl_b32 s44, s43, 13")
    A("s_add_u32 s44, s44, 16384")
    A("v_add_u32 v6, s44, v11", "aw[0]")
    A("v_xor_b32 v7, 64, v6", "aw[1]")
    for r in range(64, 128):
        A(f"v_mov_b32 v{r}, 0")
    DEEP = opts.get("deep", 1) and F
    if DEEP:
        XF = [[16, 20], [32, 36], [48, 52], [128, 132]]
        WF = [[24, 28], [40, 44], [56, 60], [136, 140]]
    else:
        XF = [[16, 20], [32, 36]]
        WF = [[24, 28], [40, 44]]
    def acc(rt, ct): return 64 + 16*(2*rt + ct)
    def reads(st, ks):
        L = []
        L.append(f"ds_read_b128 {vr(XF[st][0],4)}, v{2+ks}")
        L.append(f"ds_read_b128 {vr(XF[st][1],4)}, v{2+ks} offset:4096")
        for ct in range(2):
            L.append(f"ds_read_b64_tr_b16 {vr(WF[st][ct],2)}, v{6+ct} offset:{ks*2048}")
            L.append(f"ds_read_b64_tr_b16 {vr(WF[st][ct]+2,2)}, v{6+ct} offset:{ks*2048+512}")
        return L
    def mfmas(st, wc):
        L = []
        for rt in range(2):
            for ct in range(2):
                a = acc(rt, ct)
                if wc == 0:
                    L.append(f"v_mfma_f32_32x32x16_bf16 {vr(a,16)}, {vr(WF[st][ct],4)}, {vr(XF[st][rt],4)}, {vr(a,16)}")
                else:
                    L.append(f"v_mfma_f32_32x32x16_bf16 {vr(a,16)}, {vr(XF[st][rt],4)}, {vr(WF[st][ct],4)}, {vr(a,16)}")
        return L
    ST(1)
    if F and opts.get("pre", 0): A("s_barrier", "T")
    A("s_barrier", "#0: stage 0 landed")
    STF(4)
    ST(2)
    for s in reads(0, 0): A(s)
    if DEEP:
        for s in reads(1, 1): A(s)
    A("s_mov_b32 s45, 0", "stage counter")
    A("s_cmp_eq_u32 s43, 0")
    A("s_cbranch_scc0 K1_LOOP1")
    for wc in range(2):
        A.raw(".p2align 6")
        A.label(f"K1_LOOP{wc}")
        for ks in range(4):
            bar_ks = 2 if DEEP else 3
            st = ks if DEEP else (ks & 1)
            if DEEP:
                if ks < 2: A("s_waitcnt lgkmcnt(6)")
                elif ks == 2: A("s_waitcnt lgkmcnt(0)")
            else:
                A("s_waitcnt lgkmcnt(0)")
            if ks == bar_ks:
                A("s_mov_b32 s46, 0x8000")
                A("s_cmp_eq_u32 s45, 4")
                A("s_cselect_b32 s46, 0xfffe0000, s46", "5-slot ring: slot 4 -> slot 0")
                for r in range(2, 8):
                    A(f"v_add_u32 v{r}, s46, v{r}")
                A("s_cmp_eq_u32 s45, 7")
                lab = f"K1_NOBAR{wc}"
                A(f"s_cbranch_scc1 {lab}")
                A("s_barrier")
                A.label(lab)
            if DEEP: rd = reads((ks + 2) & 3, (ks + 2) & 3)
            else: rd = reads(1 - st, (ks + 1) & 3)
            mf = mfmas(st, wc)
            if opts.get("noreads"): rd = ["s_nop 0"]*6
            if opts.get("nomfma"): mf = ["s_nop 0"]*4
            if DEEP:
                A(mf[0]); A(rd[0]); A(rd[1]); A(mf[1]); A(rd[2]); A(rd[3]); A(mf[2]); A(rd[4]); A(rd[5]); A(mf[3])
            else:
                A(mf[0]); A(rd[0]); A(rd[1]); A(rd[2]); A(mf[1]); A(rd[3]); A(rd[4]); A(rd[5]); A(mf[2]); A(mf[3])
        A("s_add_u32 s45, s45, 1")
        A("s_cmp_lt_u32 s45, 8")
        A(f"s_cbranch_scc1 K1_LOOP{wc}")
        if wc == 0:
            A("s_branch K1_EPI_QK")
    A("s_cmp_eq_u32 s39, 0")
    A("s_cbranch_scc0 K1_EPI_F")

    ST(3)
    STF(5)
    A.c("V epilogue")
    A("s_waitcnt lgkmcnt(0)")
    A("v_and_b32 v8, 15, v0", "d")
    A("v_lshlrev_b32 v8, 4, v8")
    A("v_bfe_u32 v9, v0, 4, 1", "head low bit")
    A("v_lshlrev_b32 v9, 16, v9")
    A("v_lshrrev_b32 v10, 5, v0")
    A("v_lshlrev_b32 v10, 8, v10", "h*256")
    A("v_add3_u32 v8, v8, v9, v10")
    A.c("soffset = WS_V + (4x_)*65536 + tile*1024, tile = 4rb + 2wr + rt")
    A("s_lshl_b32 s46, s37, 18")
    A("s_lshl_b32 s47, s40, 2")
    A("s_lshl_b32 s48, s42, 1")
    A("s_add_u32 s47, s47, s48")
    A("s_lshl_b32 s47, s47, 10")
    A("s_add_u32 s46, s46, s47")
    A(f"s_add_u32 s46, s46, {hex(WS_V)}")
    A("s_nop 7")
    tmp = 16
    for rt in range(2):
        for ct in range(2):
            a = acc(rt, ct)
            for ch in range(2):
                for j in range(4):
                    A(f"v_cvt_pk_bf16_f32 v{tmp+j}, v{a+8*ch+2*j}, v{a+8*ch+2*j+1}")
                A(f"s_add_u32 s47, s46, {rt*1024 + ct*2*65536}")
                A(f"buffer_store_dwordx4 {vr(tmp,4)}, v8, s[16:19], s47 offen offset:{ch*512}{SC}")
                tmp = 16 + (tmp - 16 + 4) % 32
    if F:
        A("s_branch P1_END")
    else:
        ST(4)
        if opts.get("stamps"): A("s_waitcnt vmcnt(0)")
        ST(5)
        ST.dump(6)
        if opts.get("rt"): A("s_waitcnt vmcnt(0)")
        rt_stamp(A, 0, 1, opts.get("rt"))
        A("s_endpgm")

    A.label("K1_EPI_F")
    ST(3)
    STF(5)
    A.c("FNet epilogue: A' = acc(s) + acc(mirror) (re), B' = acc(s) - acc(mirror) (im)")
    A("s_waitcnt lgkmcnt(0)")
    A("s_cmp_lt_u32 s37, 4")
    A("s_cselect_b32 s46, 1.0, -1.0", "sign")
    A(f"s_mov_b32 s48, {hex(WS_BP)}")
    A(f"s_cselect_b32 s47, {hex(WS_AP)}, s48")
    A("s_and_b32 s48, s37, 3")
    A("s_lshl_b32 s48, s48, 17", "eblk*65536, eblk = 2*(x_&3)")
    A("s_add_u32 s47, s47, s48")
    A("s_lshl_b32 s48, s40, 2")
    A("s_lshl_b32 s49, s42, 1")
    A("s_add_u32 s48, s48, s49", "ks0 = 4rb + 2wr")
    A("s_lshl_b32 s49, s48, 10")
    A("s_add_u32 s47, s47, s49")
    A("v_lshlrev_b32 v8, 4, v0")
    A("s_nop 4")
    A.c("s == 0 special: row 0 pairs with row 1024 (only for re columns, rb == 0, wr == 0)")
    A("s_cmp_eq_u32 s48, 0")
    A("s_cbranch_scc0 K1_EPI_F2")
    A("s_cmp_lt_u32 s37, 4")
    A("s_cbranch_scc0 K1_EPI_F2")
    A("s_mov_b32 exec_lo, -1", "lanes 0..31")
    A("s_mov_b32 exec_hi, 0")
    A("v_lshlrev_b32 v9, 2, v0")
    A("s_lshl_b32 s49, s37, 8", "e base = 64 x_ -> *4 bytes")
    A(f"s_add_u32 s49, s49, {hex(WS_A1024)}")
    for ct in range(2):
        A(f"buffer_store_dword v{acc(1,ct)}, v9, s[16:19], s49 offen offset:{ct*128}{SC}")
    A("s_nop 1")
    for ct in range(2):
        A(f"v_mov_b32 v{acc(1,ct)}, 0")
    A("s_mov_b64 exec, -1")
    A.label("K1_EPI_F2")
    tmp = 16
    for ct in range(2):
        a0 = acc(0, ct); a1 = acc(1, ct)
        for r in range(16):
            A(f"v_fma_f32 v{a0+r}, v{a1+r}, s46, v{a0+r}")
        for ch in range(2):
            for j in range(4):
                A(f"v_cvt_pk_bf16_f32 v{tmp+j}, v{a0+8*ch+2*j}, v{a0+8*ch+2*j+1}")
            A(f"s_add_u32 s49, s47, {ct*65536}")
            A(f"buffer_store_dwordx4 {vr(tmp,4)}, v8, s[16:19], s49 offen offset:{ch*1024}{SC}")
            tmp = 16 + (tmp - 16 + 4) % 32
    if F:
        A("s_branch P1_END")
    else:
        ST(4)
        if opts.get("stamps"): A("s_waitcnt vmcnt(0)")
        ST(5)
        ST.dump(6)
        if opts.get("rt"): A("s_waitcnt vmcnt(0)")
        rt_stamp(A, 0, 1, opts.get("rt"))
        A("s_endpgm")

    A.label("K1_EPI_QK")
    ST(3)
    STF(5)
    A.c("Q/K epilogue")
    A("s_waitcnt lgkmcnt(0)")
    c = 0.25*math.log2(math.e)
    A("s_cmp_eq_u32 s39, 0")
    A(f"s_cselect_b32 s46, 1.0, {hex(f2u(c))}", "K: 1.0, Q: 0.25*log2(e)")
    A(f"s_cselect_b32 s47, {hex(WS_K)}, {hex(WS_Q)}" if WS_Q > 64 else f"s_cselect_b32 s47, {hex(WS_K)}, {WS_Q}")
    A("s_lshl_b32 s48, s37, 18", "head base 4x_ * 65536")
    A("s_add_u32 s47, s47, s48")
    A("s_lshl_b32 s48, s40, 2")
    A("s_lshl_b32 s49, s42, 1")
    A("s_add_u32 s48, s48, s49")
    A("s_lshl_b32 s48, s48, 10", "tile*1024")
    A("s_add_u32 s47, s47, s48")
    A("v_lshlrev_b32 v8, 4, v0")
    A("s_nop 7")
    tmp = 16
    for rt in range(2):
        for ct in range(2):
            a = acc(rt, ct)
            for hd in range(2):
                for j in range(8):
                    A(f"v_mul_f32 v{a+8*hd+j}, s46, v{a+8*hd+j}")
                for j in range(4):
                    A(f"v_cvt_pk_bf16_f32 v{tmp+j}, v{a+8*hd+2*j}, v{a+8*hd+2*j+1}")
                A(f"s_add_u32 s49, s47, {rt*1024 + (2*ct+hd)*65536}")
                A(f"buffer_store_dwordx4 {vr(tmp,4)}, v8, s[16:19], s49 offen{SC}")
                tmp = 16 + (tmp - 16 + 4) % 32
    if F:
        A("s_branch P1_END")
    else:
        ST(4)
        if opts.get("stamps"): A("s_waitcnt vmcnt(0)")
        ST(5)
        ST.dump(6)
        if opts.get("rt"): A("s_waitcnt vmcnt(0)")
        rt_stamp(A, 0, 1, opts.get("rt"))
        A("s_endpgm")

    A.label("K1_LOADER")
    srd(A, 4, 24, 0x200000)
    if F:
        A.c("launch epoch: workgroup 0 publishes a nonzero time stamp in d_debug[0] (zero at launch); hand-off flags in d_ws carry it")
        A("s_mov_b32 s92, s86")
        A("s_and_b32 s93, s87, 0xffff")
        A("s_mov_b32 s94, 0x100")
        A("s_mov_b32 s95, 0x20000")
        A("s_sub_u32 s50, s36, 8")
        A("s_or_b32 s50, s50, s2")
        A("s_cmp_eq_u32 s50, 0")
        A("s_cbranch_scc0 K1_NOEPOCH")
        A("s_memrealtime s[50:51]")
        A("s_waitcnt lgkmcnt(0)")
        A("s_or_b32 s50, s50, 1")
        A("v_mov_b32 v2, s50")
        A("v_mov_b32 v3, 0")
        A("s_mov_b64 exec, 1")
        A("buffer_store_dword v2, v3, s[92:95], 0 offen sc1")
        A("s_mov_b64 exec, -1")
        A.label("K1_NOEPOCH")
        PRE_BAR = opts.get("pre", 0)
    A(f"s_sub_u32 s41, s36, {8 if F else 4}", "j")
    A("s_lshr_b32 s42, s41, 1", "wr")
    A("s_and_b32 s43, s41, 1", "rt")
    A("v_lshrrev_b32 v9, 3, v0", "a")
    A("v_lshrrev_b32 v10, 2, v9")
    A("v_lshlrev_b32 v10, 3, v10", "8*(a>>2)")
    A("v_and_b32 v11, 3, v9")
    A("s_lshl_b32 s52, s40, 6")
    A("s_lshl_b32 s53, s42, 5")
    A("s_add_u32 s52, s52, s53", "64rb + 32wr")
    A("v_add3_u32 v10, v10, v11, s52", "sa")
    A("v_and_b32 v11, 7, v0")
    A("v_lshrrev_b32 v12, 1, v9")
    A("v_xor_b32 v12, v11, v12", "p0")
    A("s_cmp_eq_u32 s43, 1")
    A("s_cselect_b64 s[68:69], -1, 0")
    A("v_mov_b32 v14, 0x400")
    A("s_lshl_b32 s53, s41, 12", "j*4096")
    A.c("K-chunk order is rotated per workgroup so that workgroups sharing x rows / W columns first-touch different chunks")
    A("s_lshr_b32 s66, s2, 3", "r")
    A("s_lshr_b32 s67, s66, 2", "i")
    A("s_and_b32 s66, s66, 3", "c")
    rot = opts.get("rot", 1)
    if rot == 0: A("s_mov_b32 s66, 0")
    elif rot == 1:
        A("s_lshl_b32 s66, s66, 1"); A("s_add_u32 s66, s66, s67"); A("s_and_b32 s66, s66, 7")
    elif rot == 2: A("s_lshl_b32 s66, s66, 1")
    elif rot == 3: A("s_mov_b32 s66, s67")
    elif rot == 4:
        A("s_add_u32 s66, s66, s67"); A("s_and_b32 s66, s66, 3")
    elif rot == 5:
        A("s_add_u32 s66, s66, s67"); A("s_and_b32 s66, s66, 1")
    elif rot == 6:
        A("s_add_u32 s66, s66, s67"); A("s_and_b32 s66, s66, 3"); A("s_lshl_b32 s66, s66, 1")
    A("s_lshl_b32 s55, s66, 7", "x soffset = kappa*128")
    for u in range(4):
        A(f"v_add_u32 v13, {16*(u>>1)+4*(u&1)}, v10")
        A(f"v_sub_u32 v15, 0x800, v13")
        A(f"v_cndmask_b32 v13, v13, v15, s[68:69]")
        if u == 0:
            A("v_cmp_eq_u32 vcc, 0x800, v13")
            A("s_nop 1")
            A("v_cndmask_b32 v13, v13, v14, vcc")
        A(f"v_lshlrev_b32 v13, 10, v13")
        if u & 1:
            A(f"v_xor_b32 v15, 4, v12")
            A(f"v_lshl_add_u32 v{2+u}, v15, 4, v13")
        else:
            A(f"v_lshl_add_u32 v{2+u}, v12, 4, v13")
        if u == 0 and F and opts.get("pre", 0): A("s_barrier", "T")
        A(f"s_add_u32 m0, s53, {u*1024}")
        A("s_nop 0")
        A(f"buffer_load_dwordx4 v{2+u}, s[4:7], s55 offen lds", "x, stage 0")
    srd(A, 8, 26, 0x180000)
    srd(A, 20, 32, 0x400)
    A.c("W1 source: type 0 -> wqkv V columns; type 1 -> hid_re (hg<4) / hid_im")
    A("s_cmp_lt_u32 s37, 4")
    A("s_cselect_b32 s44, s28, s30")
    A("s_cselect_b32 s45, s29, s31")
    A("s_lshl_b32 s47, s37, 7", "64 hg * 2")
    A("s_and_b32 s49, s37, 3")
    A("s_lshl_b32 s49, s49, 7", "64 (hg&3) * 2")
    A("s_add_u32 s63, s47, 2048", "(1024 + 64hg)*2")
    A("s_mov_b32 s64, 0x80000")
    A("s_movk_i32 s65, 1024")
    A("s_cmp_eq_u32 s39, 0")
    A("s_cselect_b32 s12, s26, s44")
    A("s_cselect_b32 s13, s27, s45")
    A("s_cselect_b32 s14, 0x180000, s64")
    A("s_mov_b32 s15, 0x20000")
    A("s_cselect_b32 s46, 3072, s65", "stride1")
    A("s_cselect_b32 s48, s65, 0", "type0: K columns start at 512")
    A("s_cselect_b32 s49, s63, s49", "colbase1*2")
    A("s_and_b32 s13, s13, 0xffff")
    A("s_add_u32 s48, s48, s47", "colbase0*2")
    A("v_bfe_u32 v13, v9, 1, 1")
    A("v_lshlrev_b32 v13, 2, v13")
    A("v_xor_b32 v13, v11, v13", "q")
    A("v_lshlrev_b32 v13, 4, v13", "q*16")
    A("s_lshl_b32 s52, s41, 4")
    A("v_add_u32 v15, s52, v9", "k = 16j + a")
    A("s_movk_i32 s63, 3072")
    A("v_mul_lo_u32 v6, v15, s63")
    A("v_add3_u32 v6, v6, v13, s48")
    A("v_mul_lo_u32 v7, v15, s46")
    A("v_add3_u32 v7, v7, v13, s49")
    A("s_lshl_b32 s54, s41, 11")
    A("s_add_u32 s54, s54, 16384", "16384 + j*2048")
    A("s_mov_b32 s52, 0", "slot base")
    A("s_lshl_b32 s58, s46, 3", "8*stride1")
    A("s_lshl_b32 s59, s46, 6", "64*stride1")
    A("s_mul_i32 s56, s66, 196608", "w0 soffset")
    A("s_mul_i32 s57, s66, s59", "w1 soffset")
    A("s_mov_b32 s62, 0", "cnt")
    A("s_branch K1_ISSUE_W")
    A.label("K1_ISSUE")
    A("s_add_u32 s60, s52, s53")
    for u in range(4):
        A(f"s_add_u32 m0, s60, {u*1024}")
        A("s_nop 0")
        if not opts.get("nodma"): A(f"buffer_load_dwordx4 v{2+u}, s[4:7], s55 offen lds")
    A.label("K1_ISSUE_W")
    A("s_add_u32 s60, s52, s54")
    A("s_mov_b32 m0, s60")
    A("s_add_u32 s61, s56, 24576")
    if not opts.get('nodma'): A("buffer_load_dwordx4 v6, s[8:11], s56 offen lds")
    A("s_add_u32 m0, s60, 1024")
    A("s_nop 0")
    if not opts.get('nodma'): A("buffer_load_dwordx4 v6, s[8:11], s61 offen lds")
    A("s_add_u32 m0, s60, 8192")
    A("s_add_u32 s61, s57, s58")
    if not opts.get('nodma'): A("buffer_load_dwordx4 v7, s[12:15], s57 offen lds")
    A("s_add_u32 m0, s60, 9216")
    A("s_nop 0")
    if not opts.get('nodma'): A("buffer_load_dwordx4 v7, s[12:15], s61 offen lds")
    A("s_add_u32 s52, s52, 0x8000")
    A("s_cmp_eq_u32 s52, 0x28000")
    A("s_cselect_b32 s52, 0, s52", "5-slot ring")
    A("s_add_u32 s55, s55, 128")
    A("s_add_u32 s56, s56, 196608")
    A("s_add_u32 s57, s57, s59")
    A("s_cmp_eq_u32 s55, 1024", "kappa wraps")
    A("s_cselect_b32 s55, 0, s55")
    A("s_cselect_b32 s56, 0, s56")
    A("s_cselect_b32 s57, 0, s57")
    A("s_add_u32 s62, s62, 1")
    A.c("st0 st1 | wait st0, bar0 | st2 st3 | wait st1, bar1 | st4 st5 | wait st2, bar2 | st6 | bar3 | st7 | bar4 | bar5 | bar6 | bar7")
    A("s_bitcmp1_b32 0x2a, s62", "after issuing stage 0, 2, 4 (cnt = 1, 3, 5): issue the next one at once")
    A("s_cbranch_scc1 K1_ISSUE")
    A("s_cmp_eq_u32 s62, 2")
    A("s_cbranch_scc0 K1_NOT2")
    ST(1)
    A("s_waitcnt vmcnt(8)")
    A("s_barrier", "#0")
    ST(2)
    A("s_branch K1_ISSUE")
    A.label("K1_NOT2")
    A("s_cmp_eq_u32 s62, 4")
    A("s_cbranch_scc0 K1_NOT4")
    A("s_waitcnt vmcnt(16)")
    A("s_barrier", "#1")
    A("s_branch K1_ISSUE")
    A.label("K1_NOT4")
    A("s_waitcnt vmcnt(24)")
    A("s_barrier", "#2 (cnt 6), #3 (cnt 7), #4 (cnt 8)")
    A("s_cmp_lt_u32 s62, 8")
    A("s_cbranch_scc1 K1_ISSUE")
    A("s_waitcnt vmcnt(16)")
    A("s_barrier", "#5")
    A.c("gate rows (loaded now: the DMA queue is nearly drained): pair pi = (2hg+type)*4 + j ; s = 64rb + pi")
    A("s_lshl_b32 s50, s37, 1")
    A("s_add_u32 s50, s50, s39")
    A("s_lshl_b32 s50, s50, 2")
    A("s_add_u32 s50, s50, s41")
    A("s_lshl_b32 s51, s40, 6")
    A("s_add_u32 s50, s50, s51", "s50 = s")
    A("s_sub_u32 s51, 2048, s50")
    A("s_cmp_eq_u32 s50, 0")
    A("s_cselect_b32 s51, 1024, s51", "s51 = mirror row")
    A("v_lshlrev_b32 v8, 4, v0")
    A("s_lshl_b32 s52, s50, 10")
    A("s_lshl_b32 s53, s51, 10")
    A("buffer_load_dwordx4 v[16:19], v8, s[4:7], s52 offen")
    A("buffer_load_dwordx4 v[20:23], v8, s[4:7], s53 offen")
    A("buffer_load_dwordx4 v[24:27], v8, s[20:23], 0 offen")
    A("s_waitcnt vmcnt(11)")
    A("s_barrier", "#6")
    A("s_waitcnt vmcnt(3)")
    A("s_barrier", "#7")
    ST(3)
    A("s_waitcnt vmcnt(0)")
    A.c("gate z = sum x*w ; alt = sum (-1)^d x   for rows s (v16..19) and mirror (v20..23)")
    for j in range(4):
        A(f"v_lshlrev_b32 v{28+2*j}, 16, v{24+j}", "w lo")
        A(f"v_and_b32 v{29+2*j}, 0xffff0000, v{24+j}", "w hi")
    for row in range(2):
        z = 40 + row; al = 42 + row
        for j in range(4):
            src = 16 + 4*row + j
            A(f"v_lshlrev_b32 v36, 16, v{src}")
            A(f"v_and_b32 v37, 0xffff0000, v{src}")
            if j == 0:
                A(f"v_mul_f32 v{z}, v36, v28")
                A(f"v_sub_f32 v{al}, v36, v37")
            else:
                A(f"v_fmac_f32 v{z}, v36, v{28+2*j}")
                A(f"v_add_f32 v{al}, v{al}, v36")
                A(f"v_sub_f32 v{al}, v{al}, v37")
            A(f"v_fmac_f32 v{z}, v37, v{29+2*j}")
    A("s_nop 1")
    for dpp in ["quad_perm:[1,0,3,2] row_mask:0xf bank_mask:0xf", "quad_perm:[2,3,0,1] row_mask:0xf bank_mask:0xf",
                "row_half_mirror row_mask:0xf bank_mask:0xf", "row_mirror row_mask:0xf bank_mask:0xf",
                "row_bcast:15 row_mask:0xa bank_mask:0xf", "row_bcast:31 row_mask:0xc bank_mask:0xf"]:
        for r in range(40, 44):
            A(f"v_add_f32_dpp v{r}, v{r}, v{r} {dpp}")
    A("s_nop 1")
    A("s_mov_b32 exec_lo, 0")
    A("s_mov_b32 exec_hi, 0x80000000", "lane 63 holds the totals")
    nl2e = f2u(-math.log2(math.e))
    for row in range(2):
        A(f"v_mul_f32 v{40+row}, {hex(nl2e)}, v{40+row}")
        A(f"v_exp_f32 v{40+row}, v{40+row}")
        A("s_nop 0")
        A(f"v_add_f32 v{40+row}, 1.0, v{40+row}")
        A(f"v_rcp_f32 v{40+row}, v{40+row}")
    A("s_lshl_b32 s52, s50, 2")
    A("s_lshl_b32 s53, s51, 2")
    A(f"s_add_u32 s52, s52, {hex(WS_G)}")
    A(f"s_add_u32 s53, s53, {hex(WS_G)}")
    A("v_mov_b32 v8, 0")
    A("buffer_store_dword v40, v8, s[16:19], s52 offen" + SC)
    A("buffer_store_dword v41, v8, s[16:19], s53 offen" + SC)
    A.c("A'256[s] = alt(s) + alt(mirror)  (s >= 1);  s == 0: A'256[0] = alt(0), A1024[256] = alt(1024)")
    A("s_cmp_eq_u32 s50, 0")
    A("s_cbranch_scc0 K1_G2")
    A(f"s_mov_b32 s52, {hex(WS_A1024 + 256*4)}")
    A("buffer_store_dword v43, v8, s[16:19], s52 offen" + SC)
    A("s_nop 1")
    A("v_mov_b32 v43, 0")
    A.label("K1_G2")
    A("v_add_f32 v42, v42, v43")
    A("s_lshr_b32 s52, s50, 4")
    A("s_lshl_b32 s52, s52, 10", "ks*1024")
    A("s_bfe_u32 s53, s50, 0x10003", "(s>>3)&1")
    A("s_lshl_b32 s53, s53, 9")
    A("s_add_u32 s52, s52, s53")
    A("s_and_b32 s53, s50, 7")
    A("s_lshl_b32 s53, s53, 1")
    A("s_add_u32 s52, s52, s53")
    A(f"s_add_u32 s52, s52, {hex(WS_AP + 8*65536)}")
    A("v_cvt_pk_bf16_f32 v42, v42, v42")
    A("buffer_store_short v42, v8, s[16:19], s52 offen" + SC)
    if F:
        A("s_mov_b64 exec, -1")
        A.c("wave 8 fetches the epoch")
        A("s_cmp_eq_u32 s36, 8")
        A("s_cbranch_scc0 P1_END")
        A("v_mov_b32 v5, 0")
        A("s_mov_b32 s51, 0")
        A.label("K1_EPSPIN")
        A("buffer_load_dword v6, v5, s[92:95], 0 offen sc1")
        A("s_waitcnt vmcnt(0)")
        A("v_readfirstlane_b32 s65, v6")
        A("s_add_u32 s51, s51, 1")
        A("s_cmp_lg_u32 s65, 0")
        A("s_cbranch_scc1 P1_END")
        A("s_sleep 8")
        A("s_cmp_lt_u32 s51, 0x40000")
        A("s_cbranch_scc1 K1_EPSPIN")
        A.label("P1_END")
        A("s_load_dwordx4 s[24:27], s[0:1], 32", "seq_re, seq_im")
        A("s_load_dwordx2 s[28:29], s[0:1], 16", "wo")
        A("s_load_dwordx2 s[84:85], s[0:1], 72", "out")
        A("s_waitcnt vmcnt(0)", "this wave's phase-1 stores have reached memory")
        A("s_barrier", "E1: all phase-1 stores of the workgroup are done")
        A("s_lshl_b32 s66, s2, 7", "phase-1 flag: one 128-B line per workgroup")
        return name, 168, 96
    ST(4)
    ST(5)
    ST.dump(6)
    A.label("K1_END")
    if opts.get("rt"): A("s_waitcnt vmcnt(0)")
    rt_stamp(A, 0, 1, opts.get("rt"))
    A("s_endpgm")
    return name, 128, (96 if (opts.get('stamps') or opts.get('rt')) else 70)
```

```python
from common import *

LDS_V = 65536
LDS_F = 131072
LDS_X = LDS_F + 12288
LDS_ONES = LDS_X + 18432
LDS_CNT = LDS_ONES + 1664
K2_LDS = LDS_CNT + 64
assert LDS_ONES % 256 == 0 and K2_LDS <= 163840

def gen_k2(A, opts=None):
    opts = opts or {}
    F12 = opts.get("fuse12")
    SC1 = " sc1" if F12 else ""
    name = "k2_attn_kernel"
    if not F12:
        kernel_header(A, name)
        A.c("K2: attention (8 waves) + K/V loaders & FNet sequence-DFT stage (4 waves).  256 WGs x 768 threads")
        A("s_cmp_ge_u32 s2, 256")
        A("s_cbranch_scc1 K2_END")
        rt_stamp(A, 1, 0, opts.get("rt"))
    else:
        A.c("phase 2: attention (8 waves) + K/V loaders & FNet sequence-DFT stage (4 waves)")
    if not F12:
        A("s_load_dwordx4 s[24:27], s[0:1], 32", "seq_re, seq_im")
        A("s_load_dwordx2 s[34:35], s[0:1], 88", "ws")
        if opts.get("fuse23"):
            A("s_load_dwordx2 s[28:29], s[0:1], 16", "wo")
            A("s_load_dwordx4 s[84:87], s[0:1], 72", "out, debug")
    if not F12:
        A("v_lshrrev_b32 v1, 6, v0")
        A("v_and_b32 v0, 63, v0", "lane")
        A("v_readfirstlane_b32 s36, v1", "wave id")
    A("s_and_b32 s37, s2, 7", "x_")
    A("s_lshr_b32 s38, s2, 3", "r")
    A("s_and_b32 s39, s38, 3")
    A("s_lshl_b32 s40, s37, 2")
    A("s_add_u32 s40, s40, s39", "head = 4x_ + (r&3)   (also FNet t-block i)")
    A("s_lshr_b32 s41, s38, 2", "qb (also FNet e-block)")
    A("s_waitcnt lgkmcnt(0)")
    srd(A, 4, 34, WS_SIZE)
    A("s_mov_b32 s67, 0x200000", "budget of LDS spin iterations")
    ST = Stamps(A, opts.get("stamps"), 1, 4, 36)
    ST.dbg = opts.get("dbgst")
    if not F12: ST(0)
    if opts.get("clk"): clk_stamp(A, 12)
    if F12:
        ST(10)
        if opts.get("etouch", 0):
            A("s_and_b32 s52, s36, 12")
            A("s_cmp_eq_u32 s52, 4")
            A("s_cbranch_scc0 K2_NOET")
            A.c("waves 4..7: L2 warm-up (speed only) of the sequence-DFT rows of this workgroup's FNet tile (8 workgroups share them: 4 rows each)")
            A("s_lshl_b32 s50, s40, 5")
            A("s_lshl_b32 s51, s41, 2")
            A("s_add_u32 s50, s50, s51")
            A("s_sub_u32 s52, s36, 4")
            A("s_add_u32 s50, s50, s52", "row = 32i + 4j + k")
            A("s_lshl_b32 s50, s50, 12")
            A("v_and_b32 v8, 31, v0")
            A("v_lshlrev_b32 v8, 6, v8", "32 x 64 B = 2 KB")
            A("s_mov_b32 s8, s24"); A("s_and_b32 s9, s25, 0xffff"); A("s_mov_b32 s10, 0x800000"); A("s_mov_b32 s11, 0x20000")
            A("s_mov_b32 s12, s26"); A("s_and_b32 s13, s27, 0xffff"); A("s_mov_b32 s14, 0x800000"); A("s_mov_b32 s15, 0x20000")
            A("s_mov_b32 exec_hi, 0")
            A("buffer_load_dword v102, v8, s[8:11], s50 offen")
            A("buffer_load_dword v103, v8, s[12:15], s50 offen")
            A("s_mov_b64 exec, -1")
            A.label("K2_NOET")
        A("s_cmp_eq_u32 s36, 8")
        A("s_cbranch_scc0 K2_E2")
        A.c("wave 8: publish this workgroup's phase-1 flag, then wait for the 32 producers of this head group's Q/K/V")
        A(f"s_add_u32 s66, s66, {hex(WS_F1)}")
        A("v_mov_b32 v2, s65")
        A("v_mov_b32 v3, 0")
        A("s_mov_b64 exec, 1")
        A("buffer_store_dword v2, v3, s[4:7], s66 offen sc1")
        A("s_mov_b64 exec, -1")
        A.label("K2_E2")
    A("s_cmp_ge_u32 s36, 8")
    A("s_cbranch_scc1 K2_FNET")

    QA, QB, KF, V0, V1, P, SA, SB, OA, OB, CN = 4, 8, 12, 16, 20, 24, 32, 48, 64, 80, 100
    A("s_and_b32 s42, s36, 3", "qp: query-tile pair")
    A("s_lshr_b32 s49, s36, 2", "kh: key half")
    A("s_lshl_b32 s43, s41, 3")
    A("s_lshl_b32 s44, s42, 1")
    A("s_add_u32 s44, s44, s43", "q tile a = 8 qb + 2 qp")
    A("s_lshl_b32 s43, s40, 16")
    A("s_lshl_b32 s44, s44, 10")
    A("s_add_u32 s43, s43, s44", "head*65536 + tile_a*1024")
    A("v_lshlrev_b32 v1, 4, v0", "lane*16")
    A(f"s_add_u32 s45, s43, {hex(WS_Q)}" if WS_Q else "s_mov_b32 s45, s43")
    if not F12:
        A(f"buffer_load_dwordx4 {vr(QA,4)}, v1, s[4:7], s45 offen")
        A(f"buffer_load_dwordx4 {vr(QB,4)}, v1, s[4:7], s45 offen offset:1024")
    A("s_lshl_b32 s50, s49, 15", "kh*32768")
    A("v_add_u32 v2, s50, v1", "K address")
    A.c("V address: lanes with (l&31)<16 read V rows; the others read a strip of bf16 ones (row sums come out of the same MFMA)")
    A("v_lshrrev_b32 v3, 5, v0")
    A("v_lshlrev_b32 v3, 8, v3", "h*256")
    A("v_and_b32 v28, 15, v0")
    A("v_lshl_add_u32 v3, v28, 4, v3")
    A(f"s_add_u32 s51, s50, {LDS_V}")
    A("v_add_u32 v3, s51, v3", "real V address")
    A("v_add_u32 v28, 4, v0")
    A("v_bfe_u32 v28, v28, 3, 1", "1 for lanes 20..27 (mod 32)")
    A("v_lshlrev_b32 v28, 6, v28", "-> strip offset 64 (zeros, other banks)")
    if opts.get("zrows", 1):
        A("v_and_b32 v29, 31, v0")
        A("v_cmp_eq_u32 vcc, 16, v29")
        A("v_max_u32 v29, 16, v28", "other lanes: offset 16 or 64 (zeros)")
        A("v_mov_b32 v30, 0")
        A("v_cndmask_b32 v28, v29, v30, vcc", "lane 16 / 48: offset 0 (ones)")
    A(f"v_add_u32 v28, {LDS_ONES - 512}, v28")
    A("v_bfe_u32 v29, v0, 4, 1")
    A("v_cmp_eq_u32 vcc, 0, v29")
    A("v_mov_b32 v30, 0")
    A("v_mov_b32 v31, 2048")
    A("v_mov_b32 v97, v3", "real address (prologue / fallback)")
    A("v_cndmask_b32 v3, v28, v3, vcc")
    A("v_cndmask_b32 v96, v30, v31, vcc", "per-iteration increment (0 for ones lanes)")
    for r in range(16): A(f"v_mov_b32 v{OA+r}, 0")
    for r in range(16): A(f"v_mov_b32 v{OB+r}, 0")
    for r in range(4, 8): A(f"v_mov_b32 v{P+r}, 0")
    if opts.get("zrows", 1):
        A("v_and_b32 v29, 31, v0")
        A("v_cmp_eq_u32 vcc, 16, v29")
        A("v_mov_b32 v30, 0x3f803f80")
        A("v_mov_b32 v31, 0")
        A("v_cndmask_b32 v98, v31, v30, vcc", "ones in the row-16 lanes, zeros in rows 17..31")
    else:
        A("v_mov_b32 v98, 0x3f803f80")
    for r in range(4): A(f"v_mov_b32 v{V0+r}, v98")
    for r in range(4): A(f"v_mov_b32 v{V1+r}, 0")
    A("s_mov_b32 s46, 0x0000ffff")
    A("s_mov_b32 s47, 0x0000ffff", "exec mask of the real V lanes")
    A("s_mov_b32 s48, 0", "iteration")
    if opts.get("pprio"): A("s_setprio 3")
    if F12:
        A("s_barrier", "E2: this head group's Q/K/V are published")
        ST(11)
        A(f"buffer_load_dwordx4 {vr(QA,4)}, v1, s[4:7], s45 offen sc1")
        A(f"buffer_load_dwordx4 {vr(QB,4)}, v1, s[4:7], s45 offen offset:1024 sc1")
    A("s_barrier", "#0: chunk 0 of K/V landed")
    ST(1)
    A(f"ds_read_b128 {vr(KF,4)}, v2")
    A("s_mov_b64 exec, s[46:47]")
    A(f"ds_read_b128 {vr(V0,4)}, v97")
    A("s_mov_b64 exec, -1")
    if F12:
        A(f"v_mov_b32 v99, {LDS_CNT + 60}")
        A("ds_read_b32 v100, v99")
    A("s_waitcnt vmcnt(0) lgkmcnt(0)")
    if F12: A("v_readfirstlane_b32 s66, v100", "epoch")
    A(f"v_mfma_f32_32x32x16_bf16 {vr(SA,16)}, {vr(KF,4)}, {vr(QA,4)}, 0")
    A("s_nop 15")
    A.raw(".p2align 6")
    A.label("K2_LOOP")
    def substep(S, mid1, mid2, mid3):
        e = lambda j: A(f"v_exp_f32 v{S+j}, v{S+j}")
        cv = lambda j: A(f"v_cvt_pk_bf16_f32 v{P+j}, v{S+2*j}, v{S+2*j+1}")
        mid1()
        e(0); e(1); e(2); e(3); cv(0); cv(1)
        mid2()
        e(4); e(5); e(6); e(7); cv(2); cv(3); e(8); e(9)
        mid3()
        e(10); e(11); cv(4); e(12); e(13); cv(5); e(14); e(15); cv(6); cv(7)
    mf = lambda d, a, b, c: A(f"v_mfma_f32_32x32x16_bf16 {vr(d,16)}, {vr(a,4)}, {vr(b,4)}, {c}")
    for u in range(2):
        if u == 1:
            if F12:
                A("s_bitcmp1_b32 0x45, s48", "iterations 0, 2, 6")
                A("s_cbranch_scc0 K2_NOBAR")
                A.c("later K/V chunks: wait for the loaders' LDS counters (local tiles 2..5, 6..13, 14..31)")
                A("s_add_u32 s52, s48, 2")
                A("s_and_b32 s52, s52, 12")
                A(f"s_add_u32 s52, s52, {LDS_CNT + 48}")
                A("v_mov_b32 v99, s52")
                A.label("K2_CSPIN")
                A("ds_read_b32 v100, v99")
                A("s_waitcnt lgkmcnt(0)")
                A("v_readfirstlane_b32 s52, v100")
                A("s_cmp_ge_u32 s52, 4")
                A("s_cbranch_scc1 K2_NOBAR")
                A("s_sub_u32 s67, s67, 1")
                A("s_cmp_gt_i32 s67, 0", "bounded: never hang")
                A("s_cbranch_scc1 K2_CSPIN")
            else:
                A("s_and_b32 s52, s48, 13")
                A("s_cmp_eq_u32 s52, 0", "iterations 0 and 2")
                A("s_cbranch_scc0 K2_NOBAR")
            if F12:
                pass
            else:
                A("s_barrier", "#1 / #2: later K/V chunks landed")
            A.label("K2_NOBAR")
        def a1():
            mf(SB, KF, QB, "0")
            A(f"ds_read_b128 {vr(KF,4)}, v2 offset:{(u+1)*1024}")
        def a2():
            mf(OB, V1, P+4, vr(OB,16))
            A(f"ds_read_b128 {vr(V1,4)}, v3 offset:{u*1024+512}")
        def a3():
            A("s_waitcnt lgkmcnt(2)")
            mf(OA, V0, P, vr(OA,16))
        substep(SA, a1, a2, a3)
        def b1():
            A("s_waitcnt lgkmcnt(0)")
            mf(SA, KF, QA, "0")
        def b2():
            mf(OA, V1, P+4, vr(OA,16))
        def b3():
            mf(OB, V0, P, vr(OB,16))
            A(f"ds_read_b128 {vr(V0,4)}, v3 offset:{(u+1)*1024}")
        substep(SB, b1, b2, b3)
    A("v_add_u32 v2, 0x800, v2")
    A("v_add_u32 v3, v96, v3")
    if opts.get("itst"):
        A("s_memtime s[70:71]")
        A("s_lshl_b32 s72, s2, 4")
        A("s_add_u32 s72, s72, s36")
        A("s_lshl_b32 s72, s72, 6")
        A("s_lshl_b32 s73, s48, 2")
        A("s_add_u32 s72, s72, s73")
        A(f"s_add_u32 s72, s72, {hex(WS_STAMP + 3*0x40000)}")
        A("s_waitcnt lgkmcnt(0)")
        A("v_mov_b32 v99, s70")
        A("v_mov_b32 v100, 0")
        A("s_mov_b64 exec, 1")
        A("buffer_store_dword v99, v100, s[4:7], s72 offen")
        A("s_mov_b64 exec, -1")
    A("s_add_u32 s48, s48, 1")
    if opts.get("pprio"):
        A.c("a wave that is behind gets the higher priority: 3,2,1,0 for iterations 0-3, 4-7, 8-11, 12-15")
        for lv, itn in ((2, 4), (1, 8), (0, 12)):
            lab = A.newlabel("K2_PR")
            A(f"s_cmp_eq_u32 s48, {itn}")
            A(f"s_cbranch_scc0 {lab}")
            A(f"s_setprio {lv}")
            A.label(lab)
    A("s_cmp_lt_u32 s48, 16")
    A("s_cbranch_scc1 K2_LOOP")
    ST(2)
    mf(OB, V1, P+4, vr(OB,16))
    A("s_waitcnt lgkmcnt(0)")
    A("s_nop 15")
    A.c("combine the two key halves: wave kh keeps query tile (a if kh==0 else b) and hands the other one to its partner (wave ^ 4)")
    A("s_cmp_eq_u32 s49, 0")
    A("s_cbranch_scc1 K2_KEEPA")
    for r in range(9):
        A(f"v_mov_b32 v{32+r}, v{OA+r}", "give a")
        A(f"v_mov_b32 v{OA+r}, v{OB+r}", "keep b")
    A("s_add_u32 s43, s43, 1024", "own tile = b")
    A("s_branch K2_XCH")
    A.label("K2_KEEPA")
    for r in range(9): A(f"v_mov_b32 v{32+r}, v{OB+r}", "give b")
    A.label("K2_XCH")
    O = OA
    A("s_mul_i32 s50, s36, 2304")
    A(f"s_add_u32 s50, s50, {LDS_X}")
    A("v_lshlrev_b32 v28, 2, v0")
    A("v_add_u32 v29, s50, v28")
    for r in range(9): A(f"ds_write_b32 v29, v{32+r} offset:{r*256}")
    A("s_lshl_b32 s51, s36, 2")
    A(f"s_add_u32 s51, s51, {LDS_CNT + 16}")
    A("v_mov_b32 v30, s51")
    A("v_mov_b32 v31, 1")
    A("s_waitcnt lgkmcnt(0)")
    A("ds_write_b32 v30, v31", "flag: my hand-over is in LDS")
    A("s_xor_b32 s52, s36, 4", "partner")
    A("s_mul_i32 s50, s52, 2304")
    A(f"s_add_u32 s50, s50, {LDS_X}")
    A("v_add_u32 v29, s50, v28")
    A("s_lshl_b32 s51, s52, 2")
    A(f"s_add_u32 s51, s51, {LDS_CNT + 16}")
    A("v_mov_b32 v30, s51")
    A.label("K2_XSPIN")
    A("ds_read_b32 v31, v30")
    A("s_waitcnt lgkmcnt(0)")
    A("v_readfirstlane_b32 s52, v31")
    A("s_cmp_eq_u32 s52, 1")
    A("s_cbranch_scc1 K2_XGO")
    A("s_sleep 1")
    A("s_sub_u32 s67, s67, 1")
    A("s_cmp_gt_i32 s67, 0", "bounded: never hang")
    A("s_cbranch_scc1 K2_XSPIN")
    A.label("K2_XGO")
    for r in range(9): A(f"ds_read_b32 v{32+r}, v29 offset:{r*256}")
    A("s_waitcnt lgkmcnt(0)")
    for r in range(9): A(f"v_add_f32 v{O+r}, v{O+r}, v{32+r}")
    A.c("row 16 of O^T holds the row sum l (ones rows of the V operand)")
    def normalize():
        if opts.get("zrows", 1):
            A(f"v_mov_b32 v29, v{O+8}")
            A("s_nop 1")
            A(f"v_permlane32_swap_b32 v29, v{O+8}", "l lives in lanes 0..31 only: copy it to the upper half")
            A("s_nop 1")
            A(f"v_mov_b32 v{O+8}, v29")
        A(f"v_rcp_f32 v28, v{O+8}")
        A("s_nop 0")
        for r in range(8): A(f"v_mul_f32 v{O+r}, v{O+r}, v28")
    normalize()
    A(f"v_mov_b32 v29, v{O+8}", "l")
    A.c("run-time guard: softmax is shift invariant, so the unshifted exponentials give the same result as long as l stays far")
    A.c("from the fp32 range limits and O is finite; otherwise this tile is recomputed below with the true row max subtracted")
    A(f"v_add_f32 v30, abs(v{O}), abs(v{O+1})")
    for r in range(2, 8): A(f"v_add_f32 v30, v30, abs(v{O+r})")
    A(f"v_cmp_nle_f32 vcc, {hex(f2u(2.0**-60))}, v29", "!(2^-60 <= l)")
    A(f"s_mov_b32 s50, {hex(f2u(2.0**60))}")
    A(f"v_cmp_nle_f32 s[52:53], v29, s50", "!(l <= 2^60)")
    A(f"s_mov_b32 s50, {hex(f2u(2.0**126))}")
    A(f"v_cmp_nle_f32 s[54:55], v30, s50", "O not finite")
    A("s_nop 4")
    A("s_or_b64 vcc, vcc, s[52:53]")
    A("s_or_b64 vcc, vcc, s[54:55]")
    if opts.get("force_fallback"):
        A("s_mov_b64 vcc, -1")
    A("s_cmp_lg_u64 vcc, 0")
    A("s_cbranch_scc1 K2_FALLBACK")
    A.label("K2_STORE")
    for j in range(4): A(f"v_cvt_pk_bf16_f32 v{P+j}, v{O+2*j}, v{O+2*j+1}")
    A(f"s_add_u32 s45, s43, {hex(WS_O)}")
    SC = " sc1" if opts.get("fuse23") else ""
    A(f"buffer_store_dwordx4 {vr(P,4)}, v1, s[4:7], s45 offen{SC}")
    ST(3)
    if opts.get("clk"): clk_stamp(A, 14)
    if F12:
        A.c("publish this wave's O' tile: flag word [head][tile>>1][tile&1]")
        A("s_lshl_b32 s50, s40, 5")
        A("s_lshl_b32 s51, s41, 2")
        A("s_add_u32 s50, s50, s51")
        A("s_and_b32 s51, s36, 3")
        A("s_add_u32 s50, s50, s51", "head*32 + 4qb + qp")
        A("s_lshl_b32 s50, s50, 7")
        A("s_lshl_b32 s51, s49, 2")
        A("s_add_u32 s50, s50, s51")
        A(f"s_add_u32 s50, s50, {hex(WS_F2O)}")
        A("v_mov_b32 v28, s66")
        A("v_mov_b32 v29, 0")
        A("s_waitcnt vmcnt(0)", "the tile has reached memory")
        A("s_mov_b64 exec, 1")
        A("buffer_store_dword v28, v29, s[4:7], s50 offen sc1")
        A("s_mov_b64 exec, -1")
        A("s_branch K2_PHASE3B")
    elif opts.get("fuse23"):
        A("s_branch K2_PHASE3")
    else:
        ST.dump(4)
        if opts.get("rt"): A("s_waitcnt vmcnt(0)")
        rt_stamp(A, 1, 1, opts.get("rt"))
        A("s_endpgm")

    A.label("K2_FALLBACK")
    Q = QA
    A("s_cmp_eq_u32 s49, 0")
    A("s_cbranch_scc1 K2_FB0")
    for r in range(4): A(f"v_mov_b32 v{QA+r}, v{QB+r}")
    A.label("K2_FB0")
    A("v_mov_b32 v2, v1")
    A("v_mov_b32 v29, 0xff800000", "running max = -inf")
    A("s_mov_b32 s48, 0")
    A.label("K2_FB1")
    A(f"ds_read_b128 {vr(KF,4)}, v2")
    A("s_waitcnt lgkmcnt(0)")
    A(f"v_mfma_f32_32x32x16_bf16 {vr(SA,16)}, {vr(KF,4)}, {vr(Q,4)}, 0")
    A("s_nop 15")
    for r in range(0, 16, 2): A(f"v_max3_f32 v29, v{SA+r}, v{SA+r+1}, v29")
    A("v_add_u32 v2, 1024, v2")
    A("s_add_u32 s48, s48, 1")
    A("s_cmp_lt_u32 s48, 64")
    A("s_cbranch_scc1 K2_FB1")
    A("v_mov_b32 v30, v29")
    A("s_nop 1")
    A("v_permlane32_swap_b32 v30, v29")
    A("s_nop 1")
    A("v_max_f32 v29, v29, v30", "row max over both lane halves")
    for r in range(16): A(f"v_sub_f32 v{CN+r}, 0, v29")
    for r in range(16): A(f"v_mov_b32 v{O+r}, 0")
    for r in range(8): A(f"v_mov_b32 v{V0+r}, v98")
    A("v_mov_b32 v2, v1")
    A("s_lshl_b32 s50, s49, 15")
    A("v_subrev_u32 v3, s50, v97", "V address of tile 0")
    A("s_mov_b32 s48, 0")
    A.label("K2_FB2")
    A(f"ds_read_b128 {vr(KF,4)}, v2")
    A("s_mov_b64 exec, s[46:47]")
    A(f"ds_read_b128 {vr(V0,4)}, v3")
    A(f"ds_read_b128 {vr(V1,4)}, v3 offset:512")
    A("s_mov_b64 exec, -1")
    A("s_waitcnt lgkmcnt(0)")
    A(f"v_mfma_f32_32x32x16_bf16 {vr(SA,16)}, {vr(KF,4)}, {vr(Q,4)}, {vr(CN,16)}")
    A("s_nop 15")
    for r in range(16): A(f"v_exp_f32 v{SA+r}, v{SA+r}")
    A("s_nop 0")
    for j in range(8): A(f"v_cvt_pk_bf16_f32 v{P+j}, v{SA+2*j}, v{SA+2*j+1}")
    A("s_nop 1")
    A(f"v_mfma_f32_32x32x16_bf16 {vr(O,16)}, {vr(V0,4)}, {vr(P,4)}, {vr(O,16)}")
    A(f"v_mfma_f32_32x32x16_bf16 {vr(O,16)}, {vr(V1,4)}, {vr(P+4,4)}, {vr(O,16)}")
    A("v_add_u32 v2, 1024, v2")
    A("v_add_u32 v3, 1024, v3")
    A("s_add_u32 s48, s48, 1")
    A("s_cmp_lt_u32 s48, 64")
    A("s_cbranch_scc1 K2_FB2")
    A("s_nop 15")
    normalize()
    A("s_branch K2_STORE")

    A.label("K2_FNET")
    A("s_setprio 3" if F12 else f"s_setprio {opts.get('fprio', 2)}")
    A("s_sub_u32 s42, s36, 8", "j")
    if opts.get("fuse23") and not F12:
        srd(A, 12, 86, 0x100)
        A.c("launch epoch: workgroup 0 publishes a nonzero time stamp in d_debug[0] (zero at launch); hand-off flags in d_ws carry it")
        A("s_or_b32 s50, s2, s42")
        A("s_cmp_eq_u32 s50, 0")
        A("s_cbranch_scc0 K2_NOEPOCH")
        A("s_memrealtime s[50:51]")
        A("s_waitcnt lgkmcnt(0)")
        A("s_or_b32 s50, s50, 1")
        A("v_mov_b32 v2, s50")
        A("v_mov_b32 v3, 0")
        A("s_mov_b64 exec, 1")
        A("buffer_store_dword v2, v3, s[12:15], 0 offen sc1")
        A("s_mov_b64 exec, -1")
        A("s_waitcnt vmcnt(0)")
        A.label("K2_NOEPOCH")
    A("v_lshlrev_b32 v1, 4, v0", "lane*16")
    A("s_lshl_b32 s43, s40, 16", "head*65536")
    A(f"s_add_u32 s44, s43, {hex(WS_K)}")
    A(f"s_add_u32 s45, s43, {hex(WS_V)}")
    def dma(first_tile_sreg, n, lab):
        A("s_mov_b32 s48, 0")
        A.label(lab)
        A("s_mov_b32 m0, s46")
        A("s_add_u32 s47, s44, s46")
        A("buffer_load_dwordx4 v1, s[4:7], s47 offen lds")
        A(f"s_add_u32 m0, s46, {LDS_V}")
        A("s_add_u32 s47, s45, s46")
        A("buffer_load_dwordx4 v1, s[4:7], s47 offen lds")
        A("s_add_u32 s46, s46, 1024")
        A("s_add_u32 s48, s48, 1")
        A(f"s_cmp_lt_u32 s48, {n}")
        A(f"s_cbranch_scc1 {lab}")
    if F12:
        A.c("K/V through registers (device-scope loads): local tiles chunk 0: {0,1}; chunk 1: {2..5}; chunk 2: {6..31}; wave j: half = j>>1")
        A("s_lshr_b32 s52, s42, 1")
        A("s_lshl_b32 s52, s52, 15", "half*32768")
        A("s_and_b32 s53, s42, 1")
        def kv_load(reg, soff_reg, add):
            A(f"s_add_u32 s47, s44, s{soff_reg}")
            if add: A(f"s_add_u32 s47, s47, {add}")
            A(f"buffer_load_dwordx4 {vr(reg,4)}, v1, s[4:7], s47 offen sc1")
            A(f"s_add_u32 s47, s45, s{soff_reg}")
            if add: A(f"s_add_u32 s47, s47, {add}")
            A(f"buffer_load_dwordx4 {vr(reg+4,4)}, v1, s[4:7], s47 offen sc1")
        def kv_write(reg, areg, off):
            A(f"ds_write_b128 v{areg}, {vr(reg,4)} offset:{off}")
            A(f"ds_write_b128 v{areg+1}, {vr(reg+4,4)} offset:{off}")
        A("s_lshl_b32 s46, s53, 10")
        A("s_add_u32 s46, s46, s52", "chunk 0 tile offset")
        A("s_lshl_b32 s54, s53, 11")
        A("s_add_u32 s54, s54, s52")
        A("s_add_u32 s54, s54, 2048", "chunk 1 tile offset")
        A("s_lshl_b32 s55, s53, 12")
        A("s_add_u32 s55, s55, s52")
        A("s_add_u32 s55, s55, 6144", "chunk 2a: tiles 6 + 4 sub ..")
        A("s_mul_i32 s56, s53, 9216")
        A("s_add_u32 s56, s56, s52")
        A("s_add_u32 s56, s56, 14336", "chunk 2b: tiles 14 + 9 sub ..")
        A("v_add_u32 v32, s46, v1"); A(f"v_add_u32 v33, {LDS_V}, v32")
        A("v_add_u32 v34, s54, v1"); A(f"v_add_u32 v35, {LDS_V}, v34")
        A("v_add_u32 v36, s55, v1"); A(f"v_add_u32 v37, {LDS_V}, v36")
        A("v_add_u32 v38, s56, v1"); A(f"v_add_u32 v39, {LDS_V}, v38")
        A.c("ones strip and flags")
        if opts.get("zrows", 1):
            A("v_and_b32 v5, 15, v0")
            A("v_cmp_eq_u32 vcc, 0, v5")
            A("v_mov_b32 v6, 0x3f803f80")
            A("v_mov_b32 v7, 0")
            A("v_cndmask_b32 v4, v7, v6, vcc")
        else:
            A("v_mov_b32 v4, 0x3f803f80")
        A("v_mov_b32 v5, v4")
        A("v_mov_b32 v6, v4")
        A("v_mov_b32 v7, v4")
        A(f"v_add_u32 v2, {LDS_ONES}, v1")
        A("ds_write_b128 v2, v[4:7]")
        A("s_mov_b32 exec_lo, -1")
        A("s_mov_b32 exec_hi, 0xff", "40 lanes: 640 B")
        A("ds_write_b128 v2, v[4:7] offset:1024")
        A("s_mov_b64 exec, -1")
        A("s_cmp_eq_u32 s36, 8")
        A("s_cbranch_scc0 K2_NOEPL")
        A("s_mov_b64 exec, 0xf")
        A("v_mov_b32 v4, 0")
        A("v_mov_b32 v5, 0")
        A("v_mov_b32 v6, 0")
        A("v_mov_b32 v7, 0")
        A(f"v_add_u32 v2, {LDS_CNT}, v1")
        A("ds_write_b128 v2, v[4:7]")
        A("s_mov_b64 exec, -1")
        A("s_waitcnt lgkmcnt(0)")
        A(f"v_mov_b32 v2, {LDS_CNT + 60}")
        A("v_mov_b32 v4, s65")
        A("ds_write_b32 v2, v4", "epoch for the attention waves")
        A.label("K2_NOEPL")
        A("s_waitcnt lgkmcnt(0)")
        A("s_cmp_eq_u32 s36, 8")
        A("s_cbranch_scc0 K2_E2L")
        A.c("wave 8: wait for the 32 producers of this head group's Q/K/V")
        A.c("producers of head group hg = x_: b = 2(hg>>1) + (l&1) + 8*(((l>>1)&1) + 2(hg&1) + 4(l>>2)), l = lane&31")
        A("v_and_b32 v40, 1, v0")
        A("v_bfe_u32 v41, v0, 1, 1")
        A("v_bfe_u32 v42, v0, 2, 3")
        A("v_lshl_add_u32 v41, v42, 2, v41")
        A("s_and_b32 s52, s37, 1")
        A("s_lshl_b32 s52, s52, 1")
        A("v_add_u32 v41, s52, v41")
        A("v_lshl_add_u32 v40, v41, 3, v40")
        A("s_and_b32 s52, s37, 6")
        A("v_add_u32 v40, s52, v40")
        A("v_lshlrev_b32 v40, 7, v40")
        A(f"s_mov_b32 s52, {hex(WS_F1)}")
        A("s_mov_b32 s51, 0")
        ST(4)
        A(f"s_sleep {opts.get('sleep0', 12)}")
        A.label("K2_POLL1")
        A("buffer_load_dword v41, v40, s[4:7], s52 offen sc1")
        A("s_waitcnt vmcnt(0)")
        A("v_cmp_ne_u32 vcc, s65, v41")
        A("s_add_u32 s51, s51, 1")
        A("s_nop 3")
        A("s_cmp_eq_u64 vcc, 0")
        A("s_cbranch_scc1 K2_E2P")
        A(f"s_sleep {opts.get('sleep1', 6)}")
        A("s_cmp_lt_u32 s51, 0x40000", "bounded: never hang")
        A("s_cbranch_scc1 K2_POLL1")
        A.label("K2_E2P")
        if opts.get("stamps"):
            ST(5)
            A("s_mov_b32 s80, s51")
        A.label("K2_E2L")
        A("s_barrier", "E2: this head group's Q/K/V are published")
        ST(11)
        kv_load(8, 46, 0)
        kv_load(16, 54, 0); kv_load(24, 54, 1024)
        A("s_waitcnt vmcnt(4)")
        kv_write(8, 32, 0)
        A("s_waitcnt lgkmcnt(0)")
        A("s_barrier", "#0")
        ST(1)
        A("s_waitcnt vmcnt(0)")
        kv_write(16, 34, 0); kv_write(24, 34, 1024)
        A(f"v_mov_b32 v4, {LDS_CNT + 48}")
        A("v_mov_b32 v5, 1")
        A("s_waitcnt lgkmcnt(0)")
        A("s_mov_b64 exec, 1")
        A("ds_add_u32 v4, v5", "chunk 1 in LDS")
        A("s_mov_b64 exec, -1")
        for t in range(4): kv_load(40 + 8*t, 55, t*1024)
        for t in range(4): kv_load(72 + 8*t, 56, t*1024)
        for t in range(4):
            A(f"s_waitcnt vmcnt({14 - 2*t})")
            kv_write(40 + 8*t, 36, t*1024)
        A("s_waitcnt lgkmcnt(0)")
        A("s_mov_b64 exec, 1")
        A("ds_add_u32 v4, v5 offset:4", "chunk 2a in LDS")
        A("s_mov_b64 exec, -1")
        for t in range(4, 9): kv_load(72 + 8*t, 56, t*1024)
        for t in range(9):
            A(f"s_waitcnt vmcnt({16 - 2*t})")
            kv_write(72 + 8*t, 38, t*1024)
        A("s_waitcnt lgkmcnt(0)")
        A("s_mov_b64 exec, 1")
        A("ds_add_u32 v4, v5 offset:8", "chunk 2b in LDS")
        A("s_mov_b64 exec, -1")
        ST(2)
    else:
        A.c("local tiles (per key half): chunk 0: {0,1}; chunk 1: {2..5}; chunk 2: {6..31}.  wave j: half = j>>1")
        A("s_lshr_b32 s52, s42, 1")
        A("s_lshl_b32 s52, s52, 15", "half*32768")
        A("s_and_b32 s53, s42, 1")
        A("s_lshl_b32 s46, s53, 10")
        A("s_add_u32 s46, s46, s52")
        dma(46, 1, "K2_DMA0")
        A("s_lshl_b32 s46, s53, 11")
        A("s_add_u32 s46, s46, s52")
        A("s_add_u32 s46, s46, 2048")
        dma(46, 2, "K2_DMA1")
        A.c("ones strip and flags")
        if opts.get("zrows", 1):
            A("v_and_b32 v5, 15, v0")
            A("v_cmp_eq_u32 vcc, 0, v5")
            A("v_mov_b32 v6, 0x3f803f80")
            A("v_mov_b32 v7, 0")
            A("v_cndmask_b32 v4, v7, v6, vcc")
        else:
            A("v_mov_b32 v4, 0x3f803f80")
        A("v_mov_b32 v5, v4")
        A("v_mov_b32 v6, v4")
        A("v_mov_b32 v7, v4")
        A(f"v_add_u32 v2, {LDS_ONES}, v1")
        A("ds_write_b128 v2, v[4:7]")
        A("s_mov_b32 exec_lo, -1")
        A("s_mov_b32 exec_hi, 0xff", "40 lanes: 640 B")
        A("ds_write_b128 v2, v[4:7] offset:1024")
        A("s_mov_b64 exec, 0xf")
        A("v_mov_b32 v4, 0")
        A("v_mov_b32 v5, 0")
        A("v_mov_b32 v6, 0")
        A("v_mov_b32 v7, 0")
        A(f"v_add_u32 v2, {LDS_CNT}, v1")
        A("ds_write_b128 v2, v[4:7]")
        A("s_mov_b64 exec, -1")
        A("s_waitcnt vmcnt(4) lgkmcnt(0)")
        A("s_barrier", "#0")
        ST(1)
        A("s_mul_i32 s46, s53, 13312")
        A("s_add_u32 s46, s46, s52")
        A("s_add_u32 s46, s46, 6144")
        dma(46, 3, "K2_DMA2a")
        A("s_waitcnt vmcnt(6)")
        A("s_barrier", "#1")
        dma(46, 10, "K2_DMA2")
        ST(2)

    FR = 8
    E = 136
    NS = 16
    def job_setup(ti, ej, first):
        A(f"s_lshl_b32 s56, s{ti}, 5")
        A("v_and_b32 v2, 31, v0")
        A("v_add_u32 v3, s56, v2", "t = 32 i + (l&31)")
        A("v_lshlrev_b32 v2, 12, v3")
        A("v_lshrrev_b32 v4, 5, v0")
        A("v_lshl_add_u32 v2, v4, 4, v2", "t*4096 + h*16")
        if first:
            A.c("wave j: chain = j>>1 (0: E = Cr x A', 1: G = Ci x B'), K half = j&1")
            A("s_and_b32 s57, s42, 1")
            A("s_lshl_b32 s57, s57, 5", "ks0 = 32*(j&1)")
            A(f"s_mov_b32 s58, {hex(WS_BP)}")
            A("s_cmp_lt_u32 s42, 2")
            A("s_cselect_b32 s8, s24, s26")
            A("s_cselect_b32 s9, s25, s27")
            A(f"s_cselect_b32 s58, {hex(WS_AP)}, s58")
        else:
            A("s_lshl_b32 s57, s42, 4", "ks0 = 16 j")
            A("s_mov_b32 s8, s24")
            A("s_mov_b32 s9, s25")
            A(f"s_mov_b32 s58, {hex(WS_AP)}")
        A("s_and_b32 s9, s9, 0xffff")
        A("s_mov_b32 s10, 0x800000")
        A("s_mov_b32 s11, 0x20000")
        A(f"s_lshl_b32 s56, s{ej}, 16", "eblk*65536")
        A("s_add_u32 s60, s56, s58")
        A("s_lshl_b32 s56, s57, 10")
        A("s_add_u32 s60, s60, s56", "fragment base + ks0*1024")
        A("s_lshl_b32 s62, s57, 5", "ks0*32")
    def issue(slot, n):
        b = FR + 8*slot
        A(f"s_add_u32 s58, s60, {n*1024}")
        A(f"s_add_u32 s59, s62, {n*32}")
        A(f"buffer_load_dwordx4 {vr(b,4)}, v1, s[4:7], s58 offen{SC1}")
        A(f"buffer_load_dwordx4 {vr(b+4,4)}, v2, s[8:11], s59 offen")
    def job_run(nsteps, jobidx, ej, tag):
        hasG = nsteps == 32
        for r in range(16): A(f"v_mov_b32 v{E+r}, 0")
        for n in range(nsteps):
            slot = n % NS
            b = FR + 8*slot
            rem_first = nsteps - NS
            cnt = 2*(NS-1) if n < rem_first else 2*(nsteps - 1 - n)
            BT = opts.get("btouch", 0) and jobidx == 0 and F12
            if BT and n == rem_first:
                A.c("L2 warm-up (speed only) of job B's rows (t-block min(b,32), Cr): wave j touches rows 8j..8j+7")
                A("s_min_u32 s56, s2, 32")
                A("s_lshl_b32 s56, s56, 5")
                A("s_lshl_b32 s57, s42, 3")
                A("s_add_u32 s56, s56, s57")
                A("s_lshl_b32 s56, s56, 12")
                A("v_and_b32 v5, 31, v0")
                A("v_lshlrev_b32 v5, 6, v5")
                A("v_lshrrev_b32 v6, 5, v0")
                A("v_lshl_add_u32 v5, v6, 12, v5", "2 rows per instruction")
                A("s_mov_b32 s16, s24"); A("s_and_b32 s17, s25, 0xffff"); A("s_mov_b32 s18, 0x800000"); A("s_mov_b32 s19, 0x20000")
                for u in range(4):
                    A(f"s_add_u32 s57, s56, {u*8192}")
                    A("buffer_load_dword v167, v5, s[16:19], s57 offen")
            if BT and n >= rem_first: cnt += 4
            A(f"s_waitcnt vmcnt({cnt})")
            A(f"v_mfma_f32_32x32x16_bf16 {vr(E,16)}, {vr(b,4)}, {vr(b+4,4)}, {vr(E,16)}")
            if n < rem_first: issue(slot, n + NS)
        A("s_nop 15")
        base = LDS_F
        A("s_cmp_eq_u32 s42, 0")
        A(f"s_cbranch_scc1 K2_COMB{tag}")
        if jobidx == 1:
            A.c("the partial-tile area is shared with job A: wait until wave 0 has read job A's partials")
            A(f"v_mov_b32 v6, {LDS_CNT + 8}")
            A.label("K2_SPINC")
            A("ds_read_b32 v7, v6")
            A("s_waitcnt lgkmcnt(0)")
            A("v_readfirstlane_b32 s57, v7")
            A("s_cmp_eq_u32 s57, 1")
            A("s_cbranch_scc1 K2_GOC")
            A("s_sleep 4")
            A("s_sub_u32 s67, s67, 1")
            A("s_cmp_gt_i32 s67, 0")
            A("s_cbranch_scc1 K2_SPINC")
            A.label("K2_GOC")
        A.c("waves 1..3: publish the partial tile in LDS")
        A("s_lshl_b32 s56, s42, 12")
        A(f"s_add_u32 s56, s56, {base - 4096}")
        A("v_add_u32 v5, s56, v1")
        for m in range(4): A(f"ds_write_b128 v5, {vr(E+4*m,4)} offset:{m*1024}")
        A(f"v_mov_b32 v6, {LDS_CNT + 4*jobidx}")
        A("v_mov_b32 v7, 1")
        A("s_waitcnt lgkmcnt(0)")
        A("s_mov_b64 exec, 1")
        A("ds_add_u32 v6, v7")
        A("s_waitcnt lgkmcnt(0)")
        A("s_mov_b64 exec, -1")
        A(f"s_branch K2_JOBDONE{tag}")
        A.label(f"K2_COMB{tag}")
        A.c("wave 0: wait for the three partials; E += (-1)^t A1024[e];  Ym = E - G, Yp = E + G")
        A("v_lshrrev_b32 v4, 5, v0")
        A("v_lshlrev_b32 v4, 4, v4", "4h*4 bytes")
        A(f"s_lshl_b32 s56, s{ej}, 7", "e0*4")
        A(f"s_add_u32 s57, s56, {hex(WS_A1024)}")
        for m in range(4):
            A(f"buffer_load_dwordx4 {vr(FR+4*m,4)}, v4, s[4:7], s57 offen offset:{m*32}{SC1}")
        A(f"v_mov_b32 v6, {LDS_CNT + 4*jobidx}")
        A.label(f"K2_SPIN{tag}")
        A("ds_read_b32 v7, v6")
        A("s_waitcnt lgkmcnt(0)")
        A("v_readfirstlane_b32 s57, v7")
        A("s_cmp_eq_u32 s57, 3")
        A(f"s_cbranch_scc1 K2_GO{tag}")
        A("s_sleep 4")
        A("s_sub_u32 s67, s67, 1")
        A("s_cmp_gt_i32 s67, 0")
        A(f"s_cbranch_scc1 K2_SPIN{tag}")
        A.label(f"K2_GO{tag}")
        A(f"v_add_u32 v5, {base}, v1")
        for p in range(3):
            for m in range(4):
                A(f"ds_read_b128 {vr(FR+16+16*p+4*m,4)}, v5 offset:{p*4096 + m*1024}")
        A("v_and_b32 v6, 1, v0")
        A("v_lshlrev_b32 v6, 31, v6")
        A("v_or_b32 v6, 1.0, v6", "(-1)^t")
        A(f"s_movk_i32 s58, {YSB}")
        A("v_mul_lo_u32 v7, v3, s58")
        A("v_add_u32 v7, v7, v4", "t*YSB + 4h*4")
        A("s_waitcnt vmcnt(0) lgkmcnt(0)")
        if jobidx == 0:
            A(f"v_mov_b32 v5, {LDS_CNT + 8}")
            A("v_mov_b32 v4, 1")
            A("ds_write_b32 v5, v4", "job A partials consumed")
        P1, P2, P3 = FR+16, FR+32, FR+48
        for r in range(16): A(f"v_fmac_f32 v{E+r}, v6, v{FR+r}")
        for r in range(16): A(f"v_add_f32 v{E+r}, v{E+r}, v{P1+r}")
        for r in range(16): A(f"v_add_f32 v{P2+r}, v{P2+r}, v{P3+r}")
        if hasG:
            for r in range(16):
                A(f"v_sub_f32 v{P1+r}, v{E+r}, v{P2+r}")
                A(f"v_add_f32 v{P3+r}, v{E+r}, v{P2+r}")
            ym, yp = P1, P3
        else:
            for r in range(16): A(f"v_add_f32 v{E+r}, v{E+r}, v{P2+r}")
            ym, yp = E, E
        if opts.get("fuse23"):
            A.c("Y tiles: [(i*9 + j)*2 + arr][m][lane][4] : every store instruction writes 1 KB of whole lines")
            ti = 40 if jobidx == 0 else 63
            A(f"s_mul_i32 s57, s{ti}, 9")
            A(f"s_add_u32 s57, s57, s{ej}")
            A("s_lshl_b32 s57, s57, 13")
            A(f"s_add_u32 s57, s57, {hex(WS_Y)}")
            A("s_add_u32 s58, s57, 4096")
            for m in range(4):
                A(f"buffer_store_dwordx4 {vr(ym+4*m,4)}, v1, s[4:7], s57 offen offset:{m*1024} sc1")
                A(f"buffer_store_dwordx4 {vr(yp+4*m,4)}, v1, s[4:7], s58 offen offset:{m*1024} sc1")
        else:
            A(f"s_add_u32 s57, s56, {hex(WS_YM)}")
            A(f"s_add_u32 s58, s56, {hex(WS_YP)}")
            for m in range(4):
                A(f"buffer_store_dwordx4 {vr(ym+4*m,4)}, v7, s[4:7], s57 offen offset:{m*32}")
                A(f"buffer_store_dwordx4 {vr(yp+4*m,4)}, v7, s[4:7], s58 offen offset:{m*32}")
        A.label(f"K2_JOBDONE{tag}")

    if opts.get("nofnet"):
        A("s_waitcnt vmcnt(0) lgkmcnt(0)")
        A("s_barrier")
        A("s_endpgm")
    job_setup(40, 41, True)
    if F12:
        A.c("FNet needs every phase-1 workgroup: wave 8 polls all 8 flag lines, then releases waves 9..11 through LDS")
        A(f"v_mov_b32 v4, {LDS_CNT + 12}")
        A("s_cmp_eq_u32 s36, 8")
        A("s_cbranch_scc0 K2_FWAIT")
        A("v_lshlrev_b32 v5, 7, v0")
        A(f"s_mov_b32 s52, {hex(WS_F1)}")
        A("s_mov_b32 s51, 0")
        A.label("K2_POLLF")
        for q in range(4):
            A(f"s_add_u32 s53, s52, {q*8192}")
            A(f"buffer_load_dword v{8+q}, v5, s[4:7], s53 offen sc1")
        A("s_waitcnt vmcnt(0)")
        for q in range(4): A(f"v_xor_b32 v{8+q}, s65, v{8+q}")
        A("v_or_b32 v8, v8, v9")
        A("v_or3_b32 v8, v8, v10, v11")
        A("v_cmp_ne_u32 vcc, 0, v8")
        A("s_add_u32 s51, s51, 1")
        A("s_nop 3")
        A("s_cmp_eq_u64 vcc, 0")
        A("s_cbranch_scc1 K2_FGO")
        A("s_sleep 8")
        A("s_cmp_lt_u32 s51, 0x40000")
        A("s_cbranch_scc1 K2_POLLF")
        A.label("K2_FGO")
        A("v_mov_b32 v5, 1")
        A("ds_write_b32 v4, v5")
        A("s_waitcnt lgkmcnt(0)")
        A("s_branch K2_FSTART")
        A.label("K2_FWAIT")
        A("ds_read_b32 v5, v4")
        A("s_waitcnt lgkmcnt(0)")
        A("v_readfirstlane_b32 s52, v5")
        A("s_cmp_eq_u32 s52, 1")
        A("s_cbranch_scc1 K2_FSTART")
        A("s_sleep 4")
        A("s_sub_u32 s67, s67, 1")
        A("s_cmp_gt_i32 s67, 0")
        A("s_cbranch_scc1 K2_FWAIT")
        A.label("K2_FSTART")
    else:
        A("s_waitcnt vmcnt(0)")
        A("s_barrier", "#2: all of K/V landed")
    ST(3)
    if opts.get("fuse23") and not F12:
        A.c("epoch (wave 8 only): d_debug[0] becomes nonzero once workgroup 0 has started")
        A("s_cmp_eq_u32 s36, 8")
        A("s_cbranch_scc0 K2_EPDONE")
        A("v_mov_b32 v5, 0")
        A("s_mov_b32 s51, 0")
        A.label("K2_EPSPIN")
        A("buffer_load_dword v6, v5, s[12:15], 0 offen sc1")
        A("s_waitcnt vmcnt(0)")
        A("v_readfirstlane_b32 s65, v6")
        A("s_add_u32 s51, s51, 1")
        A("s_cmp_lg_u32 s65, 0")
        A("s_cbranch_scc1 K2_EPDONE")
        A("s_sleep 8")
        A("s_cmp_lt_u32 s51, 0x40000")
        A("s_cbranch_scc1 K2_EPSPIN")
        A.label("K2_EPDONE")
    if F12: A(f"s_setprio {opts.get('fprio', 2)}")
    if opts.get("skipjobs"): A("s_branch K2_FEND")
    if opts.get("ftouch", 0) and F12:
        A.c("L2 warm-up (speed only): this wave's share of the DFT rows: job A tile (8 workgroups share the t-block: row 32i + 4j + k) and job B rows")
        A("s_lshl_b32 s50, s40, 5")
        A("s_lshl_b32 s51, s41, 2")
        A("s_add_u32 s50, s50, s51")
        A("s_add_u32 s50, s50, s42")
        A("s_lshl_b32 s50, s50, 12")
        A("v_and_b32 v5, 31, v0")
        A("v_lshlrev_b32 v5, 6, v5", "32 x 64 B = 2 KB of a row")
        A("s_mov_b32 s16, s24"); A("s_and_b32 s17, s25, 0xffff"); A("s_mov_b32 s18, 0x800000"); A("s_mov_b32 s19, 0x20000")
        A("s_mov_b32 s20, s26"); A("s_and_b32 s21, s27, 0xffff"); A("s_mov_b32 s22, 0x800000"); A("s_mov_b32 s23, 0x20000")
        A("s_mov_b32 exec_hi, 0")
        A("buffer_load_dword v166, v5, s[16:19], s50 offen")
        A("buffer_load_dword v167, v5, s[20:23], s50 offen")
        A("s_mov_b64 exec, -1")
        if opts.get("ftouch", 1) == 2:
            A("s_cmp_ge_u32 s2, 41")
            A("s_cbranch_scc1 K2_NOFTB")
            A("s_min_u32 s56, s2, 32")
            A("s_lshl_b32 s56, s56, 5")
            A("s_lshl_b32 s57, s42, 3")
            A("s_add_u32 s56, s56, s57")
            A("s_lshl_b32 s56, s56, 12")
            A("v_lshrrev_b32 v6, 5, v0")
            A("v_lshl_add_u32 v5, v6, 12, v5", "2 rows per instruction")
            for u in range(4):
                A(f"s_add_u32 s57, s56, {u*8192}")
                A("buffer_load_dword v167, v5, s[16:19], s57 offen")
            A.label("K2_NOFTB")
    for n in range(NS): issue(n, n)
    job_run(32, 0, 41, "A")
    if not opts.get("pollst"): ST(4)
    if opts.get("fuse23"):
        A.c("L2 warm-up of this workgroup's Wo columns (512 rows x 128 B): 128 lines per wave")
        srd(A, 16, 28, 0x80000)
        A("s_lshl_b32 s56, s42, 7")
        A("v_add_u32 v5, s56, v0")
        A("v_lshlrev_b32 v5, 10, v5", "row*1024")
        A("s_lshl_b32 s57, s41, 7", "64nb*2")
        A("buffer_load_dword v6, v5, s[16:19], s57 offen")
        A("buffer_load_dword v6, v5, s[16:19], s57 offen offset:64")
        A("s_add_u32 s57, s57, 65536", "+64 rows")
        A("buffer_load_dword v7, v5, s[16:19], s57 offen")
        A("buffer_load_dword v7, v5, s[16:19], s57 offen offset:64")
    A.c("extra E-only jobs: row t=1024 (t-block 32) and column e=256 (e-block 8), on workgroups 0..40")
    A("s_cmp_ge_u32 s2, 41")
    A("s_cbranch_scc1 K2_FEND")
    A("s_sub_u32 s64, s2, 32")
    A("s_cmp_lt_u32 s2, 32")
    A("s_cselect_b32 s63, s2, 32", "t-block")
    A("s_cselect_b32 s64, 8, s64", "e-block")
    A("s_waitcnt vmcnt(0)")
    job_setup(63, 64, False)
    for n in range(NS): issue(n, n)
    job_run(16, 1, 64, "B")
    A.label("K2_FEND")
    if not opts.get("pollst"): ST(5)
    if not opts.get("fuse23"):
        ST.dump(6)
        A.label("K2_END")
        if opts.get("rt"): A("s_waitcnt vmcnt(0)")
        rt_stamp(A, 1, 1, opts.get("rt"))
        A("s_endpgm")
        return name, 168, (96 if (opts.get('stamps') or opts.get('rt') or opts.get('clk') or opts.get('itst')) else 66)
    gen_phase3(A, opts, ST)
    return name, 168, 96


def gen_phase3(A, opts, ST):
    A.label("K2_PHASE3")
    A("s_waitcnt vmcnt(0)", "this wave's phase-2 stores have reached memory")
    A("s_cmp_eq_u32 s36, 8")
    A("s_cbranch_scc0 K2_PHASE3B")
    A.c("wave 8 stored this workgroup's Y tiles: publish them (one 128-B line per workgroup)")
    A("s_lshl_b32 s52, s2, 7")
    A(f"s_add_u32 s52, s52, {hex(WS_F2)}")
    A("v_mov_b32 v2, s65")
    A("v_mov_b32 v3, 0")
    A("s_mov_b64 exec, 1")
    A("buffer_store_dword v2, v3, s[4:7], s52 offen sc1")
    A("s_mov_b64 exec, -1")
    A.label("K2_PHASE3B")
    A("s_barrier", "LDS is free")
    ST(6)
    A("s_cmp_lt_u32 s36, 8")
    A("s_cbranch_scc1 K3_COMPUTE")
    A("s_cmp_eq_u32 s36, 8")
    A("s_cbranch_scc0 K3_WO")
    A("s_mov_b32 s50, s65", "epoch")
    A.c("O' flags: lane = 2*head + parity, line (head*32 + qp)")
    A("v_lshrrev_b32 v4, 1, v0")
    A("v_lshlrev_b32 v4, 5, v4")
    A("v_add_u32 v4, s40, v4")
    A("v_lshlrev_b32 v4, 7, v4")
    A("v_and_b32 v5, 1, v0")
    A("v_lshl_add_u32 v4, v5, 2, v4")
    A.c("Y flags: lanes 0..7: job A producers (head = qp, qb = lane); 8: WG qp; 9..17 (qp==0): WGs 32..40; rest: as lane 8")
    A("s_and_b32 s54, s40, 3")
    A("s_lshr_b32 s55, s40, 2")
    A("v_lshlrev_b32 v6, 2, v0")
    A("v_add_u32 v6, s54, v6")
    A("v_lshlrev_b32 v6, 3, v6")
    A("v_add_u32 v6, s55, v6", "b = (qp>>2) + 8*((qp&3) + 4*lane)")
    A("v_add_u32 v7, 23, v0", "lane+23: 9..17 -> 32..40")
    A("v_cmp_lt_u32 vcc, 8, v0")
    A("s_cmp_eq_u32 s40, 0")
    A("s_cselect_b32 s55, 17, 8", "last lane that matters")
    A("v_cndmask_b32 v6, v6, v7, vcc")
    A("v_mov_b32 v8, s40")
    A("v_cmp_eq_u32 vcc, 8, v0")
    A("s_nop 1")
    A("v_cndmask_b32 v6, v6, v8, vcc")
    A("v_cmp_lt_u32 vcc, s55, v0")
    A("s_nop 1")
    A("v_cndmask_b32 v6, v6, v8, vcc")
    A("v_lshlrev_b32 v6, 7, v6")
    A(f"s_mov_b32 s52, {hex(WS_F2O)}")
    A(f"s_mov_b32 s53, {hex(WS_F2)}")
    A("s_mov_b32 s51, 0")
    A(f"s_sleep {opts.get('sleep2', opts.get('sleep0', 12))}")
    A.label("K3_POLL")
    A("buffer_load_dword v5, v4, s[4:7], s52 offen sc1")
    A("buffer_load_dword v7, v6, s[4:7], s53 offen sc1")
    A("s_waitcnt vmcnt(0)")
    A("v_xor_b32 v5, s50, v5")
    A("v_xor_b32 v7, s50, v7")
    A("v_or_b32 v5, v5, v7")
    A("v_cmp_ne_u32 vcc, 0, v5")
    A("s_add_u32 s51, s51, 1")
    A("s_nop 3")
    A("s_cmp_eq_u64 vcc, 0")
    A("s_cbranch_scc1 K3_JOIN")
    A(f"s_sleep {opts.get('sleep1', 6)}")
    A("s_cmp_lt_u32 s51, 0x40000", "bounded: never hang")
    A("s_cbranch_scc1 K3_POLL")
    A.label("K3_JOIN")
    if not opts.get("pollst"): ST(8)
    if opts.get("stamps"): A("s_mov_b32 s81, s51")
    A("s_barrier", "inputs published, Wo staged")
    ST(7)
    ST.dump(12)
    A.label("K2_END")
    if opts.get("rt"): A("s_waitcnt vmcnt(0)")
    rt_stamp(A, 1, 1, opts.get("rt"))
    A("s_endpgm")

    A.label("K3_WO")
    srd(A, 8, 28, 0x80000)
    A("s_sub_u32 s42, s36, 9", "first 8-row group")
    A("v_lshrrev_b32 v9, 3, v0", "a")
    A("v_and_b32 v11, 7, v0")
    A("v_bfe_u32 v13, v9, 1, 1")
    A("v_lshlrev_b32 v13, 2, v13")
    A("v_xor_b32 v13, v11, v13", "logical piece q")
    A("v_lshlrev_b32 v13, 4, v13")
    A("v_lshlrev_b32 v9, 10, v9", "a*1024")
    A("s_lshl_b32 s45, s41, 7", "64nb*2")
    A("v_add3_u32 v2, v9, v13, s45", "Wo voffset")
    A.label("K3_WOL")
    A("s_lshl_b32 m0, s42, 10")
    A("s_lshl_b32 s49, s42, 13")
    A("buffer_load_dwordx4 v2, s[8:11], s49 offen lds")
    A("s_add_u32 s42, s42, 3")
    A("s_cmp_lt_u32 s42, 64")
    A("s_cbranch_scc1 K3_WOL")
    A("s_waitcnt vmcnt(0)")
    A("s_branch K3_JOIN")

    A.label("K3_COMPUTE")
    srd(A, 8, 84, 0x200000)
    A("s_and_b32 s42, s36, 1", "qt (0 rows s, 1 mirrored rows)")
    A("s_lshr_b32 s44, s36, 1", "kq: heads 8kq..8kq+7; finalizes column tile nt = kq>>1, half = kq&1")
    A("s_lshr_b32 s43, s44, 1", "nt")
    A("s_and_b32 s45, s44, 1", "half")
    A("v_and_b32 v8, 31, v0", "i")
    A("v_and_b32 v9, 19, v8", "bits 4,1,0")
    A("v_bfe_u32 v10, v8, 2, 1")
    A("v_lshl_or_b32 v9, v10, 3, v9")
    A("v_bfe_u32 v10, v8, 3, 1")
    A("v_lshl_or_b32 v9, v10, 2, v9", "pi(i)")
    A("s_lshl_b32 s46, s40, 5")
    A("v_add_u32 v9, s46, v9", "s")
    A("v_sub_u32 v10, 0x800, v9")
    A("v_mov_b32 v11, 0x400")
    A("v_cmp_eq_u32 vcc, 0, v9")
    A("s_cmp_eq_u32 s42, 1")
    A("s_cselect_b64 s[46:47], -1, 0")
    A("v_cndmask_b32 v10, v10, v11, vcc", "mirror(s)")
    A("v_cndmask_b32 v11, v9, v11, vcc", "t' for mirrored rows")
    A("v_cndmask_b32 v12, v9, v10, s[46:47]", "row")
    A("v_cndmask_b32 v13, v9, v11, s[46:47]", "t'")
    A("v_lshrrev_b32 v14, 5, v0", "h")
    A("v_lshlrev_b32 v15, 2, v12")
    A(f"s_mov_b32 s48, {hex(WS_G)}")
    A("buffer_load_dword v55, v15, s[4:7], s48 offen" + (" sc1" if opts.get("fuse12") else ""), "g[row]")
    A.c("this lane finalizes 8 columns: n0 = 64nb + 32nt + 16h + 8half")
    A("s_lshl_b32 s49, s41, 6")
    A("s_lshl_b32 s50, s43, 5")
    A("s_add_u32 s49, s49, s50")
    A("s_lshl_b32 s50, s45, 3")
    A("s_add_u32 s49, s49, s50")
    A("v_lshlrev_b32 v6, 4, v14")
    A("v_add_u32 v6, s49, v6", "n0")
    A("v_lshlrev_b32 v4, 10, v12")
    A("v_lshl_add_u32 v4, v6, 1, v4", "v4 = output offset")
    A("s_lshr_b32 s50, s41, 2", "nb>=4: mirrored columns")
    A("s_xor_b32 s51, s50, s42", "arr = Yp when exactly one of row / column is mirrored")
    A("v_sub_u32 v7, 505, v6", "512 - n0 - 7")
    A("s_cmp_eq_u32 s50, 1")
    A("s_cselect_b64 s[54:55], -1, 0")
    A("v_cndmask_b32 v7, v6, v7, s[54:55]", "first e'")
    A("v_lshrrev_b32 v7, 2, v7", "q0 = piece of the first e'")
    A("v_lshrrev_b32 v15, 5, v13")
    A("v_mul_u32_u24 v15, 18, v15")
    A("v_add_u32 v15, s51, v15")
    A("v_lshlrev_b32 v15, 12, v15")
    A("v_and_b32 v5, 31, v13")
    A("v_lshl_add_u32 v15, v5, 4, v15")
    for p in range(3):
        A(f"v_add_u32 v5, {p}, v7", "piece q")
        A("v_lshrrev_b32 v10, 3, v5", "e-block")
        A("v_lshlrev_b32 v10, 13, v10")
        A("v_bfe_u32 v11, v5, 1, 2", "m")
        A("v_lshl_add_u32 v10, v11, 10, v10")
        A("v_and_b32 v11, 1, v5", "h of the piece")
        A("v_lshl_add_u32 v10, v11, 9, v10")
        A(f"v_add_u32 v{50+p}, v10, v15")
    A("v_lshlrev_b32 v2, 4, v0", "v2 = lane*16")
    A("v_bfe_u32 v10, v0, 2, 2", "r")
    A("v_lshl_add_u32 v11, v14, 2, v10", "4h + r")
    A("v_lshlrev_b32 v11, 7, v11", "*128")
    A("v_and_b32 v12, 1, v0")
    A("v_lshlrev_b32 v12, 1, v12", "2(c4&1)")
    A("v_bfe_u32 v13, v0, 4, 1", "g'")
    A("v_add_u32 v12, v12, v13", "logical piece (nt = 0)")
    A("v_bfe_u32 v13, v0, 3, 1", "(r>>1)&1")
    A("v_lshlrev_b32 v13, 2, v13")
    A("v_xor_b32 v12, v12, v13")
    A("v_lshlrev_b32 v12, 4, v12")
    A("v_bfe_u32 v13, v0, 1, 1", "c4>>1")
    A("v_lshlrev_b32 v13, 3, v13")
    A("v_add3_u32 v3, v11, v12, v13")
    A("s_lshl_b32 s48, s44, 14", "8 heads * 2048")
    A("v_add_u32 v3, s48, v3", "v3 = Wo^T fragment address, nt = 0")
    A("v_xor_b32 v1, 64, v3", "v1: nt = 1")
    ACC, Y, OR = 16, 56, 72
    WF = [[104, 108], [112, 116]]
    for r in range(32): A(f"v_mov_b32 v{ACC+r}, 0")
    A("s_lshl_b32 s56, s40, 11")
    A("s_lshl_b32 s57, s42, 10")
    A("s_add_u32 s56, s56, s57")
    A("s_lshl_b32 s57, s44, 19", "8 heads * 65536")
    A("s_add_u32 s56, s56, s57")
    A(f"s_add_u32 s56, s56, {hex(WS_O)}", "O' soffset")
    A(f"s_mov_b32 s52, {hex(WS_Y)}")
    A("s_barrier", "inputs published, Wo staged")
    ST(7)
    for n in range(8):
        A(f"s_add_u32 s57, s56, {n*65536}")
        A(f"buffer_load_dwordx4 {vr(OR+4*n,4)}, v2, s[4:7], s57 offen sc1")
    for p in range(3):
        A(f"buffer_load_dwordx4 {vr(Y+4*p,4)}, v{50+p}, s[4:7], s52 offen sc1")
    def wr(st, hd):
        for nt in range(2):
            a = "v3" if nt == 0 else "v1"
            A(f"ds_read_b64_tr_b16 {vr(WF[st][nt],2)}, {a} offset:{hd*2048}")
            A(f"ds_read_b64_tr_b16 {vr(WF[st][nt]+2,2)}, {a} offset:{hd*2048+1024}")
    wr(0, 0)
    for n in range(8):
        st = n & 1
        if n < 7:
            wr(1 - st, n + 1)
            lg = 4
        else:
            lg = 0
        A(f"s_waitcnt vmcnt({10 - n}) lgkmcnt({lg})")
        for nt in range(2):
            A(f"v_mfma_f32_32x32x16_bf16 {vr(ACC+16*nt,16)}, {vr(WF[st][nt],4)}, {vr(OR+4*n,4)}, {vr(ACC+16*nt,16)}")
    ST(8)
    A.c("exchange: slot [wave][part p = 2nt + half] = 2 KB; this wave owns part kq and reads it from the 3 other waves of its qt")
    A("s_lshl_b32 s48, s36, 13")
    A("s_add_u32 s48, s48, 0x10000")
    A("v_add_u32 v10, s48, v2", "own slots")
    A("s_nop 12")
    for p in range(4):
        A(f"ds_write_b128 v10, {vr(ACC+8*p,4)} offset:{p*2048}")
        A(f"ds_write_b128 v10, {vr(ACC+8*p+4,4)} offset:{p*2048+1024}")
    A.c("partners: waves qt + 2k (k = 0..3): address = 0x10000 + (qt + 2k)*8192 + kq*2048")
    A("s_lshl_b32 s48, s42, 13")
    A("s_lshl_b32 s49, s44, 11")
    A("s_add_u32 s48, s48, s49")
    A("s_add_u32 s48, s48, 0x10000")
    A("v_add_u32 v11, s48, v2")
    A("s_waitcnt lgkmcnt(0)")
    A("s_barrier")
    for k in range(4):
        A(f"ds_read_b128 {vr(72+8*k,4)}, v11 offset:{k*16384}")
        A(f"ds_read_b128 {vr(72+8*k+4,4)}, v11 offset:{k*16384+1024}")
    A("v_sub_f32 v54, 1.0, v55", "1-g")
    A("s_waitcnt vmcnt(0) lgkmcnt(0)")
    for r in range(8):
        A(f"v_add_f32 v{72+r}, v{72+r}, v{80+r}")
        A(f"v_add_f32 v{88+r}, v{88+r}, v{96+r}")
    for r in range(8): A(f"v_add_f32 v{72+r}, v{72+r}, v{88+r}")
    A("s_cmp_eq_u32 s50, 1")
    A("s_cbranch_scc1 K3_EPI_M")
    for r in range(8): A(f"v_mul_f32 v{40+r}, v54, v{Y+r}")
    A("s_branch K3_EPI2")
    A.label("K3_EPI_M")
    A.c("mirrored: first e' = 505 - n0 = 1 mod 4 -> loaded index 1..8 ; column r <-> index 8 - r")
    for r in range(8): A(f"v_mul_f32 v{40+r}, v54, v{Y+8-r}")
    A.label("K3_EPI2")
    for r in range(8): A(f"v_fmac_f32 v{40+r}, v55, v{72+r}")
    for j in range(4): A(f"v_cvt_pk_bf16_f32 v{48+j}, v{40+2*j}, v{40+2*j+1}")
    A("buffer_store_dwordx4 v[48:51], v4, s[8:11], 0 offen")
    ST(9)
    ST.dump(12)
    if opts.get("rt"): A("s_waitcnt vmcnt(0)")
    rt_stamp(A, 1, 1, opts.get("rt"))
    A("s_endpgm")
```

```python
from common import *

LDS_V = 65536
LDS_F = 131072
LDS_X = LDS_F + 12288
LDS_ONES = LDS_X + 18432
LDS_CNT = LDS_ONES + 1664
LDS_C3 = LDS_CNT + 64
K2_LDS = LDS_CNT + 80
assert LDS_ONES % 256 == 0 and K2_LDS <= 163840

def gen_k2(A, opts=None):
    opts = opts or {}
    F12 = opts.get("fuse12")
    SC1 = " sc1" if F12 else ""
    name = "k2_attn_kernel"
    if not F12:
        kernel_header(A, name)
        A.c("K2: attention (8 waves) + K/V loaders & FNet sequence-DFT stage (4 waves).  256 WGs x 768 threads")
        A("s_cmp_ge_u32 s2, 256")
        A("s_cbranch_scc1 K2_END")
        rt_stamp(A, 1, 0, opts.get("rt"))
    else:
        A.c("phase 2: attention (8 waves) + K/V loaders & FNet sequence-DFT stage (4 waves)")
    if not F12:
        A("s_load_dwordx4 s[24:27], s[0:1], 32", "seq_re, seq_im")
        A("s_load_dwordx2 s[34:35], s[0:1], 88", "ws")
        if opts.get("fuse23"):
            A("s_load_dwordx2 s[28:29], s[0:1], 16", "wo")
            A("s_load_dwordx4 s[84:87], s[0:1], 72", "out, debug")
    if not F12:
        A("v_lshrrev_b32 v1, 6, v0")
        A("v_and_b32 v0, 63, v0", "lane")
        A("v_readfirstlane_b32 s36, v1", "wave id")
    A("s_and_b32 s37, s2, 7", "x_")
    A("s_lshr_b32 s38, s2, 3", "r")
    A("s_and_b32 s39, s38, 3")
    A("s_lshl_b32 s40, s37, 2")
    A("s_add_u32 s40, s40, s39", "head = 4x_ + (r&3)   (also FNet t-block i)")
    A("s_lshr_b32 s41, s38, 2", "qb (also FNet e-block)")
    A("s_waitcnt lgkmcnt(0)")
    srd(A, 4, 34, WS_SIZE)
    A("s_mov_b32 s67, 0x200000", "budget of LDS spin iterations")
    ST = Stamps(A, opts.get("stamps"), 1, 4, 36)
    ST.dbg = opts.get("dbgst")
    if not F12: ST(0)
    if opts.get("clk"): clk_stamp(A, 12)
    if F12:
        ST(10)
        if opts.get("etouch", 0):
            A("s_and_b32 s52, s36, 12")
            A("s_cmp_eq_u32 s52, 4")
            A("s_cbranch_scc0 K2_NOET")
            A.c("waves 4..7: L2 warm-up (speed only) of the sequence-DFT rows of this workgroup's FNet tile (8 workgroups share them: 4 rows each)")
            A("s_lshl_b32 s50, s40, 5")
            A("s_lshl_b32 s51, s41, 2")
            A("s_add_u32 s50, s50, s51")
            A("s_sub_u32 s52, s36, 4")
            A("s_add_u32 s50, s50, s52", "row = 32i + 4j + k")
            A("s_lshl_b32 s50, s50, 12")
            A("v_and_b32 v8, 31, v0")
            A("v_lshlrev_b32 v8, 6, v8", "32 x 64 B = 2 KB")
            A("s_mov_b32 s8, s24"); A("s_and_b32 s9, s25, 0xffff"); A("s_mov_b32 s10, 0x800000"); A("s_mov_b32 s11, 0x20000")
            A("s_mov_b32 s12, s26"); A("s_and_b32 s13, s27, 0xffff"); A("s_mov_b32 s14, 0x800000"); A("s_mov_b32 s15, 0x20000")
            A("s_mov_b32 exec_hi, 0")
            A("buffer_load_dword v102, v8, s[8:11], s50 offen")
            A("buffer_load_dword v103, v8, s[12:15], s50 offen")
            A("s_mov_b64 exec, -1")
            A.label("K2_NOET")
        A("s_cmp_eq_u32 s36, 8")
        A("s_cbranch_scc0 K2_E2")
        A.c("wave 8: publish this workgroup's phase-1 flag, then wait for the 32 producers of this head group's Q/K/V")
        A(f"s_add_u32 s66, s66, {hex(WS_F1)}")
        A("v_mov_b32 v2, s65")
        A("v_mov_b32 v3, 0")
        A("s_mov_b64 exec, 1")
        A("buffer_store_dword v2, v3, s[4:7], s66 offen sc1")
        A("s_mov_b64 exec, -1")
        A.label("K2_E2")
    A("s_cmp_ge_u32 s36, 8")
    A("s_cbranch_scc1 K2_FNET")

    QA, QB, KF, V0, V1, P, SA, SB, OA, OB, CN = 4, 8, 12, 16, 20, 24, 32, 48, 64, 80, 100
    if F12 and opts.get("p3v2", 1): p3_setup(A)
    A("s_and_b32 s42, s36, 3", "qp: query-tile pair")
    A("s_lshr_b32 s49, s36, 2", "kh: key half")
    A("s_lshl_b32 s43, s41, 3")
    A("s_lshl_b32 s44, s42, 1")
    A("s_add_u32 s44, s44, s43", "q tile a = 8 qb + 2 qp")
    A("s_lshl_b32 s43, s40, 16")
    A("s_lshl_b32 s44, s44, 10")
    A("s_add_u32 s43, s43, s44", "head*65536 + tile_a*1024")
    A("v_lshlrev_b32 v1, 4, v0", "lane*16")
    A(f"s_add_u32 s45, s43, {hex(WS_Q)}" if WS_Q else "s_mov_b32 s45, s43")
    if not F12:
        A(f"buffer_load_dwordx4 {vr(QA,4)}, v1, s[4:7], s45 offen")
        A(f"buffer_load_dwordx4 {vr(QB,4)}, v1, s[4:7], s45 offen offset:1024")
    A("s_lshl_b32 s50, s49, 15", "kh*32768")
    A("v_add_u32 v2, s50, v1", "K address")
    A.c("V address: lanes with (l&31)<16 read V rows; the others read a strip of bf16 ones (row sums come out of the same MFMA)")
    A("v_lshrrev_b32 v3, 5, v0")
    A("v_lshlrev_b32 v3, 8, v3", "h*256")
    A("v_and_b32 v28, 15, v0")
    A("v_lshl_add_u32 v3, v28, 4, v3")
    A(f"s_add_u32 s51, s50, {LDS_V}")
    A("v_add_u32 v3, s51, v3", "real V address")
    A("v_add_u32 v28, 4, v0")
    A("v_bfe_u32 v28, v28, 3, 1", "1 for lanes 20..27 (mod 32)")
    A("v_lshlrev_b32 v28, 6, v28", "-> strip offset 64 (zeros, other banks)")
    if opts.get("zrows", 1):
        A("v_and_b32 v29, 31, v0")
        A("v_cmp_eq_u32 vcc, 16, v29")
        A("v_max_u32 v29, 16, v28", "other lanes: offset 16 or 64 (zeros)")
        A("v_mov_b32 v30, 0")
        A("v_cndmask_b32 v28, v29, v30, vcc", "lane 16 / 48: offset 0 (ones)")
    A(f"v_add_u32 v28, {LDS_ONES - 512}, v28")
    A("v_bfe_u32 v29, v0, 4, 1")
    A("v_cmp_eq_u32 vcc, 0, v29")
    A("v_mov_b32 v30, 0")
    A("v_mov_b32 v31, 2048")
    A("v_mov_b32 v97, v3", "real address (prologue / fallback)")
    A("v_cndmask_b32 v3, v28, v3, vcc")
    A("v_cndmask_b32 v96, v30, v31, vcc", "per-iteration increment (0 for ones lanes)")
    for r in range(16): A(f"v_mov_b32 v{OA+r}, 0")
    for r in range(16): A(f"v_mov_b32 v{OB+r}, 0")
    for r in range(4, 8): A(f"v_mov_b32 v{P+r}, 0")
    if opts.get("zrows", 1):
        A("v_and_b32 v29, 31, v0")
        A("v_cmp_eq_u32 vcc, 16, v29")
        A("v_mov_b32 v30, 0x3f803f80")
        A("v_mov_b32 v31, 0")
        A("v_cndmask_b32 v98, v31, v30, vcc", "ones in the row-16 lanes, zeros in rows 17..31")
    else:
        A("v_mov_b32 v98, 0x3f803f80")
    for r in range(4): A(f"v_mov_b32 v{V0+r}, v98")
    for r in range(4): A(f"v_mov_b32 v{V1+r}, 0")
    A("s_mov_b32 s46, 0x0000ffff")
    A("s_mov_b32 s47, 0x0000ffff", "exec mask of the real V lanes")
    A("s_mov_b32 s48, 0", "iteration")
    if opts.get("pprio"): A("s_setprio 3")
    if F12:
        A("s_barrier", "E2: this head group's Q/K/V are published")
        ST(11)
        A(f"buffer_load_dwordx4 {vr(QA,4)}, v1, s[4:7], s45 offen sc1")
        A(f"buffer_load_dwordx4 {vr(QB,4)}, v1, s[4:7], s45 offen offset:1024 sc1")
    A("s_barrier", "#0: chunk 0 of K/V landed")
    ST(1)
    A(f"ds_read_b128 {vr(KF,4)}, v2")
    A("s_mov_b64 exec, s[46:47]")
    A(f"ds_read_b128 {vr(V0,4)}, v97")
    A("s_mov_b64 exec, -1")
    if F12:
        A(f"v_mov_b32 v99, {LDS_CNT + 60}")
        A("ds_read_b32 v100, v99")
    A("s_waitcnt vmcnt(0) lgkmcnt(0)")
    if F12: A("v_readfirstlane_b32 s66, v100", "epoch")
    A(f"v_mfma_f32_32x32x16_bf16 {vr(SA,16)}, {vr(KF,4)}, {vr(QA,4)}, 0")
    A("s_nop 15")
    A.raw(".p2align 6")
    A.label("K2_LOOP")
    def substep(S, mid1, mid2, mid3):
        e = lambda j: A(f"v_exp_f32 v{S+j}, v{S+j}")
        cv = lambda j: A(f"v_cvt_pk_bf16_f32 v{P+j}, v{S+2*j}, v{S+2*j+1}")
        mid1()
        e(0); e(1); e(2); e(3); cv(0); cv(1)
        mid2()
        e(4); e(5); e(6); e(7); cv(2); cv(3); e(8); e(9)
        mid3()
        e(10); e(11); cv(4); e(12); e(13); cv(5); e(14); e(15); cv(6); cv(7)
    mf = lambda d, a, b, c: A(f"v_mfma_f32_32x32x16_bf16 {vr(d,16)}, {vr(a,4)}, {vr(b,4)}, {c}")
    for u in range(2):
        if u == 1:
            if F12:
                A("s_bitcmp1_b32 0x45, s48", "iterations 0, 2, 6")
                A("s_cbranch_scc0 K2_NOBAR")
                A.c("later K/V chunks: wait for the loaders' LDS counters (local tiles 2..5, 6..13, 14..31)")
                A("s_add_u32 s52, s48, 2")
                A("s_and_b32 s52, s52, 12")
                A(f"s_add_u32 s52, s52, {LDS_CNT + 48}")
                A("v_mov_b32 v99, s52")
                A.label("K2_CSPIN")
                A("ds_read_b32 v100, v99")
                A("s_waitcnt lgkmcnt(0)")
                A("v_readfirstlane_b32 s52, v100")
                A("s_cmp_ge_u32 s52, 4")
                A("s_cbranch_scc1 K2_NOBAR")
                A("s_sub_u32 s67, s67, 1")
                A("s_cmp_gt_i32 s67, 0", "bounded: never hang")
                A("s_cbranch_scc1 K2_CSPIN")
            else:
                A("s_and_b32 s52, s48, 13")
                A("s_cmp_eq_u32 s52, 0", "iterations 0 and 2")
                A("s_cbranch_scc0 K2_NOBAR")
            if F12:
                pass
            else:
                A("s_barrier", "#1 / #2: later K/V chunks landed")
            A.label("K2_NOBAR")
        def a1():
            mf(SB, KF, QB, "0")
            A(f"ds_read_b128 {vr(KF,4)}, v2 offset:{(u+1)*1024}")
        def a2():
            mf(OB, V1, P+4, vr(OB,16))
            A(f"ds_read_b128 {vr(V1,4)}, v3 offset:{u*1024+512}")
        def a3():
            A("s_waitcnt lgkmcnt(2)")
            mf(OA, V0, P, vr(OA,16))
        substep(SA, a1, a2, a3)
        def b1():
            A("s_waitcnt lgkmcnt(0)")
            mf(SA, KF, QA, "0")
        def b2():
            mf(OA, V1, P+4, vr(OA,16))
        def b3():
            mf(OB, V0, P, vr(OB,16))
            A(f"ds_read_b128 {vr(V0,4)}, v3 offset:{(u+1)*1024}")
        substep(SB, b1, b2, b3)
    A("v_add_u32 v2, 0x800, v2")
    A("v_add_u32 v3, v96, v3")
    if opts.get("itst"):
        A("s_memtime s[70:71]")
        A("s_lshl_b32 s72, s2, 4")
        A("s_add_u32 s72, s72, s36")
        A("s_lshl_b32 s72, s72, 6")
        A("s_lshl_b32 s73, s48, 2")
        A("s_add_u32 s72, s72, s73")
        A(f"s_add_u32 s72, s72, {hex(WS_STAMP + 3*0x40000)}")
        A("s_waitcnt lgkmcnt(0)")
        A("v_mov_b32 v99, s70")
        A("v_mov_b32 v100, 0")
        A("s_mov_b64 exec, 1")
        A("buffer_store_dword v99, v100, s[4:7], s72 offen")
        A("s_mov_b64 exec, -1")
    A("s_add_u32 s48, s48, 1")
    if opts.get("pprio"):
        A.c("a wave that is behind gets the higher priority: 3,2,1,0 for iterations 0-3, 4-7, 8-11, 12-15")
        for lv, itn in ((2, 4), (1, 8), (0, 12)):
            lab = A.newlabel("K2_PR")
            A(f"s_cmp_eq_u32 s48, {itn}")
            A(f"s_cbranch_scc0 {lab}")
            A(f"s_setprio {lv}")
            A.label(lab)
    A("s_cmp_lt_u32 s48, 16")
    A("s_cbranch_scc1 K2_LOOP")
    ST(2)
    mf(OB, V1, P+4, vr(OB,16))
    A("s_waitcnt lgkmcnt(0)")
    A("s_nop 15")
    A.c("combine the two key halves: wave kh keeps query tile (a if kh==0 else b) and hands the other one to its partner (wave ^ 4)")
    A("s_cmp_eq_u32 s49, 0")
    A("s_cbranch_scc1 K2_KEEPA")
    for r in range(9):
        A(f"v_mov_b32 v{32+r}, v{OA+r}", "give a")
        A(f"v_mov_b32 v{OA+r}, v{OB+r}", "keep b")
    A("s_add_u32 s43, s43, 1024", "own tile = b")
    A("s_branch K2_XCH")
    A.label("K2_KEEPA")
    for r in range(9): A(f"v_mov_b32 v{32+r}, v{OB+r}", "give b")
    A.label("K2_XCH")
    O = OA
    A("s_mul_i32 s50, s36, 2304")
    A(f"s_add_u32 s50, s50, {LDS_X}")
    A("v_lshlrev_b32 v28, 2, v0")
    A("v_add_u32 v29, s50, v28")
    for r in range(9): A(f"ds_write_b32 v29, v{32+r} offset:{r*256}")
    A("s_lshl_b32 s51, s36, 2")
    A(f"s_add_u32 s51, s51, {LDS_CNT + 16}")
    A("v_mov_b32 v30, s51")
    A("v_mov_b32 v31, 1")
    A("s_waitcnt lgkmcnt(0)")
    A("ds_write_b32 v30, v31", "flag: my hand-over is in LDS")
    A("s_xor_b32 s52, s36, 4", "partner")
    A("s_mul_i32 s50, s52, 2304")
    A(f"s_add_u32 s50, s50, {LDS_X}")
    A("v_add_u32 v29, s50, v28")
    A("s_lshl_b32 s51, s52, 2")
    A(f"s_add_u32 s51, s51, {LDS_CNT + 16}")
    A("v_mov_b32 v30, s51")
    A.label("K2_XSPIN")
    A("ds_read_b32 v31, v30")
    A("s_waitcnt lgkmcnt(0)")
    A("v_readfirstlane_b32 s52, v31")
    A("s_cmp_eq_u32 s52, 1")
    A("s_cbranch_scc1 K2_XGO")
    A("s_sleep 1")
    A("s_sub_u32 s67, s67, 1")
    A("s_cmp_gt_i32 s67, 0", "bounded: never hang")
    A("s_cbranch_scc1 K2_XSPIN")
    A.label("K2_XGO")
    for r in range(9): A(f"ds_read_b32 v{32+r}, v29 offset:{r*256}")
    A("s_waitcnt lgkmcnt(0)")
    for r in range(9): A(f"v_add_f32 v{O+r}, v{O+r}, v{32+r}")
    A.c("row 16 of O^T holds the row sum l (ones rows of the V operand)")
    def normalize():
        if opts.get("zrows", 1):
            A(f"v_mov_b32 v29, v{O+8}")
            A("s_nop 1")
            A(f"v_permlane32_swap_b32 v29, v{O+8}", "l lives in lanes 0..31 only: copy it to the upper half")
            A("s_nop 1")
            A(f"v_mov_b32 v{O+8}, v29")
        A(f"v_rcp_f32 v28, v{O+8}")
        A("s_nop 0")
        for r in range(8): A(f"v_mul_f32 v{O+r}, v{O+r}, v28")
    normalize()
    A(f"v_mov_b32 v29, v{O+8}", "l")
    A.c("run-time guard: softmax is shift invariant, so the unshifted exponentials give the same result as long as l stays far")
    A.c("from the fp32 range limits and O is finite; otherwise this tile is recomputed below with the true row max subtracted")
    A(f"v_add_f32 v30, abs(v{O}), abs(v{O+1})")
    for r in range(2, 8): A(f"v_add_f32 v30, v30, abs(v{O+r})")
    A(f"v_cmp_nle_f32 vcc, {hex(f2u(2.0**-60))}, v29", "!(2^-60 <= l)")
    A(f"s_mov_b32 s50, {hex(f2u(2.0**60))}")
    A(f"v_cmp_nle_f32 s[52:53], v29, s50", "!(l <= 2^60)")
    A(f"s_mov_b32 s50, {hex(f2u(2.0**126))}")
    A(f"v_cmp_nle_f32 s[54:55], v30, s50", "O not finite")
    A("s_nop 4")
    A("s_or_b64 vcc, vcc, s[52:53]")
    A("s_or_b64 vcc, vcc, s[54:55]")
    if opts.get("force_fallback"):
        A("s_mov_b64 vcc, -1")
    A("s_cmp_lg_u64 vcc, 0")
    A("s_cbranch_scc1 K2_FALLBACK")
    A.label("K2_STORE")
    for j in range(4): A(f"v_cvt_pk_bf16_f32 v{P+j}, v{O+2*j}, v{O+2*j+1}")
    A(f"s_add_u32 s45, s43, {hex(WS_O)}")
    SC = " sc1" if opts.get("fuse23") else ""
    A(f"buffer_store_dwordx4 {vr(P,4)}, v1, s[4:7], s45 offen{SC}")
    ST(3)
    if opts.get("clk"): clk_stamp(A, 14)
    if F12:
        A.c("publish this wave's O' tile: flag word [head][tile>>1][tile&1]")
        A("s_lshl_b32 s50, s40, 5")
        A("s_lshl_b32 s51, s41, 2")
        A("s_add_u32 s50, s50, s51")
        A("s_and_b32 s51, s36, 3")
        A("s_add_u32 s50, s50, s51", "head*32 + 4qb + qp")
        A("s_lshl_b32 s50, s50, 7")
        A("s_lshl_b32 s51, s49, 2")
        A("s_add_u32 s50, s50, s51")
        A(f"s_add_u32 s50, s50, {hex(WS_F2O)}")
        A("v_mov_b32 v28, s66")
        A("v_mov_b32 v29, 0")
        A("s_waitcnt vmcnt(0)", "the tile has reached memory")
        A("s_mov_b64 exec, 1")
        A("buffer_store_dword v28, v29, s[4:7], s50 offen sc1")
        A("s_mov_b64 exec, -1")
        A("s_branch K3_ENTRY" if opts.get("p3v2", 1) else "s_branch K2_PHASE3B")
    elif opts.get("fuse23"):
        A("s_branch K2_PHASE3")
    else:
        ST.dump(4)
        if opts.get("rt"): A("s_waitcnt vmcnt(0)")
        rt_stamp(A, 1, 1, opts.get("rt"))
        A("s_endpgm")

    A.label("K2_FALLBACK")
    Q = QA
    A("s_cmp_eq_u32 s49, 0")
    A("s_cbranch_scc1 K2_FB0")
    for r in range(4): A(f"v_mov_b32 v{QA+r}, v{QB+r}")
    A.label("K2_FB0")
    A("v_mov_b32 v2, v1")
    A("v_mov_b32 v29, 0xff800000", "running max = -inf")
    A("s_mov_b32 s48, 0")
    A.label("K2_FB1")
    A(f"ds_read_b128 {vr(KF,4)}, v2")
    A("s_waitcnt lgkmcnt(0)")
    A(f"v_mfma_f32_32x32x16_bf16 {vr(SA,16)}, {vr(KF,4)}, {vr(Q,4)}, 0")
    A("s_nop 15")
    for r in range(0, 16, 2): A(f"v_max3_f32 v29, v{SA+r}, v{SA+r+1}, v29")
    A("v_add_u32 v2, 1024, v2")
    A("s_add_u32 s48, s48, 1")
    A("s_cmp_lt_u32 s48, 64")
    A("s_cbranch_scc1 K2_FB1")
    A("v_mov_b32 v30, v29")
    A("s_nop 1")
    A("v_permlane32_swap_b32 v30, v29")
    A("s_nop 1")
    A("v_max_f32 v29, v29, v30", "row max over both lane halves")
    for r in range(16): A(f"v_sub_f32 v{CN+r}, 0, v29")
    for r in range(16): A(f"v_mov_b32 v{O+r}, 0")
    for r in range(8): A(f"v_mov_b32 v{V0+r}, v98")
    A("v_mov_b32 v2, v1")
    A("s_lshl_b32 s50, s49, 15")
    A("v_subrev_u32 v3, s50, v97", "V address of tile 0")
    A("s_mov_b32 s48, 0")
    A.label("K2_FB2")
    A(f"ds_read_b128 {vr(KF,4)}, v2")
    A("s_mov_b64 exec, s[46:47]")
    A(f"ds_read_b128 {vr(V0,4)}, v3")
    A(f"ds_read_b128 {vr(V1,4)}, v3 offset:512")
    A("s_mov_b64 exec, -1")
    A("s_waitcnt lgkmcnt(0)")
    A(f"v_mfma_f32_32x32x16_bf16 {vr(SA,16)}, {vr(KF,4)}, {vr(Q,4)}, {vr(CN,16)}")
    A("s_nop 15")
    for r in range(16): A(f"v_exp_f32 v{SA+r}, v{SA+r}")
    A("s_nop 0")
    for j in range(8): A(f"v_cvt_pk_bf16_f32 v{P+j}, v{SA+2*j}, v{SA+2*j+1}")
    A("s_nop 1")
    A(f"v_mfma_f32_32x32x16_bf16 {vr(O,16)}, {vr(V0,4)}, {vr(P,4)}, {vr(O,16)}")
    A(f"v_mfma_f32_32x32x16_bf16 {vr(O,16)}, {vr(V1,4)}, {vr(P+4,4)}, {vr(O,16)}")
    A("v_add_u32 v2, 1024, v2")
    A("v_add_u32 v3, 1024, v3")
    A("s_add_u32 s48, s48, 1")
    A("s_cmp_lt_u32 s48, 64")
    A("s_cbranch_scc1 K2_FB2")
    A("s_nop 15")
    normalize()
    A("s_branch K2_STORE")

    A.label("K2_FNET")
    A("s_setprio 3" if F12 else f"s_setprio {opts.get('fprio', 2)}")
    A("s_sub_u32 s42, s36, 8", "j")
    if opts.get("fuse23") and not F12:
        srd(A, 12, 86, 0x100)
        A.c("launch epoch: workgroup 0 publishes a nonzero time stamp in d_debug[0] (zero at launch); hand-off flags in d_ws carry it")
        A("s_or_b32 s50, s2, s42")
        A("s_cmp_eq_u32 s50, 0")
        A("s_cbranch_scc0 K2_NOEPOCH")
        A("s_memrealtime s[50:51]")
        A("s_waitcnt lgkmcnt(0)")
        A("s_or_b32 s50, s50, 1")
        A("v_mov_b32 v2, s50")
        A("v_mov_b32 v3, 0")
        A("s_mov_b64 exec, 1")
        A("buffer_store_dword v2, v3, s[12:15], 0 offen sc1")
        A("s_mov_b64 exec, -1")
        A("s_waitcnt vmcnt(0)")
        A.label("K2_NOEPOCH")
    A("v_lshlrev_b32 v1, 4, v0", "lane*16")
    A("s_lshl_b32 s43, s40, 16", "head*65536")
    A(f"s_add_u32 s44, s43, {hex(WS_K)}")
    A(f"s_add_u32 s45, s43, {hex(WS_V)}")
    def dma(first_tile_sreg, n, lab):
        A("s_mov_b32 s48, 0")
        A.label(lab)
        A("s_mov_b32 m0, s46")
        A("s_add_u32 s47, s44, s46")
        A("buffer_load_dwordx4 v1, s[4:7], s47 offen lds")
        A(f"s_add_u32 m0, s46, {LDS_V}")
        A("s_add_u32 s47, s45, s46")
        A("buffer_load_dwordx4 v1, s[4:7], s47 offen lds")
        A("s_add_u32 s46, s46, 1024")
        A("s_add_u32 s48, s48, 1")
        A(f"s_cmp_lt_u32 s48, {n}")
        A(f"s_cbranch_scc1 {lab}")
    if F12:
        A.c("K/V through registers (device-scope loads): local tiles chunk 0: {0,1}; chunk 1: {2..5}; chunk 2: {6..31}; wave j: half = j>>1")
        A("s_lshr_b32 s52, s42, 1")
        A("s_lshl_b32 s52, s52, 15", "half*32768")
        A("s_and_b32 s53, s42, 1")
        def kv_load(reg, soff_reg, add):
            A(f"s_add_u32 s47, s44, s{soff_reg}")
            if add: A(f"s_add_u32 s47, s47, {add}")
            A(f"buffer_load_dwordx4 {vr(reg,4)}, v1, s[4:7], s47 offen sc1")
            A(f"s_add_u32 s47, s45, s{soff_reg}")
            if add: A(f"s_add_u32 s47, s47, {add}")
            A(f"buffer_load_dwordx4 {vr(reg+4,4)}, v1, s[4:7], s47 offen sc1")
        def kv_write(reg, areg, off):
            A(f"ds_write_b128 v{areg}, {vr(reg,4)} offset:{off}")
            A(f"ds_write_b128 v{areg+1}, {vr(reg+4,4)} offset:{off}")
        A("s_lshl_b32 s46, s53, 10")
        A("s_add_u32 s46, s46, s52", "chunk 0 tile offset")
        A("s_lshl_b32 s54, s53, 11")
        A("s_add_u32 s54, s54, s52")
        A("s_add_u32 s54, s54, 2048", "chunk 1 tile offset")
        A("s_lshl_b32 s55, s53, 12")
        A("s_add_u32 s55, s55, s52")
        A("s_add_u32 s55, s55, 6144", "chunk 2a: tiles 6 + 4 sub ..")
        A("s_mul_i32 s56, s53, 9216")
        A("s_add_u32 s56, s56, s52")
        A("s_add_u32 s56, s56, 14336", "chunk 2b: tiles 14 + 9 sub ..")
        A("v_add_u32 v32, s46, v1"); A(f"v_add_u32 v33, {LDS_V}, v32")
        A("v_add_u32 v34, s54, v1"); A(f"v_add_u32 v35, {LDS_V}, v34")
        A("v_add_u32 v36, s55, v1"); A(f"v_add_u32 v37, {LDS_V}, v36")
        A("v_add_u32 v38, s56, v1"); A(f"v_add_u32 v39, {LDS_V}, v38")
        A.c("ones strip and flags")
        if opts.get("zrows", 1):
            A("v_and_b32 v5, 15, v0")
            A("v_cmp_eq_u32 vcc, 0, v5")
            A("v_mov_b32 v6, 0x3f803f80")
            A("v_mov_b32 v7, 0")
            A("v_cndmask_b32 v4, v7, v6, vcc")
        else:
            A("v_mov_b32 v4, 0x3f803f80")
        A("v_mov_b32 v5, v4")
        A("v_mov_b32 v6, v4")
        A("v_mov_b32 v7, v4")
        A(f"v_add_u32 v2, {LDS_ONES}, v1")
        A("ds_write_b128 v2, v[4:7]")
        A("s_mov_b32 exec_lo, -1")
        A("s_mov_b32 exec_hi, 0xff", "40 lanes: 640 B")
        A("ds_write_b128 v2, v[4:7] offset:1024")
        A("s_mov_b64 exec, -1")
        A("s_cmp_eq_u32 s36, 8")
        A("s_cbranch_scc0 K2_NOEPL")
        A("s_mov_b64 exec, 0x1f")
        A("v_mov_b32 v4, 0")
        A("v_mov_b32 v5, 0")
        A("v_mov_b32 v6, 0")
        A("v_mov_b32 v7, 0")
        A(f"v_add_u32 v2, {LDS_CNT}, v1")
        A("ds_write_b128 v2, v[4:7]")
        A("s_mov_b64 exec, -1")
        A("s_waitcnt lgkmcnt(0)")
        A(f"v_mov_b32 v2, {LDS_CNT + 60}")
        A("v_mov_b32 v4, s65")
        A("ds_write_b32 v2, v4", "epoch for the attention waves")
        A.label("K2_NOEPL")
        A("s_waitcnt lgkmcnt(0)")
        A("s_cmp_eq_u32 s36, 8")
        A("s_cbranch_scc0 K2_E2L")
        A.c("wave 8: wait for the 32 producers of this head group's Q/K/V")
        A.c("producers of head group hg = x_: b = 2(hg>>1) + (l&1) + 8*(((l>>1)&1) + 2(hg&1) + 4(l>>2)), l = lane&31")
        A("v_and_b32 v40, 1, v0")
        A("v_bfe_u32 v41, v0, 1, 1")
        A("v_bfe_u32 v42, v0, 2, 3")
        A("v_lshl_add_u32 v41, v42, 2, v41")
        A("s_and_b32 s52, s37, 1")
        A("s_lshl_b32 s52, s52, 1")
        A("v_add_u32 v41, s52, v41")
        A("v_lshl_add_u32 v40, v41, 3, v40")
        A("s_and_b32 s52, s37, 6")
        A("v_add_u32 v40, s52, v40")
        A("v_lshlrev_b32 v40, 7, v40")
        A(f"s_mov_b32 s52, {hex(WS_F1)}")
        A("s_mov_b32 s51, 0")
        ST(4)
        A(f"s_sleep {opts.get('sleep0', 12)}")
        A.label("K2_POLL1")
        A("buffer_load_dword v41, v40, s[4:7], s52 offen sc1")
        A("s_waitcnt vmcnt(0)")
        A("v_cmp_ne_u32 vcc, s65, v41")
        A("s_add_u32 s51, s51, 1")
        A("s_nop 3")
        A("s_cmp_eq_u64 vcc, 0")
        A("s_cbranch_scc1 K2_E2P")
        A(f"s_sleep {opts.get('sleep1', 6)}")
        A("s_cmp_lt_u32 s51, 0x40000", "bounded: never hang")
        A("s_cbranch_scc1 K2_POLL1")
        A.label("K2_E2P")
        if opts.get("stamps"):
            ST(5)
            A("s_mov_b32 s80, s51")
        A.label("K2_E2L")
        A("s_barrier", "E2: this head group's Q/K/V are published")
        ST(11)
        kv_load(8, 46, 0)
        kv_load(16, 54, 0); kv_load(24, 54, 1024)
        A("s_waitcnt vmcnt(4)")
        kv_write(8, 32, 0)
        A("s_waitcnt lgkmcnt(0)")
        A("s_barrier", "#0")
        ST(1)
        A("s_waitcnt vmcnt(0)")
        kv_write(16, 34, 0); kv_write(24, 34, 1024)
        A(f"v_mov_b32 v4, {LDS_CNT + 48}")
        A("v_mov_b32 v5, 1")
        A("s_waitcnt lgkmcnt(0)")
        A("s_mov_b64 exec, 1")
        A("ds_add_u32 v4, v5", "chunk 1 in LDS")
        A("s_mov_b64 exec, -1")
        for t in range(4): kv_load(40 + 8*t, 55, t*1024)
        for t in range(4): kv_load(72 + 8*t, 56, t*1024)
        for t in range(4):
            A(f"s_waitcnt vmcnt({14 - 2*t})")
            kv_write(40 + 8*t, 36, t*1024)
        A("s_waitcnt lgkmcnt(0)")
        A("s_mov_b64 exec, 1")
        A("ds_add_u32 v4, v5 offset:4", "chunk 2a in LDS")
        A("s_mov_b64 exec, -1")
        for t in range(4, 9): kv_load(72 + 8*t, 56, t*1024)
        for t in range(9):
            A(f"s_waitcnt vmcnt({16 - 2*t})")
            kv_write(72 + 8*t, 38, t*1024)
        A("s_waitcnt lgkmcnt(0)")
        A("s_mov_b64 exec, 1")
        A("ds_add_u32 v4, v5 offset:8", "chunk 2b in LDS")
        A("s_mov_b64 exec, -1")
        ST(2)
    else:
        A.c("local tiles (per key half): chunk 0: {0,1}; chunk 1: {2..5}; chunk 2: {6..31}.  wave j: half = j>>1")
        A("s_lshr_b32 s52, s42, 1")
        A("s_lshl_b32 s52, s52, 15", "half*32768")
        A("s_and_b32 s53, s42, 1")
        A("s_lshl_b32 s46, s53, 10")
        A("s_add_u32 s46, s46, s52")
        dma(46, 1, "K2_DMA0")
        A("s_lshl_b32 s46, s53, 11")
        A("s_add_u32 s46, s46, s52")
        A("s_add_u32 s46, s46, 2048")
        dma(46, 2, "K2_DMA1")
        A.c("ones strip and flags")
        if opts.get("zrows", 1):
            A("v_and_b32 v5, 15, v0")
            A("v_cmp_eq_u32 vcc, 0, v5")
            A("v_mov_b32 v6, 0x3f803f80")
            A("v_mov_b32 v7, 0")
            A("v_cndmask_b32 v4, v7, v6, vcc")
        else:
            A("v_mov_b32 v4, 0x3f803f80")
        A("v_mov_b32 v5, v4")
        A("v_mov_b32 v6, v4")
        A("v_mov_b32 v7, v4")
        A(f"v_add_u32 v2, {LDS_ONES}, v1")
        A("ds_write_b128 v2, v[4:7]")
        A("s_mov_b32 exec_lo, -1")
        A("s_mov_b32 exec_hi, 0xff", "40 lanes: 640 B")
        A("ds_write_b128 v2, v[4:7] offset:1024")
        A("s_mov_b64 exec, 0xf")
        A("v_mov_b32 v4, 0")
        A("v_mov_b32 v5, 0")
        A("v_mov_b32 v6, 0")
        A("v_mov_b32 v7, 0")
        A(f"v_add_u32 v2, {LDS_CNT}, v1")
        A("ds_write_b128 v2, v[4:7]")
        A("s_mov_b64 exec, -1")
        A("s_waitcnt vmcnt(4) lgkmcnt(0)")
        A("s_barrier", "#0")
        ST(1)
        A("s_mul_i32 s46, s53, 13312")
        A("s_add_u32 s46, s46, s52")
        A("s_add_u32 s46, s46, 6144")
        dma(46, 3, "K2_DMA2a")
        A("s_waitcnt vmcnt(6)")
        A("s_barrier", "#1")
        dma(46, 10, "K2_DMA2")
        ST(2)

    FR = 8
    E = 136
    NS = 16
    def job_setup(ti, ej, first):
        A(f"s_lshl_b32 s56, s{ti}, 5")
        A("v_and_b32 v2, 31, v0")
        A("v_add_u32 v3, s56, v2", "t = 32 i + (l&31)")
        A("v_lshlrev_b32 v2, 12, v3")
        A("v_lshrrev_b32 v4, 5, v0")
        A("v_lshl_add_u32 v2, v4, 4, v2", "t*4096 + h*16")
        if first:
            A.c("wave j: chain = j>>1 (0: E = Cr x A', 1: G = Ci x B'), K half = j&1")
            A("s_and_b32 s57, s42, 1")
            A("s_lshl_b32 s57, s57, 5", "ks0 = 32*(j&1)")
            A(f"s_mov_b32 s58, {hex(WS_BP)}")
            A("s_cmp_lt_u32 s42, 2")
            A("s_cselect_b32 s8, s24, s26")
            A("s_cselect_b32 s9, s25, s27")
            A(f"s_cselect_b32 s58, {hex(WS_AP)}, s58")
        else:
            A("s_lshl_b32 s57, s42, 4", "ks0 = 16 j")
            A("s_mov_b32 s8, s24")
            A("s_mov_b32 s9, s25")
            A(f"s_mov_b32 s58, {hex(WS_AP)}")
        A("s_and_b32 s9, s9, 0xffff")
        A("s_mov_b32 s10, 0x800000")
        A("s_mov_b32 s11, 0x20000")
        A(f"s_lshl_b32 s56, s{ej}, 16", "eblk*65536")
        A("s_add_u32 s60, s56, s58")
        A("s_lshl_b32 s56, s57, 10")
        A("s_add_u32 s60, s60, s56", "fragment base + ks0*1024")
        A("s_lshl_b32 s62, s57, 5", "ks0*32")
    def issue(slot, n):
        b = FR + 8*slot
        A(f"s_add_u32 s58, s60, {n*1024}")
        A(f"s_add_u32 s59, s62, {n*32}")
        A(f"buffer_load_dwordx4 {vr(b,4)}, v1, s[4:7], s58 offen{SC1}")
        A(f"buffer_load_dwordx4 {vr(b+4,4)}, v2, s[8:11], s59 offen")
    def job_run(nsteps, jobidx, ej, tag):
        hasG = nsteps == 32
        for r in range(16): A(f"v_mov_b32 v{E+r}, 0")
        for n in range(nsteps):
            slot = n % NS
            b = FR + 8*slot
            rem_first = nsteps - NS
            cnt = 2*(NS-1) if n < rem_first else 2*(nsteps - 1 - n)
            BT = opts.get("btouch", 0) and jobidx == 0 and F12
            if BT and n == rem_first:
                A.c("L2 warm-up (speed only) of job B's rows (t-block min(b,32), Cr): wave j touches rows 8j..8j+7")
                A("s_min_u32 s56, s2, 32")
                A("s_lshl_b32 s56, s56, 5")
                A("s_lshl_b32 s57, s42, 3")
                A("s_add_u32 s56, s56, s57")
                A("s_lshl_b32 s56, s56, 12")
                A("v_and_b32 v5, 31, v0")
                A("v_lshlrev_b32 v5, 6, v5")
                A("v_lshrrev_b32 v6, 5, v0")
                A("v_lshl_add_u32 v5, v6, 12, v5", "2 rows per instruction")
                A("s_mov_b32 s16, s24"); A("s_and_b32 s17, s25, 0xffff"); A("s_mov_b32 s18, 0x800000"); A("s_mov_b32 s19, 0x20000")
                for u in range(4):
                    A(f"s_add_u32 s57, s56, {u*8192}")
                    A("buffer_load_dword v167, v5, s[16:19], s57 offen")
            if BT and n >= rem_first: cnt += 4
            A(f"s_waitcnt vmcnt({cnt})")
            A(f"v_mfma_f32_32x32x16_bf16 {vr(E,16)}, {vr(b,4)}, {vr(b+4,4)}, {vr(E,16)}")
            if n < rem_first: issue(slot, n + NS)
        A("s_nop 15")
        base = LDS_F
        A("s_cmp_eq_u32 s42, 0")
        A(f"s_cbranch_scc1 K2_COMB{tag}")
        if jobidx == 1:
            A.c("the partial-tile area is shared with job A: wait until wave 0 has read job A's partials")
            A(f"v_mov_b32 v6, {LDS_CNT + 8}")
            A.label("K2_SPINC")
            A("ds_read_b32 v7, v6")
            A("s_waitcnt lgkmcnt(0)")
            A("v_readfirstlane_b32 s57, v7")
            A("s_cmp_eq_u32 s57, 1")
            A("s_cbranch_scc1 K2_GOC")
            A("s_sleep 4")
            A("s_sub_u32 s67, s67, 1")
            A("s_cmp_gt_i32 s67, 0")
            A("s_cbranch_scc1 K2_SPINC")
            A.label("K2_GOC")
        A.c("waves 1..3: publish the partial tile in LDS")
        A("s_lshl_b32 s56, s42, 12")
        A(f"s_add_u32 s56, s56, {base - 4096}")
        A("v_add_u32 v5, s56, v1")
        for m in range(4): A(f"ds_write_b128 v5, {vr(E+4*m,4)} offset:{m*1024}")
        A(f"v_mov_b32 v6, {LDS_CNT + 4*jobidx}")
        A("v_mov_b32 v7, 1")
        A("s_waitcnt lgkmcnt(0)")
        A("s_mov_b64 exec, 1")
        A("ds_add_u32 v6, v7")
        A("s_waitcnt lgkmcnt(0)")
        A("s_mov_b64 exec, -1")
        A(f"s_branch K2_JOBDONE{tag}")
        A.label(f"K2_COMB{tag}")
        A.c("wave 0: wait for the three partials; E += (-1)^t A1024[e];  Ym = E - G, Yp = E + G")
        A("v_lshrrev_b32 v4, 5, v0")
        A("v_lshlrev_b32 v4, 4, v4", "4h*4 bytes")
        A(f"s_lshl_b32 s56, s{ej}, 7", "e0*4")
        A(f"s_add_u32 s57, s56, {hex(WS_A1024)}")
        for m in range(4):
            A(f"buffer_load_dwordx4 {vr(FR+4*m,4)}, v4, s[4:7], s57 offen offset:{m*32}{SC1}")
        A(f"v_mov_b32 v6, {LDS_CNT + 4*jobidx}")
        A.label(f"K2_SPIN{tag}")
        A("ds_read_b32 v7, v6")
        A("s_waitcnt lgkmcnt(0)")
        A("v_readfirstlane_b32 s57, v7")
        A("s_cmp_eq_u32 s57, 3")
        A(f"s_cbranch_scc1 K2_GO{tag}")
        A("s_sleep 4")
        A("s_sub_u32 s67, s67, 1")
        A("s_cmp_gt_i32 s67, 0")
        A(f"s_cbranch_scc1 K2_SPIN{tag}")
        A.label(f"K2_GO{tag}")
        A(f"v_add_u32 v5, {base}, v1")
        for p in range(3):
            for m in range(4):
                A(f"ds_read_b128 {vr(FR+16+16*p+4*m,4)}, v5 offset:{p*4096 + m*1024}")
        A("v_and_b32 v6, 1, v0")
        A("v_lshlrev_b32 v6, 31, v6")
        A("v_or_b32 v6, 1.0, v6", "(-1)^t")
        A(f"s_movk_i32 s58, {YSB}")
        A("v_mul_lo_u32 v7, v3, s58")
        A("v_add_u32 v7, v7, v4", "t*YSB + 4h*4")
        A("s_waitcnt vmcnt(0) lgkmcnt(0)")
        if jobidx == 0:
            A(f"v_mov_b32 v5, {LDS_CNT + 8}")
            A("v_mov_b32 v4, 1")
            A("ds_write_b32 v5, v4", "job A partials consumed")
        P1, P2, P3 = FR+16, FR+32, FR+48
        for r in range(16): A(f"v_fmac_f32 v{E+r}, v6, v{FR+r}")
        for r in range(16): A(f"v_add_f32 v{E+r}, v{E+r}, v{P1+r}")
        for r in range(16): A(f"v_add_f32 v{P2+r}, v{P2+r}, v{P3+r}")
        if hasG:
            for r in range(16):
                A(f"v_sub_f32 v{P1+r}, v{E+r}, v{P2+r}")
                A(f"v_add_f32 v{P3+r}, v{E+r}, v{P2+r}")
            ym, yp = P1, P3
        else:
            for r in range(16): A(f"v_add_f32 v{E+r}, v{E+r}, v{P2+r}")
            ym, yp = E, E
        if opts.get("fuse23"):
            A.c("Y tiles: [(i*9 + j)*2 + arr][m][lane][4] : every store instruction writes 1 KB of whole lines")
            ti = 40 if jobidx == 0 else 63
            A(f"s_mul_i32 s57, s{ti}, 9")
            A(f"s_add_u32 s57, s57, s{ej}")
            A("s_lshl_b32 s57, s57, 13")
            A(f"s_add_u32 s57, s57, {hex(WS_Y)}")
            A("s_add_u32 s58, s57, 4096")
            for m in range(4):
                A(f"buffer_store_dwordx4 {vr(ym+4*m,4)}, v1, s[4:7], s57 offen offset:{m*1024} sc1")
                A(f"buffer_store_dwordx4 {vr(yp+4*m,4)}, v1, s[4:7], s58 offen offset:{m*1024} sc1")
        else:
            A(f"s_add_u32 s57, s56, {hex(WS_YM)}")
            A(f"s_add_u32 s58, s56, {hex(WS_YP)}")
            for m in range(4):
                A(f"buffer_store_dwordx4 {vr(ym+4*m,4)}, v7, s[4:7], s57 offen offset:{m*32}")
                A(f"buffer_store_dwordx4 {vr(yp+4*m,4)}, v7, s[4:7], s58 offen offset:{m*32}")
        A.label(f"K2_JOBDONE{tag}")

    if opts.get("nofnet"):
        A("s_waitcnt vmcnt(0) lgkmcnt(0)")
        A("s_barrier")
        A("s_endpgm")
    job_setup(40, 41, True)
    if F12:
        A.c("FNet needs every phase-1 workgroup: wave 8 polls all 8 flag lines, then releases waves 9..11 through LDS")
        A(f"v_mov_b32 v4, {LDS_CNT + 12}")
        A("s_cmp_eq_u32 s36, 8")
        A("s_cbranch_scc0 K2_FWAIT")
        A("v_lshlrev_b32 v5, 7, v0")
        A(f"s_mov_b32 s52, {hex(WS_F1)}")
        A("s_mov_b32 s51, 0")
        A.label("K2_POLLF")
        for q in range(4):
            A(f"s_add_u32 s53, s52, {q*8192}")
            A(f"buffer_load_dword v{8+q}, v5, s[4:7], s53 offen sc1")
        A("s_waitcnt vmcnt(0)")
        for q in range(4): A(f"v_xor_b32 v{8+q}, s65, v{8+q}")
        A("v_or_b32 v8, v8, v9")
        A("v_or3_b32 v8, v8, v10, v11")
        A("v_cmp_ne_u32 vcc, 0, v8")
        A("s_add_u32 s51, s51, 1")
        A("s_nop 3")
        A("s_cmp_eq_u64 vcc, 0")
        A("s_cbranch_scc1 K2_FGO")
        A("s_sleep 8")
        A("s_cmp_lt_u32 s51, 0x40000")
        A("s_cbranch_scc1 K2_POLLF")
        A.label("K2_FGO")
        A("v_mov_b32 v5, 1")
        A("ds_write_b32 v4, v5")
        A("s_waitcnt lgkmcnt(0)")
        A("s_branch K2_FSTART")
        A.label("K2_FWAIT")
        A("ds_read_b32 v5, v4")
        A("s_waitcnt lgkmcnt(0)")
        A("v_readfirstlane_b32 s52, v5")
        A("s_cmp_eq_u32 s52, 1")
        A("s_cbranch_scc1 K2_FSTART")
        A("s_sleep 4")
        A("s_sub_u32 s67, s67, 1")
        A("s_cmp_gt_i32 s67, 0")
        A("s_cbranch_scc1 K2_FWAIT")
        A.label("K2_FSTART")
    else:
        A("s_waitcnt vmcnt(0)")
        A("s_barrier", "#2: all of K/V landed")
    ST(3)
    if opts.get("fuse23") and not F12:
        A.c("epoch (wave 8 only): d_debug[0] becomes nonzero once workgroup 0 has started")
        A("s_cmp_eq_u32 s36, 8")
        A("s_cbranch_scc0 K2_EPDONE")
        A("v_mov_b32 v5, 0")
        A("s_mov_b32 s51, 0")
        A.label("K2_EPSPIN")
        A("buffer_load_dword v6, v5, s[12:15], 0 offen sc1")
        A("s_waitcnt vmcnt(0)")
        A("v_readfirstlane_b32 s65, v6")
        A("s_add_u32 s51, s51, 1")
        A("s_cmp_lg_u32 s65, 0")
        A("s_cbranch_scc1 K2_EPDONE")
        A("s_sleep 8")
        A("s_cmp_lt_u32 s51, 0x40000")
        A("s_cbranch_scc1 K2_EPSPIN")
        A.label("K2_EPDONE")
    if F12: A(f"s_setprio {opts.get('fprio', 2)}")
    if opts.get("skipjobs"): A("s_branch K2_FEND")
    if opts.get("ftouch", 0) and F12:
        A.c("L2 warm-up (speed only): this wave's share of the DFT rows: job A tile (8 workgroups share the t-block: row 32i + 4j + k) and job B rows")
        A("s_lshl_b32 s50, s40, 5")
        A("s_lshl_b32 s51, s41, 2")
        A("s_add_u32 s50, s50, s51")
        A("s_add_u32 s50, s50, s42")
        A("s_lshl_b32 s50, s50, 12")
        A("v_and_b32 v5, 31, v0")
        A("v_lshlrev_b32 v5, 6, v5", "32 x 64 B = 2 KB of a row")
        A("s_mov_b32 s16, s24"); A("s_and_b32 s17, s25, 0xffff"); A("s_mov_b32 s18, 0x800000"); A("s_mov_b32 s19, 0x20000")
        A("s_mov_b32 s20, s26"); A("s_and_b32 s21, s27, 0xffff"); A("s_mov_b32 s22, 0x800000"); A("s_mov_b32 s23, 0x20000")
        A("s_mov_b32 exec_hi, 0")
        A("buffer_load_dword v166, v5, s[16:19], s50 offen")
        A("buffer_load_dword v167, v5, s[20:23], s50 offen")
        A("s_mov_b64 exec, -1")
        if opts.get("ftouch", 1) == 2:
            A("s_cmp_ge_u32 s2, 41")
            A("s_cbranch_scc1 K2_NOFTB")
            A("s_min_u32 s56, s2, 32")
            A("s_lshl_b32 s56, s56, 5")
            A("s_lshl_b32 s57, s42, 3")
            A("s_add_u32 s56, s56, s57")
            A("s_lshl_b32 s56, s56, 12")
            A("v_lshrrev_b32 v6, 5, v0")
            A("v_lshl_add_u32 v5, v6, 12, v5", "2 rows per instruction")
            for u in range(4):
                A(f"s_add_u32 s57, s56, {u*8192}")
                A("buffer_load_dword v167, v5, s[16:19], s57 offen")
            A.label("K2_NOFTB")
    for n in range(NS): issue(n, n)
    job_run(32, 0, 41, "A")
    if not opts.get("pollst"): ST(4)
    if opts.get("fuse23"):
        A.c("L2 warm-up of this workgroup's Wo columns (512 rows x 128 B): 128 lines per wave")
        srd(A, 16, 28, 0x80000)
        A("s_lshl_b32 s56, s42, 7")
        A("v_add_u32 v5, s56, v0")
        A("v_lshlrev_b32 v5, 10, v5", "row*1024")
        A("s_lshl_b32 s57, s41, 7", "64nb*2")
        A("buffer_load_dword v6, v5, s[16:19], s57 offen")
        A("buffer_load_dword v6, v5, s[16:19], s57 offen offset:64")
        A("s_add_u32 s57, s57, 65536", "+64 rows")
        A("buffer_load_dword v7, v5, s[16:19], s57 offen")
        A("buffer_load_dword v7, v5, s[16:19], s57 offen offset:64")
    A.c("extra E-only jobs: row t=1024 (t-block 32) and column e=256 (e-block 8), on workgroups 0..40")
    A("s_cmp_ge_u32 s2, 41" if not opts.get("skipB") else "s_cmp_ge_u32 s2, 0")
    A("s_cbranch_scc1 K2_FEND")
    A("s_sub_u32 s64, s2, 32")
    A("s_cmp_lt_u32 s2, 32")
    A("s_cselect_b32 s63, s2, 32", "t-block")
    A("s_cselect_b32 s64, 8, s64", "e-block")
    A("s_waitcnt vmcnt(0)")
    job_setup(63, 64, False)
    for n in range(NS): issue(n, n)
    job_run(16, 1, 64, "B")
    A.label("K2_FEND")
    if not opts.get("pollst"): ST(5)
    if not opts.get("fuse23"):
        ST.dump(6)
        A.label("K2_END")
        if opts.get("rt"): A("s_waitcnt vmcnt(0)")
        rt_stamp(A, 1, 1, opts.get("rt"))
        A("s_endpgm")
        return name, 168, (96 if (opts.get('stamps') or opts.get('rt') or opts.get('clk') or opts.get('itst')) else 66)
    if F12 and opts.get("p3v2", 1): gen_phase3_v2(A, opts, ST)
    else: gen_phase3(A, opts, ST)
    return name, 168, 96


def gen_phase3(A, opts, ST):
    A.label("K2_PHASE3")
    A("s_waitcnt vmcnt(0)", "this wave's phase-2 stores have reached memory")
    A("s_cmp_eq_u32 s36, 8")
    A("s_cbranch_scc0 K2_PHASE3B")
    A.c("wave 8 stored this workgroup's Y tiles: publish them (one 128-B line per workgroup)")
    A("s_lshl_b32 s52, s2, 7")
    A(f"s_add_u32 s52, s52, {hex(WS_F2)}")
    A("v_mov_b32 v2, s65")
    A("v_mov_b32 v3, 0")
    A("s_mov_b64 exec, 1")
    A("buffer_store_dword v2, v3, s[4:7], s52 offen sc1")
    A("s_mov_b64 exec, -1")
    A.label("K2_PHASE3B")
    A("s_barrier", "LDS is free")
    ST(6)
    A("s_cmp_lt_u32 s36, 8")
    A("s_cbranch_scc1 K3_COMPUTE")
    A("s_cmp_eq_u32 s36, 8")
    A("s_cbranch_scc0 K3_WO")
    A("s_mov_b32 s50, s65", "epoch")
    A.c("O' flags: lane = 2*head + parity, line (head*32 + qp)")
    A("v_lshrrev_b32 v4, 1, v0")
    A("v_lshlrev_b32 v4, 5, v4")
    A("v_add_u32 v4, s40, v4")
    A("v_lshlrev_b32 v4, 7, v4")
    A("v_and_b32 v5, 1, v0")
    A("v_lshl_add_u32 v4, v5, 2, v4")
    A.c("Y flags: lanes 0..7: job A producers (head = qp, qb = lane); 8: WG qp; 9..17 (qp==0): WGs 32..40; rest: as lane 8")
    A("s_and_b32 s54, s40, 3")
    A("s_lshr_b32 s55, s40, 2")
    A("v_lshlrev_b32 v6, 2, v0")
    A("v_add_u32 v6, s54, v6")
    A("v_lshlrev_b32 v6, 3, v6")
    A("v_add_u32 v6, s55, v6", "b = (qp>>2) + 8*((qp&3) + 4*lane)")
    A("v_add_u32 v7, 23, v0", "lane+23: 9..17 -> 32..40")
    A("v_cmp_lt_u32 vcc, 8, v0")
    A("s_cmp_eq_u32 s40, 0")
    A("s_cselect_b32 s55, 17, 8", "last lane that matters")
    A("v_cndmask_b32 v6, v6, v7, vcc")
    A("v_mov_b32 v8, s40")
    A("v_cmp_eq_u32 vcc, 8, v0")
    A("s_nop 1")
    A("v_cndmask_b32 v6, v6, v8, vcc")
    A("v_cmp_lt_u32 vcc, s55, v0")
    A("s_nop 1")
    A("v_cndmask_b32 v6, v6, v8, vcc")
    A("v_lshlrev_b32 v6, 7, v6")
    A(f"s_mov_b32 s52, {hex(WS_F2O)}")
    A(f"s_mov_b32 s53, {hex(WS_F2)}")
    A("s_mov_b32 s51, 0")
    A(f"s_sleep {opts.get('sleep2', opts.get('sleep0', 12))}")
    A.label("K3_POLL")
    A("buffer_load_dword v5, v4, s[4:7], s52 offen sc1")
    A("buffer_load_dword v7, v6, s[4:7], s53 offen sc1")
    A("s_waitcnt vmcnt(0)")
    A("v_xor_b32 v5, s50, v5")
    A("v_xor_b32 v7, s50, v7")
    A("v_or_b32 v5, v5, v7")
    A("v_cmp_ne_u32 vcc, 0, v5")
    A("s_add_u32 s51, s51, 1")
    A("s_nop 3")
    A("s_cmp_eq_u64 vcc, 0")
    A("s_cbranch_scc1 K3_JOIN")
    A(f"s_sleep {opts.get('sleep1', 6)}")
    A("s_cmp_lt_u32 s51, 0x40000", "bounded: never hang")
    A("s_cbranch_scc1 K3_POLL")
    A.label("K3_JOIN")
    if not opts.get("pollst"): ST(8)
    if opts.get("stamps"): A("s_mov_b32 s81, s51")
    A("s_barrier", "inputs published, Wo staged")
    ST(7)
    ST.dump(12)
    A.label("K2_END")
    if opts.get("rt"): A("s_waitcnt vmcnt(0)")
    rt_stamp(A, 1, 1, opts.get("rt"))
    A("s_endpgm")

    A.label("K3_WO")
    srd(A, 8, 28, 0x80000)
    A("s_sub_u32 s42, s36, 9", "first 8-row group")
    A("v_lshrrev_b32 v9, 3, v0", "a")
    A("v_and_b32 v11, 7, v0")
    A("v_bfe_u32 v13, v9, 1, 1")
    A("v_lshlrev_b32 v13, 2, v13")
    A("v_xor_b32 v13, v11, v13", "logical piece q")
    A("v_lshlrev_b32 v13, 4, v13")
    A("v_lshlrev_b32 v9, 10, v9", "a*1024")
    A("s_lshl_b32 s45, s41, 7", "64nb*2")
    A("v_add3_u32 v2, v9, v13, s45", "Wo voffset")
    A.label("K3_WOL")
    A("s_lshl_b32 m0, s42, 10")
    A("s_lshl_b32 s49, s42, 13")
    A("buffer_load_dwordx4 v2, s[8:11], s49 offen lds")
    A("s_add_u32 s42, s42, 3")
    A("s_cmp_lt_u32 s42, 64")
    A("s_cbranch_scc1 K3_WOL")
    A("s_waitcnt vmcnt(0)")
    A("s_branch K3_JOIN")

    A.label("K3_COMPUTE")
    srd(A, 8, 84, 0x200000)
    A("s_and_b32 s42, s36, 1", "qt (0 rows s, 1 mirrored rows)")
    A("s_lshr_b32 s44, s36, 1", "kq: heads 8kq..8kq+7; finalizes column tile nt = kq>>1, half = kq&1")
    A("s_lshr_b32 s43, s44, 1", "nt")
    A("s_and_b32 s45, s44, 1", "half")
    A("v_and_b32 v8, 31, v0", "i")
    A("v_and_b32 v9, 19, v8", "bits 4,1,0")
    A("v_bfe_u32 v10, v8, 2, 1")
    A("v_lshl_or_b32 v9, v10, 3, v9")
    A("v_bfe_u32 v10, v8, 3, 1")
    A("v_lshl_or_b32 v9, v10, 2, v9", "pi(i)")
    A("s_lshl_b32 s46, s40, 5")
    A("v_add_u32 v9, s46, v9", "s")
    A("v_sub_u32 v10, 0x800, v9")
    A("v_mov_b32 v11, 0x400")
    A("v_cmp_eq_u32 vcc, 0, v9")
    A("s_cmp_eq_u32 s42, 1")
    A("s_cselect_b64 s[46:47], -1, 0")
    A("v_cndmask_b32 v10, v10, v11, vcc", "mirror(s)")
    A("v_cndmask_b32 v11, v9, v11, vcc", "t' for mirrored rows")
    A("v_cndmask_b32 v12, v9, v10, s[46:47]", "row")
    A("v_cndmask_b32 v13, v9, v11, s[46:47]", "t'")
    A("v_lshrrev_b32 v14, 5, v0", "h")
    A("v_lshlrev_b32 v15, 2, v12")
    A(f"s_mov_b32 s48, {hex(WS_G)}")
    A("buffer_load_dword v55, v15, s[4:7], s48 offen" + (" sc1" if opts.get("fuse12") else ""), "g[row]")
    A.c("this lane finalizes 8 columns: n0 = 64nb + 32nt + 16h + 8half")
    A("s_lshl_b32 s49, s41, 6")
    A("s_lshl_b32 s50, s43, 5")
    A("s_add_u32 s49, s49, s50")
    A("s_lshl_b32 s50, s45, 3")
    A("s_add_u32 s49, s49, s50")
    A("v_lshlrev_b32 v6, 4, v14")
    A("v_add_u32 v6, s49, v6", "n0")
    A("v_lshlrev_b32 v4, 10, v12")
    A("v_lshl_add_u32 v4, v6, 1, v4", "v4 = output offset")
    A("s_lshr_b32 s50, s41, 2", "nb>=4: mirrored columns")
    A("s_xor_b32 s51, s50, s42", "arr = Yp when exactly one of row / column is mirrored")
    A("v_sub_u32 v7, 505, v6", "512 - n0 - 7")
    A("s_cmp_eq_u32 s50, 1")
    A("s_cselect_b64 s[54:55], -1, 0")
    A("v_cndmask_b32 v7, v6, v7, s[54:55]", "first e'")
    A("v_lshrrev_b32 v7, 2, v7", "q0 = piece of the first e'")
    A("v_lshrrev_b32 v15, 5, v13")
    A("v_mul_u32_u24 v15, 18, v15")
    A("v_add_u32 v15, s51, v15")
    A("v_lshlrev_b32 v15, 12, v15")
    A("v_and_b32 v5, 31, v13")
    A("v_lshl_add_u32 v15, v5, 4, v15")
    for p in range(3):
        A(f"v_add_u32 v5, {p}, v7", "piece q")
        A("v_lshrrev_b32 v10, 3, v5", "e-block")
        A("v_lshlrev_b32 v10, 13, v10")
        A("v_bfe_u32 v11, v5, 1, 2", "m")
        A("v_lshl_add_u32 v10, v11, 10, v10")
        A("v_and_b32 v11, 1, v5", "h of the piece")
        A("v_lshl_add_u32 v10, v11, 9, v10")
        A(f"v_add_u32 v{50+p}, v10, v15")
    A("v_lshlrev_b32 v2, 4, v0", "v2 = lane*16")
    A("v_bfe_u32 v10, v0, 2, 2", "r")
    A("v_lshl_add_u32 v11, v14, 2, v10", "4h + r")
    A("v_lshlrev_b32 v11, 7, v11", "*128")
    A("v_and_b32 v12, 1, v0")
    A("v_lshlrev_b32 v12, 1, v12", "2(c4&1)")
    A("v_bfe_u32 v13, v0, 4, 1", "g'")
    A("v_add_u32 v12, v12, v13", "logical piece (nt = 0)")
    A("v_bfe_u32 v13, v0, 3, 1", "(r>>1)&1")
    A("v_lshlrev_b32 v13, 2, v13")
    A("v_xor_b32 v12, v12, v13")
    A("v_lshlrev_b32 v12, 4, v12")
    A("v_bfe_u32 v13, v0, 1, 1", "c4>>1")
    A("v_lshlrev_b32 v13, 3, v13")
    A("v_add3_u32 v3, v11, v12, v13")
    A("s_lshl_b32 s48, s44, 14", "8 heads * 2048")
    A("v_add_u32 v3, s48, v3", "v3 = Wo^T fragment address, nt = 0")
    A("v_xor_b32 v1, 64, v3", "v1: nt = 1")
    ACC, Y, OR = 16, 56, 72
    WF = [[104, 108], [112, 116]]
    for r in range(32): A(f"v_mov_b32 v{ACC+r}, 0")
    A("s_lshl_b32 s56, s40, 11")
    A("s_lshl_b32 s57, s42, 10")
    A("s_add_u32 s56, s56, s57")
    A("s_lshl_b32 s57, s44, 19", "8 heads * 65536")
    A("s_add_u32 s56, s56, s57")
    A(f"s_add_u32 s56, s56, {hex(WS_O)}", "O' soffset")
    A(f"s_mov_b32 s52, {hex(WS_Y)}")
    A("s_barrier", "inputs published, Wo staged")
    ST(7)
    for n in range(8):
        A(f"s_add_u32 s57, s56, {n*65536}")
        A(f"buffer_load_dwordx4 {vr(OR+4*n,4)}, v2, s[4:7], s57 offen sc1")
    for p in range(3):
        A(f"buffer_load_dwordx4 {vr(Y+4*p,4)}, v{50+p}, s[4:7], s52 offen sc1")
    def wr(st, hd):
        for nt in range(2):
            a = "v3" if nt == 0 else "v1"
            A(f"ds_read_b64_tr_b16 {vr(WF[st][nt],2)}, {a} offset:{hd*2048}")
            A(f"ds_read_b64_tr_b16 {vr(WF[st][nt]+2,2)}, {a} offset:{hd*2048+1024}")
    wr(0, 0)
    for n in range(8):
        st = n & 1
        if n < 7:
            wr(1 - st, n + 1)
            lg = 4
        else:
            lg = 0
        A(f"s_waitcnt vmcnt({10 - n}) lgkmcnt({lg})")
        for nt in range(2):
            A(f"v_mfma_f32_32x32x16_bf16 {vr(ACC+16*nt,16)}, {vr(WF[st][nt],4)}, {vr(OR+4*n,4)}, {vr(ACC+16*nt,16)}")
    ST(8)
    A.c("exchange: slot [wave][part p = 2nt + half] = 2 KB; this wave owns part kq and reads it from the 3 other waves of its qt")
    A("s_lshl_b32 s48, s36, 13")
    A("s_add_u32 s48, s48, 0x10000")
    A("v_add_u32 v10, s48, v2", "own slots")
    A("s_nop 12")
    for p in range(4):
        A(f"ds_write_b128 v10, {vr(ACC+8*p,4)} offset:{p*2048}")
        A(f"ds_write_b128 v10, {vr(ACC+8*p+4,4)} offset:{p*2048+1024}")
    A.c("partners: waves qt + 2k (k = 0..3): address = 0x10000 + (qt + 2k)*8192 + kq*2048")
    A("s_lshl_b32 s48, s42, 13")
    A("s_lshl_b32 s49, s44, 11")
    A("s_add_u32 s48, s48, s49")
    A("s_add_u32 s48, s48, 0x10000")
    A("v_add_u32 v11, s48, v2")
    A("s_waitcnt lgkmcnt(0)")
    A("s_barrier")
    for k in range(4):
        A(f"ds_read_b128 {vr(72+8*k,4)}, v11 offset:{k*16384}")
        A(f"ds_read_b128 {vr(72+8*k+4,4)}, v11 offset:{k*16384+1024}")
    A("v_sub_f32 v54, 1.0, v55", "1-g")
    A("s_waitcnt vmcnt(0) lgkmcnt(0)")
    for r in range(8):
        A(f"v_add_f32 v{72+r}, v{72+r}, v{80+r}")
        A(f"v_add_f32 v{88+r}, v{88+r}, v{96+r}")
    for r in range(8): A(f"v_add_f32 v{72+r}, v{72+r}, v{88+r}")
    A("s_cmp_eq_u32 s50, 1")
    A("s_cbranch_scc1 K3_EPI_M")
    for r in range(8): A(f"v_mul_f32 v{40+r}, v54, v{Y+r}")
    A("s_branch K3_EPI2")
    A.label("K3_EPI_M")
    A.c("mirrored: first e' = 505 - n0 = 1 mod 4 -> loaded index 1..8 ; column r <-> index 8 - r")
    for r in range(8): A(f"v_mul_f32 v{40+r}, v54, v{Y+8-r}")
    A.label("K3_EPI2")
    for r in range(8): A(f"v_fmac_f32 v{40+r}, v55, v{72+r}")
    for j in range(4): A(f"v_cvt_pk_bf16_f32 v{48+j}, v{40+2*j}, v{40+2*j+1}")
    A("buffer_store_dwordx4 v[48:51], v4, s[8:11], 0 offen")
    ST(9)
    ST.dump(12)
    if opts.get("rt"): A("s_waitcnt vmcnt(0)")
    rt_stamp(A, 1, 1, opts.get("rt"))
    A("s_endpgm")


def p3_setup(A):
    A("s_and_b32 s42, s36, 1", "qt (0 rows s, 1 mirrored rows)")
    A("s_lshr_b32 s44, s36, 1", "kq: heads 8kq..8kq+7; finalizes column tile nt = kq>>1, half = kq&1")
    A("s_lshr_b32 s43, s44, 1", "nt")
    A("s_and_b32 s45, s44, 1", "half")
    A.c("Wo staging: wave w loads k rows 64w..64w+63 (8 instructions)")
    A("v_lshrrev_b32 v9, 3, v0", "a")
    A("v_and_b32 v11, 7, v0")
    A("v_bfe_u32 v13, v9, 1, 1")
    A("v_lshlrev_b32 v13, 2, v13")
    A("v_xor_b32 v13, v11, v13", "logical piece q")
    A("v_lshlrev_b32 v13, 4, v13")
    A("v_lshlrev_b32 v9, 10, v9", "a*1024")
    A("s_lshl_b32 s46, s41, 7", "64nb*2")
    A("v_add3_u32 v62, v9, v13, s46", "Wo voffset")
    A("v_and_b32 v8, 31, v0", "i")
    A("v_and_b32 v9, 19, v8", "bits 4,1,0")
    A("v_bfe_u32 v10, v8, 2, 1")
    A("v_lshl_or_b32 v9, v10, 3, v9")
    A("v_bfe_u32 v10, v8, 3, 1")
    A("v_lshl_or_b32 v9, v10, 2, v9", "pi(i)")
    A("s_lshl_b32 s46, s40, 5")
    A("v_add_u32 v9, s46, v9", "s")
    A("v_sub_u32 v10, 0x800, v9")
    A("v_mov_b32 v11, 0x400")
    A("v_cmp_eq_u32 vcc, 0, v9")
    A("s_cmp_eq_u32 s42, 1")
    A("s_cselect_b64 s[46:47], -1, 0")
    A("v_cndmask_b32 v10, v10, v11, vcc", "mirror(s)")
    A("v_cndmask_b32 v11, v9, v11, vcc", "t' for mirrored rows")
    A("v_cndmask_b32 v12, v9, v10, s[46:47]", "row")
    A("v_cndmask_b32 v13, v9, v11, s[46:47]", "t'")
    A("v_lshrrev_b32 v14, 5, v0", "h")
    A("v_lshlrev_b32 v63, 2, v12", "g offset")
    A.c("this lane finalizes 8 columns: n0 = 64nb + 32nt + 16h + 8half")
    A("s_lshl_b32 s49, s41, 6")
    A("s_lshl_b32 s50, s43, 5")
    A("s_add_u32 s49, s49, s50")
    A("s_lshl_b32 s50, s45, 3")
    A("s_add_u32 s49, s49, s50")
    A("v_lshlrev_b32 v6, 4, v14")
    A("v_add_u32 v6, s49, v6", "n0")
    A("v_lshlrev_b32 v4, 10, v12")
    A("v_lshl_add_u32 v4, v6, 1, v4", "v4 = output offset")
    A("s_lshr_b32 s50, s41, 2", "nb>=4: mirrored columns")
    A("s_xor_b32 s51, s50, s42", "arr = Yp when exactly one of row / column is mirrored")
    A("v_sub_u32 v7, 505, v6", "512 - n0 - 7")
    A("s_cmp_eq_u32 s50, 1")
    A("s_cselect_b64 s[54:55], -1, 0")
    A("v_cndmask_b32 v7, v6, v7, s[54:55]", "first e'")
    A("v_lshrrev_b32 v7, 2, v7", "q0 = piece of the first e'")
    A("v_lshrrev_b32 v15, 5, v13")
    A("v_mul_u32_u24 v15, 18, v15")
    A("v_add_u32 v15, s51, v15")
    A("v_lshlrev_b32 v15, 12, v15")
    A("v_and_b32 v5, 31, v13")
    A("v_lshl_add_u32 v15, v5, 4, v15")
    for p in range(3):
        A(f"v_add_u32 v5, {p}, v7", "piece q")
        A("v_lshrrev_b32 v10, 3, v5", "e-block")
        A("v_lshlrev_b32 v10, 13, v10")
        A("v_bfe_u32 v11, v5, 1, 2", "m")
        A("v_lshl_add_u32 v10, v11, 10, v10")
        A("v_and_b32 v11, 1, v5", "h of the piece")
        A("v_lshl_add_u32 v10, v11, 9, v10")
        A(f"v_add_u32 v{50+p}, v10, v15")
    A("v_lshlrev_b32 v2, 4, v0", "v2 = lane*16")
    A("v_bfe_u32 v10, v0, 2, 2", "r")
    A("v_lshl_add_u32 v11, v14, 2, v10", "4h + r")
    A("v_lshlrev_b32 v11, 7, v11", "*128")
    A("v_and_b32 v12, 1, v0")
    A("v_lshlrev_b32 v12, 1, v12", "2(c4&1)")
    A("v_bfe_u32 v13, v0, 4, 1", "g'")
    A("v_add_u32 v12, v12, v13", "logical piece (nt = 0)")
    A("v_bfe_u32 v13, v0, 3, 1", "(r>>1)&1")
    A("v_lshlrev_b32 v13, 2, v13")
    A("v_xor_b32 v12, v12, v13")
    A("v_lshlrev_b32 v12, 4, v12")
    A("v_bfe_u32 v13, v0, 1, 1", "c4>>1")
    A("v_lshlrev_b32 v13, 3, v13")
    A("v_add3_u32 v3, v11, v12, v13")
    A("s_lshl_b32 s48, s44, 14", "8 heads * 2048")
    A("v_add_u32 v3, s48, v3", "v3 = Wo^T fragment address, nt = 0")
    A("v_xor_b32 v1, 64, v3", "v1: nt = 1")
    A.c("flag addresses: lanes 0..7: O' flags of my heads (line (8kq + lane)*32 + qp, word qt); lanes 8..15: Y job A producers; 16: WG qp; 17..25 (qp==0): WGs 32..40; rest: as lane 0")
    A("s_lshl_b32 s48, s44, 3")
    A("v_add_u32 v64, s48, v0")
    A("v_lshlrev_b32 v64, 5, v64")
    A("v_add_u32 v64, s40, v64")
    A("v_lshlrev_b32 v64, 7, v64")
    A("s_lshl_b32 s48, s42, 2")
    A(f"s_add_u32 s48, s48, {hex(WS_F2O)}")
    A("v_add_u32 v64, s48, v64", "O' flag address")
    A("s_and_b32 s54, s40, 3")
    A("s_lshr_b32 s55, s40, 2")
    A("v_subrev_u32 v65, 8, v0")
    A("v_lshlrev_b32 v65, 2, v65")
    A("v_add_u32 v65, s54, v65")
    A("v_lshlrev_b32 v65, 3, v65")
    A("v_add_u32 v65, s55, v65", "b = (qp>>2) + 8*((qp&3) + 4*(lane-8))")
    A("v_add_u32 v66, 15, v0", "lane+15: 17..25 -> 32..40")
    A("v_mov_b32 v67, s40")
    A("v_cmp_lt_u32 vcc, 16, v0")
    A("s_cmp_eq_u32 s40, 0")
    A("s_cselect_b32 s55, 25, 16", "last lane that matters")
    A("v_cndmask_b32 v65, v65, v66, vcc")
    A("v_cmp_eq_u32 vcc, 16, v0")
    A("s_nop 1")
    A("v_cndmask_b32 v65, v65, v67, vcc")
    A("v_cmp_lt_u32 vcc, s55, v0")
    A("s_nop 1")
    A("v_cndmask_b32 v65, v65, v67, vcc")
    A("v_lshlrev_b32 v65, 7, v65")
    A(f"v_add_u32 v65, {hex(WS_F2)}, v65", "Y flag address")
    A("v_cmp_gt_u32 vcc, 8, v0")
    A("s_nop 1")
    A("v_cndmask_b32 v64, v65, v64, vcc", "v64 = flag address of this lane")
    for dst, src in ((120,4),(121,50),(122,51),(123,52),(124,62),(125,63),(126,64),(127,1),(128,2),(129,3)):
        A(f"v_mov_b32 v{dst}, v{src}")

def p3_restore(A):
    A("s_and_b32 s42, s36, 1", "qt")
    A("s_lshr_b32 s44, s36, 1", "kq")
    A("s_lshr_b32 s50, s41, 2", "nb>=4: mirrored columns")
    for dst, src in ((120,4),(121,50),(122,51),(123,52),(124,62),(125,63),(126,64),(127,1),(128,2),(129,3)):
        A(f"v_mov_b32 v{src}, v{dst}")

def gen_phase3_v2(A, opts, ST):
    A("s_waitcnt vmcnt(0)", "this wave's phase-2 stores have reached memory")
    A("s_cmp_eq_u32 s36, 8")
    A("s_cbranch_scc0 K3_FDONE")
    A.c("wave 8 stored this workgroup's Y tiles: publish them (one 128-B line per workgroup)")
    A("s_lshl_b32 s52, s2, 7")
    A(f"s_add_u32 s52, s52, {hex(WS_F2)}")
    A("v_mov_b32 v2, s65")
    A("v_mov_b32 v3, 0")
    A("s_mov_b64 exec, 1")
    A("buffer_store_dword v2, v3, s[4:7], s52 offen sc1")
    A.label("K3_FDONE")
    ST(6); ST(7)
    ST.dump(12)
    A.label("K2_END")
    A("s_endpgm")

    def soft_arrive(off):
        A(f"v_mov_b32 v60, {LDS_C3 + off}")
        A("v_mov_b32 v61, 1")
        A("s_mov_b64 exec, 1")
        A("ds_add_u32 v60, v61")
        A("s_mov_b64 exec, -1")
    def soft_wait(off, tag):
        A(f"v_mov_b32 v60, {LDS_C3 + off}")
        A.label(f"K3_SW{tag}")
        A("ds_read_b32 v61, v60")
        A("s_waitcnt lgkmcnt(0)")
        A("v_readfirstlane_b32 s48, v61")
        A("s_cmp_ge_u32 s48, 8")
        A(f"s_cbranch_scc1 K3_SG{tag}")
        A("s_sub_u32 s67, s67, 1")
        A("s_cmp_gt_i32 s67, 0", "bounded: never hang")
        A(f"s_cbranch_scc1 K3_SW{tag}")
        A.label(f"K3_SG{tag}")

    A.label("K3_ENTRY")
    soft_arrive(0)
    srd(A, 8, 84, 0x200000)
    srd(A, 12, 28, 0x80000)
    p3_restore(A)
    ACC, Y, OR = 16, 56 + 48, 72
    WF = [[120, 124], [128, 132]]
    A("s_lshl_b32 s56, s40, 11")
    A("s_lshl_b32 s57, s42, 10")
    A("s_add_u32 s56, s56, s57")
    A("s_lshl_b32 s57, s44, 19", "8 heads * 65536")
    A("s_add_u32 s56, s56, s57")
    A(f"s_add_u32 s56, s56, {hex(WS_O)}", "O' soffset")
    A(f"s_mov_b32 s52, {hex(WS_Y)}")
    soft_wait(0, "A")
    ST(6)
    A("s_lshl_b32 s48, s36, 13", "LDS: 64w*128")
    A("s_lshl_b32 s49, s36, 16", "rows 64w")
    for u in range(8):
        A(f"s_add_u32 m0, s48, {u*1024}")
        A(f"s_add_u32 s53, s49, {u*8192}")
        A("buffer_load_dwordx4 v62, s[12:15], s53 offen lds")
    A(f"s_mov_b32 s53, {hex(WS_G)}")
    A("buffer_load_dword v55, v63, s[4:7], s53 offen sc1", "g[row]")
    A("s_mov_b32 s58, 0")
    A("s_mov_b32 s59, 0", "Wo signalled?")
    A.label("K3_POLL")
    A("buffer_load_dword v66, v64, s[4:7], 0 offen sc1")
    A("s_waitcnt vmcnt(0)")
    A("s_cmp_eq_u32 s59, 0")
    A("s_cbranch_scc0 K3_NOSIG")
    soft_arrive(4)
    A("s_mov_b32 s59, 1")
    A.label("K3_NOSIG")
    A("v_cmp_ne_u32 vcc, s66, v66")
    A("s_add_u32 s58, s58, 1")
    A("s_nop 3")
    A("s_and_b32 s48, vcc_lo, 0xff")
    A("s_cmp_eq_u32 s48, 0")
    A("s_cbranch_scc1 K3_OGO")
    A(f"s_sleep {opts.get('sleep1', 6)}")
    A("s_cmp_lt_u32 s58, 0x40000", "bounded: never hang")
    A("s_cbranch_scc1 K3_POLL")
    A.label("K3_OGO")
    A("s_mov_b64 s[60:61], vcc", "which Y flags were still missing")
    ST(7)
    for n in range(8):
        A(f"s_add_u32 s57, s56, {n*65536}")
        A(f"buffer_load_dwordx4 {vr(OR+4*n,4)}, v2, s[4:7], s57 offen sc1")
    A("s_cmp_eq_u64 s[60:61], 0")
    A("s_cbranch_scc0 K3_NOY1")
    for p in range(3):
        A(f"buffer_load_dwordx4 {vr(Y+4*p,4)}, v{50+p}, s[4:7], s52 offen sc1")
    A.label("K3_NOY1")
    soft_wait(4, "B")
    def wr(st, hd):
        for nt in range(2):
            a = "v3" if nt == 0 else "v1"
            A(f"ds_read_b64_tr_b16 {vr(WF[st][nt],2)}, {a} offset:{hd*2048}")
            A(f"ds_read_b64_tr_b16 {vr(WF[st][nt]+2,2)}, {a} offset:{hd*2048+1024}")
    A.c("the Y loads (if issued) are younger than the O' loads: count them as possibly outstanding only when they were issued")
    A("s_cmp_eq_u64 s[60:61], 0")
    A("s_cbranch_scc0 K3_MM0")
    for var, extra in (("1", 3), ("0", 0)):
        A.label(f"K3_MM{var}")
        wr(0, 0)
        for n in range(8):
            st = n & 1
            if n < 7:
                wr(1 - st, n + 1)
                lg = 4
            else:
                lg = 0
            A(f"s_waitcnt vmcnt({7 - n + extra}) lgkmcnt({lg})")
            for nt in range(2):
                A(f"v_mfma_f32_32x32x16_bf16 {vr(ACC+16*nt,16)}, {vr(WF[st][nt],4)}, {vr(OR+4*n,4)}, " + ("0" if n == 0 else vr(ACC+16*nt,16)))
        if var == "1": A("s_branch K3_MMD")
    A.c("Y was not ready at the first poll: wait for it now")
    A("s_mov_b32 s58, 0")
    A.label("K3_POLLY")
    A("buffer_load_dword v66, v64, s[4:7], 0 offen sc1")
    A("s_waitcnt vmcnt(0)")
    A("v_cmp_ne_u32 vcc, s66, v66")
    A("s_add_u32 s58, s58, 1")
    A("s_nop 3")
    A("s_cmp_eq_u64 vcc, 0")
    A("s_cbranch_scc1 K3_YGO")
    A(f"s_sleep {opts.get('sleep1', 6)}")
    A("s_cmp_lt_u32 s58, 0x40000", "bounded: never hang")
    A("s_cbranch_scc1 K3_POLLY")
    A.label("K3_YGO")
    for p in range(3):
        A(f"buffer_load_dwordx4 {vr(Y+4*p,4)}, v{50+p}, s[4:7], s52 offen sc1")
    A.label("K3_MMD")
    ST(8)
    A.c("exchange: slot [wave][part p = 2nt + half] = 2 KB at 64 KB; this wave owns part kq and reads it from the 4 waves of its qt")
    A("s_lshl_b32 s48, s36, 13")
    A("s_add_u32 s48, s48, 0x10000")
    A("v_add_u32 v10, s48, v2", "own slots")
    A("s_nop 12")
    for p in range(4):
        A(f"ds_write_b128 v10, {vr(ACC+8*p,4)} offset:{p*2048}")
        A(f"ds_write_b128 v10, {vr(ACC+8*p+4,4)} offset:{p*2048+1024}")
    A("s_lshl_b32 s48, s42, 13")
    A("s_lshl_b32 s49, s44, 11")
    A("s_add_u32 s48, s48, s49")
    A("s_add_u32 s48, s48, 0x10000")
    A("v_add_u32 v11, s48, v2")
    A("s_waitcnt lgkmcnt(0)")
    soft_arrive(8)
    soft_wait(8, "C")
    for k in range(4):
        A(f"ds_read_b128 {vr(72+8*k,4)}, v11 offset:{k*16384}")
        A(f"ds_read_b128 {vr(72+8*k+4,4)}, v11 offset:{k*16384+1024}")
    A("v_sub_f32 v54, 1.0, v55", "1-g")
    A("s_waitcnt vmcnt(0) lgkmcnt(0)")
    for r in range(8):
        A(f"v_add_f32 v{72+r}, v{72+r}, v{80+r}")
        A(f"v_add_f32 v{88+r}, v{88+r}, v{96+r}")
    for r in range(8): A(f"v_add_f32 v{72+r}, v{72+r}, v{88+r}")
    A("s_cmp_eq_u32 s50, 1")
    A("s_cbranch_scc1 K3_EPI_M")
    for r in range(8): A(f"v_mul_f32 v{40+r}, v54, v{Y+r}")
    A("s_branch K3_EPI2")
    A.label("K3_EPI_M")
    for r in range(8): A(f"v_mul_f32 v{40+r}, v54, v{Y+8-r}")
    A.label("K3_EPI2")
    for r in range(8): A(f"v_fmac_f32 v{40+r}, v55, v{72+r}")
    for j in range(4): A(f"v_cvt_pk_bf16_f32 v{48+j}, v{40+2*j}, v{40+2*j+1}")
    A("buffer_store_dwordx4 v[48:51], v4, s[8:11], 0 offen")
    ST(9)
    ST.dump(12)
    A("s_endpgm")
```
